```python
import torch

def _softmax(x, axis=-1):
    return torch.softmax(x, dim=axis)
def _gelu(x):
    return torch.nn.functional.gelu(x, approximate="tanh")
def _silu(x):
    return torch.nn.functional.silu(x)
def _sigmoid(x):
    return torch.sigmoid(x)
def _layernorm(x, axis=-1, eps=1e-5):
    m = x.mean(dim=axis, keepdim=True)
    v = x.var(dim=axis, keepdim=True, unbiased=False)
    return (x - m) / torch.sqrt(v + eps)
def _scatter_add(tgt, idx, src, axis=0):
    return tgt.clone().index_add_(axis, idx, src)
def _segment_sum(src, seg, n):
    out = torch.zeros((n,) + src.shape[1:], dtype=src.dtype)
    return out.index_add_(0, seg, src)
def _pad(x, pw):
    flat = tuple(v for pair in reversed(pw) for v in pair)
    return torch.nn.functional.pad(x, flat)

kernel_name = 'parallel_sum__linear_attn_block__mixer_channel_mlp__prompt'

def setup_inputs():

    _w = (lambda a: (lambda t: t.to(torch.bfloat16) if t.is_floating_point() else t)(torch.as_tensor(a)))
    def _A_setup():
        B, S, D = 1, 2048, 640
        return {
            "x": _w((lambda *s: torch.randn(*s, dtype=torch.bfloat16) * 0.05)(B, S, D)),
            "wqkv": _w((lambda *s: torch.randn(*s, dtype=torch.bfloat16) * 0.1)(D, 3 * D)),
            "wo": _w((lambda *s: torch.randn(*s, dtype=torch.bfloat16) * 0.05)(D, D)),
        }
    _A_in = _A_setup()

    def _B_setup():
        B, S, D, F = 1, 2048, 640, 1536
        return {
            "x": _w((lambda *s: torch.randn(*s, dtype=torch.bfloat16) * 0.05)(B, S, D)),
            "w1": _w((lambda *s: torch.randn(*s, dtype=torch.bfloat16) * 1.6)(D, F) * (D ** -0.5)),
            "b1": _w((lambda *s: torch.randn(*s, dtype=torch.bfloat16) * 0.8)(F)),
            "w2": _w((lambda *s: torch.randn(*s, dtype=torch.bfloat16) * 0.05)(F, D) * (F ** -0.5)),
            "b2": _w((lambda *s: torch.randn(*s, dtype=torch.bfloat16) * 0.05)(D)),
        }
    _B_in = _B_setup()

    return {
        "A_x": _A_in["x"],
        "A_wqkv": _A_in["wqkv"],
        "A_wo": _A_in["wo"],
        "B_x": _B_in["x"],
        "B_w1": _B_in["w1"],
        "B_b1": _B_in["b1"],
        "B_w2": _B_in["w2"],
        "B_b2": _B_in["b2"],
    }

def reference(A_x, A_wqkv, A_wo, B_x, B_w1, B_b1, B_w2, B_b2):
    def _A_ref(x, wqkv, wo):
        B, S, D = x.shape
        H = 32; Dh = D // H
        qkv = (lambda x, *d: x.permute(*d))((x @ wqkv).reshape(B, S, 3, H, Dh), 2, 0, 3, 1, 4)
        q, k, v = qkv[0], qkv[1], qkv[2]
        phi = lambda t: torch.where(t > 0, t + 1, torch.exp(t)) + 1e-6
        pq, pk = phi(q), phi(k)
        kv = torch.einsum("bhsd,bhse->bhde", pk, v)
        z = torch.einsum("bhsd->bhd", pk)
        num = torch.einsum("bhqd,bhde->bhqe", pq, kv)
        den = torch.einsum("bhqd,bhd->bhq", pq, z)[..., None] + 1e-6
        o = num / den
        return (lambda x, *d: x.permute(*d))(o, 0, 2, 1, 3).reshape(B, S, D) @ wo

    def _B_ref(x, w1, b1, w2, b2):
        y = _layernorm(x, axis=-1)
        h = _gelu(torch.einsum("bsd,df->bsf", y, w1) + b1)
        return torch.einsum("bsf,fd->bsd", h, w2) + b2

    x = A_x
    xn = _layernorm(x, axis=-1)
    return x + _A_ref(xn, A_wqkv, A_wo) + _B_ref(xn, B_w1, B_b1, B_w2, B_b2)
```

```python
import sys

NAME = "parallel_sum__linear_attn_block__mixer_channel_mlp__prompt"

WS_PQ = 0
WS_H = 0x280000
WS_M = 0x880000
WS_Z = 0x950000
WS_SLAB = 0x960000
SLAB_STRIDE = 7168
WS_END = WS_SLAB + 8 * 16 * SLAB_STRIDE

SZ_X = 2048 * 640 * 2
SZ_WQKV = 640 * 1920 * 2
SZ_WO = 640 * 640 * 2
SZ_W1 = 640 * 1536 * 2
SZ_B1 = 1536 * 2
SZ_W2 = 1536 * 640 * 2
SZ_B2 = 640 * 2
SZ_OUT = 2048 * 640 * 2


class Asm:
    def __init__(self):
        self.lines = []

    def __call__(self, s):
        for ln in s.strip("\n").split("\n"):
            ln = ln.strip()
            if ln:
                self.lines.append("    " + ln)

    def label(self, l):
        self.lines.append(l + ":")

    def raw(self, s):
        self.lines.append(s)

    def text(self):
        return "\n".join(self.lines) + "\n"


def vr(b, n=4):
    return "v[%d:%d]" % (b, b + n - 1)


def ar(b, n=4):
    return "a[%d:%d]" % (b, b + n - 1)


def srd(a, d, base, size, add=0):
    if add:
        a("s_add_u32 s%d, s%d, 0x%x" % (d, base, add))
        a("s_addc_u32 s%d, s%d, 0" % (d + 1, base + 1))
    else:
        a("s_mov_b32 s%d, s%d" % (d, base))
        a("s_mov_b32 s%d, s%d" % (d + 1, base + 1))
    a("s_mov_b32 s%d, 0x%x" % (d + 2, size))
    a("s_mov_b32 s%d, 0x00020000" % (d + 3))


def bf16_round1(a, x, t):
    a("v_cvt_pk_bf16_f32 v%d, v%d, v%d" % (t, x, x))
    a("v_lshlrev_b32 v%d, 16, v%d" % (x, t))


VA = 96
VACC = 56
VB = 16
V_LANE = 1
V_TR = 2
V_ST0 = 3
V_ST1 = 4
V_L16 = 5
V_G4 = 6
V_L15 = 7
V_DMA = 8
V_T0 = 13
V_T1 = 14
V_T2 = 15

SLOT = 20480
STREAM = 3 * SLOT
K1_FLAG = 2 * STREAM
K1_KVBD = K1_FLAG + 256
KVBD_PITCH = 208
K1_LDS = 143360


def a_reg(t, s):
    return VA + (t * 20 + s) * 4


def acc_reg(c, t):
    return VACC + (c * 2 + t) * 4


def b_reg(buf, c):
    return VB + (buf * 5 + c) * 4


def emit_ln(a):
    S0, Q0, S1, Q1 = 16, 17, 18, 19
    ONES = 20
    TMP = 21
    a("v_mov_b32 v%d, 0x3f803f80" % ONES)
    for r in (S0, Q0, S1, Q1):
        a("v_mov_b32 v%d, 0" % r)
    for i in range(80):
        x0 = VA + i
        x1 = VA + 80 + i
        a("v_dot2_f32_bf16 v%d, v%d, v%d, v%d" % (S0, x0, ONES, S0))
        a("v_dot2_f32_bf16 v%d, v%d, v%d, v%d" % (Q0, x0, x0, Q0))
        a("v_dot2_f32_bf16 v%d, v%d, v%d, v%d" % (S1, x1, ONES, S1))
        a("v_dot2_f32_bf16 v%d, v%d, v%d, v%d" % (Q1, x1, x1, Q1))
    a("s_nop 3")
    T = [22, 23, 24, 25]
    vals = [S0, Q0, S1, Q1]
    for v, t in zip(vals, T):
        a("v_mov_b32 v%d, v%d" % (t, v))
    a("s_nop 1")
    for v, t in zip(vals, T):
        a("v_permlane16_swap_b32 v%d, v%d" % (v, t))
    a("s_nop 1")
    for v, t in zip(vals, T):
        a("v_add_f32 v%d, v%d, v%d" % (v, v, t))
    for v, t in zip(vals, T):
        a("v_mov_b32 v%d, v%d" % (t, v))
    a("s_nop 1")
    for v, t in zip(vals, T):
        a("v_permlane32_swap_b32 v%d, v%d" % (v, t))
    a("s_nop 1")
    for v, t in zip(vals, T):
        a("v_add_f32 v%d, v%d, v%d" % (v, v, t))
    RP = [26, 30]
    CP = [28, 32]
    a("v_mov_b32 v%d, 0x3acccccd" % TMP)
    for t, (s, q) in enumerate(((S0, Q0), (S1, Q1))):
        a("v_mul_f32 v%d, v%d, v%d" % (s, s, TMP))
        a("v_mul_f32 v%d, v%d, v%d" % (q, q, TMP))
        a("v_fma_f32 v%d, -v%d, v%d, v%d" % (q, s, s, q))
        a("v_max_f32 v%d, 0, v%d" % (q, q))
        bf16_round1(a, s, 34)
        bf16_round1(a, q, 34)
        a("v_add_f32 v%d, 0x3727c5ac, v%d" % (q, q))
        bf16_round1(a, q, 34)
        a("v_sqrt_f32 v%d, v%d" % (q, q))
        a("s_nop 0")
        bf16_round1(a, q, 34)
        a("v_rcp_f32 v%d, v%d" % (RP[t], q))
        a("s_nop 0")
        a("v_mov_b32 v%d, v%d" % (RP[t] + 1, RP[t]))
        a("v_mul_f32 v%d, -v%d, v%d" % (CP[t], s, RP[t]))
        a("v_mov_b32 v%d, v%d" % (CP[t] + 1, CP[t]))
    pairs = [36, 38, 40, 42, 44, 46, 48, 50]
    idx = 0
    work = [(t, VA + t * 80 + i) for i in range(80) for t in range(2)]
    for g0 in range(0, len(work), 8):
        grp = work[g0:g0 + 8]
        for (t, x), p in zip(grp, pairs):
            a("v_lshlrev_b32 v%d, 16, v%d" % (p, x))
            a("v_and_b32 v%d, 0xffff0000, v%d" % (p + 1, x))
        for (t, x), p in zip(grp, pairs):
            a("v_pk_fma_f32 %s, %s, %s, %s" % (vr(p, 2), vr(p, 2), vr(RP[t], 2), vr(CP[t], 2)))
        for (t, x), p in zip(grp, pairs):
            a("v_cvt_pk_bf16_f32 v%d, v%d, v%d" % (x, p, p + 1))


def emit_dma(a, soff_imm, slot, tag):
    lbl = "K1_NODMA_%s" % tag
    a("s_cmp_eq_u32 s47, 0")
    a("s_cbranch_scc1 %s" % lbl)
    a("s_add_u32 s45, s43, 0x%x" % soff_imm)
    for q in range(5):
        a("s_add_u32 m0, s46, 0x%x" % (slot * SLOT + q * 1024))
        a("s_nop 0")
        a("buffer_load_dwordx4 v%d, s[24:27], s45 offen lds" % (V_DMA + q))
    a.label(lbl)


def emit_tr(a, buf, slot, ks, NT):
    for c in range(NT):
        for hh in range(2):
            off = slot * SLOT + ks * 5120 + hh * 2560 + c * 32
            a("ds_read_b64_tr_b16 %s, v%d offset:%d" % (vr(b_reg(buf, c) + hh * 2, 2), V_TR, off))


def emit_pass(a, NT, transposed, gs0, total_stages, stage_off, tag):
    for st in range(5):
        gs = gs0 + st
        slot = gs % 3
        if gs >= 2:
            a("s_waitcnt vmcnt(%d)" % (5 if gs + 1 < total_stages else 0))
        a("s_barrier")
        if gs + 2 < total_stages:
            emit_dma(a, stage_off(gs + 2), (gs + 2) % 3, "%s_%d" % (tag, gs))
        emit_tr(a, 0, slot, 0, NT)
        for ks in range(4):
            s = st * 4 + ks
            buf = ks & 1
            if ks < 3:
                emit_tr(a, buf ^ 1, slot, ks + 1, NT)
                a("s_waitcnt lgkmcnt(%d)" % (2 * NT))
            else:
                a("s_waitcnt lgkmcnt(0)")
            for c in range(NT):
                for t in range(2):
                    d = vr(acc_reg(c, t))
                    cin = "0" if s == 0 else d
                    A_ = vr(a_reg(t, s))
                    B_ = vr(b_reg(buf, c))
                    if transposed:
                        a("v_mfma_f32_16x16x32_bf16 %s, %s, %s, %s" % (d, B_, A_, cin))
                    else:
                        a("v_mfma_f32_16x16x32_bf16 %s, %s, %s, %s" % (d, A_, B_, cin))
    a("s_nop 7")
    a("s_nop 1")


def emit_phi4(a, src, dst2, tmp, smask):
    t = [tmp + i for i in range(4)]
    e = [tmp + 4 + i for i in range(4)]
    f = [tmp + 8 + i for i in range(4)]
    a("v_cvt_pk_bf16_f32 v%d, v%d, v%d" % (e[0], src, src + 1))
    a("v_cvt_pk_bf16_f32 v%d, v%d, v%d" % (e[1], src + 2, src + 3))
    a("v_lshlrev_b32 v%d, 16, v%d" % (t[0], e[0]))
    a("v_and_b32 v%d, 0xffff0000, v%d" % (t[1], e[0]))
    a("v_lshlrev_b32 v%d, 16, v%d" % (t[2], e[1]))
    a("v_and_b32 v%d, 0xffff0000, v%d" % (t[3], e[1]))
    for i in range(4):
        a("v_mul_f32 v%d, 0x3fb8aa3b, v%d" % (e[i], t[i]))
        a("v_cmp_lt_f32 s[%d:%d], 0, v%d" % (smask + 2 * i, smask + 2 * i + 1, t[i]))
    for i in range(4):
        a("v_exp_f32 v%d, v%d" % (e[i], e[i]))
        a("v_add_f32 v%d, 1.0, v%d" % (f[i], t[i]))
    for i in range(4):
        a("v_cndmask_b32 v%d, v%d, v%d, s[%d:%d]" % (t[i], e[i], f[i], smask + 2 * i, smask + 2 * i + 1))
    a("v_cvt_pk_bf16_f32 v%d, v%d, v%d" % (e[0], t[0], t[1]))
    a("v_cvt_pk_bf16_f32 v%d, v%d, v%d" % (e[1], t[2], t[3]))
    a("v_lshlrev_b32 v%d, 16, v%d" % (t[0], e[0]))
    a("v_and_b32 v%d, 0xffff0000, v%d" % (t[1], e[0]))
    a("v_lshlrev_b32 v%d, 16, v%d" % (t[2], e[1]))
    a("v_and_b32 v%d, 0xffff0000, v%d" % (t[3], e[1]))
    for i in range(4):
        a("v_add_f32 v%d, 0x358637bd, v%d" % (t[i], t[i]))
    a("v_cvt_pk_bf16_f32 v%d, v%d, v%d" % (dst2, t[0], t[1]))
    a("v_cvt_pk_bf16_f32 v%d, v%d, v%d" % (dst2 + 1, t[2], t[3]))


def emit_gelu4(a, src, b1r, dst2, tmp):
    t = [tmp + i for i in range(4)]
    e = [tmp + 4 + i for i in range(4)]
    f = [tmp + 8 + i for i in range(4)]
    a("v_cvt_pk_bf16_f32 v%d, v%d, v%d" % (e[0], src, src + 1))
    a("v_cvt_pk_bf16_f32 v%d, v%d, v%d" % (e[1], src + 2, src + 3))
    a("v_lshlrev_b32 v%d, 16, v%d" % (t[0], e[0]))
    a("v_and_b32 v%d, 0xffff0000, v%d" % (t[1], e[0]))
    a("v_lshlrev_b32 v%d, 16, v%d" % (t[2], e[1]))
    a("v_and_b32 v%d, 0xffff0000, v%d" % (t[3], e[1]))
    a("v_lshlrev_b32 v%d, 16, v%d" % (f[0], b1r))
    a("v_and_b32 v%d, 0xffff0000, v%d" % (f[1], b1r))
    a("v_lshlrev_b32 v%d, 16, v%d" % (f[2], b1r + 1))
    a("v_and_b32 v%d, 0xffff0000, v%d" % (f[3], b1r + 1))
    for i in range(4):
        a("v_add_f32 v%d, v%d, v%d" % (t[i], t[i], f[i]))
    a("v_cvt_pk_bf16_f32 v%d, v%d, v%d" % (e[0], t[0], t[1]))
    a("v_cvt_pk_bf16_f32 v%d, v%d, v%d" % (e[1], t[2], t[3]))
    a("v_lshlrev_b32 v%d, 16, v%d" % (t[0], e[0]))
    a("v_and_b32 v%d, 0xffff0000, v%d" % (t[1], e[0]))
    a("v_lshlrev_b32 v%d, 16, v%d" % (t[2], e[1]))
    a("v_and_b32 v%d, 0xffff0000, v%d" % (t[3], e[1]))
    for i in range(4):
        a("v_mul_f32 v%d, v%d, v%d" % (e[i], t[i], t[i]))
    for i in range(4):
        a("v_mov_b32 v%d, s60" % f[i])
    for i in range(4):
        a("v_fmac_f32 v%d, s61, v%d" % (f[i], e[i]))
    for i in range(4):
        a("v_mul_f32 v%d, v%d, v%d" % (e[i], t[i], f[i]))
    for i in range(4):
        a("v_exp_f32 v%d, v%d" % (e[i], e[i]))
    a("s_nop 0")
    for i in range(4):
        a("v_add_f32 v%d, 1.0, v%d" % (e[i], e[i]))
    for i in range(4):
        a("v_rcp_f32 v%d, v%d" % (e[i], e[i]))
    a("s_nop 0")
    for i in range(4):
        a("v_mul_f32 v%d, v%d, v%d" % (t[i], t[i], e[i]))
    a("v_cvt_pk_bf16_f32 v%d, v%d, v%d" % (dst2, t[0], t[1]))
    a("v_cvt_pk_bf16_f32 v%d, v%d, v%d" % (dst2 + 1, t[2], t[3]))


def gen_k1(a):
    a.raw(".globl k1_kernel")
    a.raw(".p2align 8")
    a.raw(".type k1_kernel,@function")
    a.label("k1_kernel")
    a("""
    s_cmp_ge_u32 s2, 256
    s_cbranch_scc1 K1_END
    s_load_dwordx2 s[4:5], s[0:1], 0
    s_load_dwordx2 s[6:7], s[0:1], 8
    s_load_dwordx2 s[8:9], s[0:1], 16
    s_load_dwordx2 s[10:11], s[0:1], 32
    s_load_dwordx2 s[12:13], s[0:1], 40
    s_load_dwordx2 s[14:15], s[0:1], 72
    s_load_dwordx2 s[16:17], s[0:1], 80
    v_and_b32 v1, 63, v0
    v_lshrrev_b32 v13, 6, v0
    s_nop 0
    v_readfirstlane_b32 s40, v13
    v_lshlrev_b32 v5, 4, v1
    v_lshrrev_b32 v6, 4, v1
    v_lshlrev_b32 v6, 2, v6
    v_and_b32 v7, 15, v1
    s_waitcnt lgkmcnt(0)
    """)
    srd(a, 20, 4, SZ_X)
    srd(a, 32, 12, SZ_B1)
    srd(a, 36, 14, 256)
    a("""
    s_cmp_ge_u32 s2, 128
    s_cbranch_scc1 K1_DEC_QH
    s_mov_b32 s41, 0
    s_and_b32 s48, s2, 7
    s_lshr_b32 s49, s2, 3
    s_lshl_b32 s42, s49, 7
    s_and_b32 s50, s40, 3
    s_lshl_b32 s51, s50, 5
    s_add_u32 s42, s42, s51
    s_lshr_b32 s51, s40, 2
    s_mul_i32 s43, s51, 1280
    s_mul_i32 s52, s48, 160
    s_add_u32 s43, s43, s52
    s_add_u32 s43, s43, 1280
    s_mov_b32 s44, 3840
    s_mov_b32 s47, 1
    s_mul_i32 s46, s51, %d
    s_mul_i32 s52, s50, 5120
    s_add_u32 s46, s46, s52
    """ % STREAM)
    srd(a, 24, 6, SZ_WQKV)
    srd(a, 28, 16, 8 * 16 * SLAB_STRIDE, WS_SLAB)
    a("s_branch K1_DEC_DONE")
    a.label("K1_DEC_QH")
    a("""
    s_sub_u32 s50, s2, 128
    s_and_b32 s48, s50, 7
    s_lshr_b32 s51, s50, 3
    s_and_b32 s51, s51, 1
    s_lshl_b32 s51, s51, 3
    s_add_u32 s48, s48, s51
    s_lshr_b32 s49, s50, 4
    s_lshl_b32 s42, s49, 8
    s_lshl_b32 s51, s40, 5
    s_add_u32 s42, s42, s51
    s_cmp_lt_u32 s40, 4
    s_cselect_b32 s47, 1, 0
    s_and_b32 s50, s40, 3
    s_mul_i32 s46, s50, 5120
    s_mov_b32 s51, 0
    s_cmp_ge_u32 s48, 4
    s_cbranch_scc1 K1_DEC_H
    s_mov_b32 s41, 1
    s_mul_i32 s43, s48, 320
    s_mov_b32 s44, 3840
    """)
    srd(a, 24, 6, SZ_WQKV)
    srd(a, 28, 16, 2048 * 640 * 2, WS_PQ)
    a("s_branch K1_DEC_DONE")
    a.label("K1_DEC_H")
    a("""
    s_mov_b32 s41, 2
    s_sub_u32 s52, s48, 4
    s_lshl_b32 s43, s52, 8
    s_mov_b32 s44, 3072
    """)
    srd(a, 24, 10, SZ_W1)
    srd(a, 28, 16, 2048 * 1536 * 2, WS_H)
    a.label("K1_DEC_DONE")
    a("""
    v_lshrrev_b32 v13, 2, v1
    v_mul_u32_u24 v2, 160, v13
    v_and_b32 v13, 3, v1
    v_lshl_add_u32 v2, v13, 3, v2
    s_mul_i32 s52, s51, %d
    v_add_u32 v2, s52, v2
    """ % STREAM)
    a("s_mul_i32 s52, s50, 320")
    for q in range(5):
        a("""
        v_add_u32 v13, s52, v1
        v_add_u32 v13, %d, v13
        v_mul_u32_u24 v14, 6554, v13
        v_lshrrev_b32 v14, 16, v14
        v_mul_u32_u24 v15, 10, v14
        v_sub_u32 v15, v13, v15
        v_lshlrev_b32 v15, 4, v15
        v_and_b32 v13, 0xffffffe3, v14
        v_bfe_u32 v16, v14, 4, 1
        v_lshl_or_b32 v13, v16, 2, v13
        v_bfe_u32 v16, v14, 2, 2
        v_lshl_or_b32 v13, v16, 3, v13
        v_mul_lo_u32 v13, v13, s44
        v_add_u32 v%d, v13, v15
        """ % (q * 64, V_DMA + q))
    a("""
    v_add_u32 v13, s42, v7
    v_mul_u32_u24 v13, 1280, v13
    v_lshl_add_u32 v13, v6, 2, v13
    v_add_u32 v14, 0x5000, v13
    """)
    a("s_lshl_b32 s53, s44, 7")
    a("""
    s_cmp_eq_u32 s47, 0
    s_cbranch_scc1 K1_NODMA_PRO
    """)
    for st in range(2):
        if st == 0:
            a("s_mov_b32 s45, s43")
        else:
            a("s_add_u32 s45, s43, s53")
        for q in range(5):
            a("s_add_u32 m0, s46, 0x%x" % (st * SLOT + q * 1024))
            a("s_nop 0")
            a("buffer_load_dwordx4 v%d, s[24:27], s45 offen lds" % (V_DMA + q))
    a.label("K1_NODMA_PRO")
    for s in range(20):
        for t in range(2):
            a("buffer_load_dwordx4 %s, v%d, s[20:23], 0 offen offset:%d" % (vr(a_reg(t, s)), 13 + t, s * 64))
    a("""
    s_cmp_eq_u32 s41, 1
    s_cbranch_scc1 K1_Q
    s_cmp_eq_u32 s41, 2
    s_cbranch_scc1 K1_H
    """)
    a("s_waitcnt vmcnt(0)")
    emit_ln(a)
    a("s_nop 1")
    emit_pass(a, 5, False, 0, 5, lambda gs: gs * 128 * 3840, "kv")
    a("s_barrier")
    a("""
    s_cmp_eq_u32 s51, 1
    s_cbranch_scc1 K1_KV_V
    """)
    for c in range(5):
        for t in range(2):
            emit_phi4(a, acc_reg(c, t), 16 + c * 4 + t * 2, 40, 52)
    a("s_branch K1_KV_WR")
    a.label("K1_KV_V")
    for c in range(5):
        for t in range(2):
            s_ = acc_reg(c, t)
            a("v_cvt_pk_bf16_f32 v%d, v%d, v%d" % (16 + c * 4 + t * 2, s_, s_ + 1))
            a("v_cvt_pk_bf16_f32 v%d, v%d, v%d" % (16 + c * 4 + t * 2 + 1, s_ + 2, s_ + 3))
    a.label("K1_KV_WR")
    a("""
    s_mul_i32 s52, s51, 20480
    s_lshl_b32 s54, s50, 10
    s_add_u32 s52, s52, s54
    v_add_u32 v13, s52, v5
    v_mov_b32 v36, 0x3f803f80
    v_mov_b32 v37, 0x3f803f80
    v_mov_b32 v38, 0x3f803f80
    v_mov_b32 v39, 0x3f803f80
    """)
    for c in range(5):
        a("ds_write_b128 v13, %s offset:%d" % (vr(16 + c * 4), c * 4096))
    a("""
    s_cmp_eq_u32 s51, 0
    s_cbranch_scc1 K1_KV_NOONES
    ds_write_b128 v13, v[36:39] offset:20480
    """)
    a.label("K1_KV_NOONES")
    a("""
    s_waitcnt lgkmcnt(0)
    s_barrier
    """)
    pairs = [(0, 0), (0, 1), (1, 0), (1, 1), (1, 2), (2, 1), (2, 2), (2, 3), (3, 2), (3, 3), (3, 4), (4, 3), (4, 4)]
    jobs = pairs + [(i, 5) for i in range(5)]
    tabA = sum(((jobs[j][0] | (jobs[j][1] << 3)) << (6 * j)) for j in range(10))
    tabB = sum(((jobs[j][0] | (jobs[j][1] << 3)) << (6 * (j - 10))) for j in range(10, 18))
    a("s_mov_b32 s56, 0x%x" % (tabA & 0xffffffff))
    a("s_mov_b32 s57, 0x%x" % (tabA >> 32))
    a("s_mov_b32 s58, 0x%x" % (tabB & 0xffffffff))
    a("s_mov_b32 s59, 0x%x" % (tabB >> 32))
    a("""
    s_lshl_b32 s62, s48, 4
    s_add_u32 s62, s62, s49
    s_mul_i32 s62, s62, %d
    """ % SLAB_STRIDE)
    for i in range(3):
        lbl = "K1_JOB_SKIP_%d" % i
        a("s_add_u32 s60, s40, %d" % (8 * i))
        if i == 2:
            a("s_cmp_ge_u32 s60, 18")
            a("s_cbranch_scc1 %s" % lbl)
        a("""
        s_cmp_ge_u32 s60, 10
        s_cselect_b32 s64, s58, s56
        s_cselect_b32 s65, s59, s57
        s_cselect_b32 s61, 10, 0
        s_sub_u32 s60, s60, s61
        s_mul_i32 s60, s60, 6
        s_lshr_b64 s[64:65], s[64:65], s60
        s_and_b32 s66, s64, 7
        s_lshr_b32 s67, s64, 3
        s_and_b32 s67, s67, 7
        s_lshl_b32 s60, s66, 12
        s_lshl_b32 s61, s67, 12
        s_add_u32 s61, s61, 20480
        v_add_u32 v13, s60, v5
        v_add_u32 v14, s61, v5
        """)
        for rg in range(4):
            a("ds_read_b128 %s, v13 offset:%d" % (vr(16 + rg * 4), rg * 1024))
            a("ds_read_b128 %s, v14 offset:%d" % (vr(32 + rg * 4), rg * 1024))
        a("s_waitcnt lgkmcnt(0)")
        for rg in range(4):
            a("v_mfma_f32_16x16x32_bf16 v[48:51], %s, %s, %s" % (vr(16 + rg * 4), vr(32 + rg * 4), "0" if rg == 0 else "v[48:51]"))
        a("""
        s_lshl_b32 s60, s66, 4
        s_lshl_b32 s61, s67, 4
        v_add_u32 v52, s60, v6
        v_add_u32 v53, s61, v7
        """)
        for r in range(4):
            a("""
            v_add_u32 v54, %d, v52
            v_mul_u32_u24 v55, 205, v54
            v_lshrrev_b32 v55, 12, v55
            v_mul_u32_u24 v55, 20, v55
            v_sub_u32 v55, v53, v55
            v_mul_u32_u24 v%d, 20, v54
            v_add_u32 v%d, v%d, v55
            v_lshlrev_b32 v%d, 2, v%d
            v_cmp_gt_u32 vcc, 20, v55
            v_mov_b32 v55, 0x7ffffff0
            s_nop 0
            v_cndmask_b32 v%d, v55, v%d, vcc
            """ % (r, 56 + r, 56 + r, 56 + r, 56 + r, 56 + r, 56 + r, 56 + r))
        lz = "K1_JOB_NZ_%d" % i
        a("s_cmp_lg_u32 s67, 5")
        a("s_cbranch_scc1 %s" % lz)
        a("v_cmp_eq_u32 vcc, 0, v7")
        a("v_mov_b32 v55, 0x7ffffff0")
        for r in range(4):
            a("v_add_u32 v54, %d, v52" % (1600 + r))
            a("v_lshlrev_b32 v54, 2, v54")
            a("v_cndmask_b32 v%d, v55, v54, vcc" % (56 + r))
        a.label(lz)
        a("s_nop 4")
        for r in range(4):
            a("buffer_store_dword v%d, v%d, s[28:31], s62 offen sc1" % (48 + r, 56 + r))
        a.label(lbl)
    a("""
    s_waitcnt vmcnt(0)
    s_barrier
    s_cmp_lg_u32 s40, 0
    s_cbranch_scc1 K1_KV_WAITFLAG
    v_lshlrev_b32 v13, 2, v1
    s_lshl_b32 s60, s48, 5
    v_mov_b32 v14, 1
    v_mov_b32 v13, s60
    s_mov_b64 s[64:65], exec
    s_mov_b64 exec, 1
    buffer_atomic_add v14, v13, s[36:39], 0 offen sc0 sc1
    s_waitcnt vmcnt(0)
    v_mov_b32 v13, %d
    ds_write_b32 v13, v14
    s_waitcnt lgkmcnt(0)
    s_mov_b64 exec, s[64:65]
    """ % K1_FLAG)
    a.label("K1_KV_WAITFLAG")
    a("""
    s_barrier
    v_mov_b32 v13, %d
    ds_read_b32 v14, v13
    s_waitcnt lgkmcnt(0)
    v_readfirstlane_b32 s60, v14
    s_cmp_lg_u32 s60, 15
    s_cbranch_scc1 K1_END
    """ % K1_FLAG)
    a("buffer_inv sc1")
    srd(a, 24, 8, SZ_WO)
    a("""
    s_mul_i32 s45, s48, %d
    s_mul_i32 s60, s40, 160
    s_add_u32 s45, s45, s60
    s_mul_i32 s46, s40, 15360
    """ % (80 * 1280))
    for q in range(15):
        a("""
        v_add_u32 v13, %d, v1
        v_mul_u32_u24 v14, 6554, v13
        v_lshrrev_b32 v14, 16, v14
        v_mul_u32_u24 v15, 10, v14
        v_sub_u32 v15, v13, v15
        v_lshlrev_b32 v15, 4, v15
        v_and_b32 v13, 0xffffffe3, v14
        v_bfe_u32 v16, v14, 4, 1
        v_lshl_or_b32 v13, v16, 2, v13
        v_bfe_u32 v16, v14, 2, 2
        v_lshl_or_b32 v13, v16, 3, v13
        v_mul_u32_u24 v13, 1280, v13
        v_add_u32 v13, v13, v15
        s_add_u32 m0, s46, %d
        s_nop 0
        buffer_load_dwordx4 v13, s[24:27], s45 offen lds
        """ % (q * 64, q * 1024))
    a("""
    v_lshlrev_b32 v13, 4, v0
    v_add_u32 v13, %d, v13
    v_mov_b32 v16, 0
    v_mov_b32 v17, 0
    v_mov_b32 v18, 0
    v_mov_b32 v19, 0
    ds_write_b128 v13, v[16:19]
    ds_write_b128 v13, v[16:19] offset:8192
    """ % (K1_KVBD))
    a("""
    v_cmp_gt_u32 vcc, 16, v0
    s_and_saveexec_b64 s[64:65], vcc
    ds_write_b128 v13, v[16:19] offset:16384
    s_mov_b64 exec, s[64:65]
    """)
    a("""
    s_lshl_b32 s62, s48, 4
    s_mul_i32 s62, s62, %d
    v_lshlrev_b32 v13, 2, v0
    """ % SLAB_STRIDE)
    for i in range(4):
        for rb in range(16):
            a("s_add_u32 s60, s62, %d" % (rb * SLAB_STRIDE + i * 2048))
            a("buffer_load_dword v%d, v13, s[28:31], s60 offen sc1" % (96 + i * 16 + rb))
    a("s_waitcnt vmcnt(0) lgkmcnt(0)")
    a("s_barrier")
    srd(a, 32, 16, 1280, WS_Z)
    for i in range(4):
        b = 96 + i * 16
        for rb in range(1, 16):
            a("v_add_f32 v%d, v%d, v%d" % (b, b, b + rb))
        a("""
        v_add_u32 v14, %d, v0
        v_mul_u32_u24 v15, 52429, v14
        v_lshrrev_b32 v15, 20, v15
        v_mul_u32_u24 v16, 20, v15
        v_sub_u32 v16, v14, v16
        v_mul_u32_u24 v17, 205, v15
        v_lshrrev_b32 v17, 12, v17
        v_mul_u32_u24 v17, 20, v17
        v_add_u32 v16, v16, v17
        v_mul_u32_u24 v17, %d, v15
        v_lshl_add_u32 v17, v16, 1, v17
        v_add_u32 v17, %d, v17
        v_cvt_pk_bf16_f32 v18, v%d, v%d
        """ % (512 * i, KVBD_PITCH, K1_KVBD, b, b))
        if i < 3:
            a("ds_write_b16 v17, v18")
        else:
            a("""
            v_cmp_gt_u32 vcc, 1600, v14
            s_and_saveexec_b64 s[64:65], vcc
            ds_write_b16 v17, v18
            s_mov_b64 exec, s[64:65]
            v_subrev_u32 v15, 1600, v14
            s_mul_i32 s60, s48, 160
            v_lshlrev_b32 v15, 1, v15
            v_cmp_gt_u32 vcc, 160, v15
            v_mov_b32 v16, 0x7ffffff0
            s_nop 0
            v_cndmask_b32 v15, v16, v15, vcc
            buffer_store_short v18, v15, s[32:35], s60 offen
            """)
    a("s_waitcnt lgkmcnt(0)")
    a("s_barrier")
    srd(a, 32, 16, SZ_WO, WS_M)
    a("""
    v_lshrrev_b32 v13, 2, v1
    v_mul_u32_u24 v2, 160, v13
    v_and_b32 v13, 3, v1
    v_lshl_add_u32 v2, v13, 3, v2
    v_add_u32 v2, s46, v2
    v_mul_u32_u24 v3, %d, v7
    v_lshl_add_u32 v3, v6, 2, v3
    v_add_u32 v3, %d, v3
    """ % (KVBD_PITCH, K1_KVBD))
    for aa in range(5):
        for s in range(3):
            a("ds_read_b128 %s, v3 offset:%d" % (vr(96 + (aa * 3 + s) * 4), aa * 16 * KVBD_PITCH + s * 64))
    for c in range(5):
        for s in range(3):
            for hh in range(2):
                a("ds_read_b64_tr_b16 %s, v2 offset:%d" % (vr(160 + (c * 3 + s) * 4 + hh * 2, 2), s * 5120 + hh * 2560 + c * 32))
        a("s_waitcnt lgkmcnt(0)")
    a("""
    s_mul_i32 s60, s48, %d
    s_mul_i32 s61, s40, 160
    s_add_u32 s60, s60, s61
    v_mul_u32_u24 v4, 1280, v7
    v_lshl_add_u32 v4, v6, 1, v4
    """ % (80 * 1280))
    for aa in range(5):
        for c in range(5):
            d = 16 + c * 4
            for s in range(3):
                a("v_mfma_f32_16x16x32_bf16 %s, %s, %s, %s" % (vr(d), vr(160 + (c * 3 + s) * 4), vr(96 + (aa * 3 + s) * 4), "0" if s == 0 else vr(d)))
        a("s_nop 7")
        a("s_nop 1")
        for c in range(5):
            d = 16 + c * 4
            a("v_cvt_pk_bf16_f32 v%d, v%d, v%d" % (40 + c * 2, d, d + 1))
            a("v_cvt_pk_bf16_f32 v%d, v%d, v%d" % (41 + c * 2, d + 2, d + 3))
        a("s_add_u32 s61, s60, %d" % (aa * 16 * 1280))
        for c in range(5):
            a("buffer_store_dwordx2 %s, v4, s[32:35], s61 offen offset:%d" % (vr(40 + c * 2, 2), c * 32))
        a("s_nop 1")
    a("s_branch K1_END")

    a.label("K1_Q")
    a("""
    v_add_u32 v3, s42, v7
    v_mul_u32_u24 v3, 1280, v3
    v_lshl_add_u32 v3, v6, 1, v3
    v_add_u32 v4, 0x5000, v3
    s_waitcnt vmcnt(0)
    """)
    emit_ln(a)
    a("s_nop 1")
    for p in range(2):
        emit_pass(a, 5, True, p * 5, 10, lambda gs: (gs % 5) * 128 * 3840 + (gs // 5) * 160, "q")
        for c in range(5):
            for t in range(2):
                emit_phi4(a, acc_reg(c, t), 16 + (c * 2 + t) * 2, 40, 52)
        a("s_add_u32 s45, s43, %d" % (p * 160))
        for c in range(5):
            for t in range(2):
                a("buffer_store_dwordx2 %s, v%d, s[28:31], s45 offen offset:%d" % (vr(16 + (c * 2 + t) * 2, 2), 3 + t, c * 32))
        a("s_nop 1")
    a("s_branch K1_END")

    a.label("K1_H")
    spare = [32, 34, 52, 54, 88, 90, 92, 94]
    a("""
    v_add_u32 v3, s42, v7
    v_mul_u32_u24 v3, 3072, v3
    v_lshl_add_u32 v3, v6, 1, v3
    v_add_u32 v4, 0xc000, v3
    v_lshlrev_b32 v15, 1, v6
    s_mov_b32 s60, 0xc0135761
    s_mov_b32 s61, 0xbdd2d3e8
    s_waitcnt vmcnt(0)
    """)
    emit_ln(a)
    emit_ln(a)
    for p in range(2):
        for c in range(4):
            a("buffer_load_dwordx2 %s, v15, s[32:35], s43 offen offset:%d" % (vr(spare[p * 4 + c], 2), p * 128 + c * 32))
    a("s_nop 1")
    for p in range(2):
        emit_pass(a, 4, True, p * 5, 10, lambda gs: (gs % 5) * 128 * 3072 + (gs // 5) * 128, "h")
        if p == 0:
            a("s_waitcnt vmcnt(0)")
        for c in range(4):
            for t in range(2):
                emit_gelu4(a, acc_reg(c, t), spare[p * 4 + c], 16 + (c * 2 + t) * 2, 36)
        a("s_add_u32 s45, s43, %d" % (p * 128))
        for c in range(4):
            for t in range(2):
                a("buffer_store_dwordx2 %s, v%d, s[28:31], s45 offen offset:%d" % (vr(16 + (c * 2 + t) * 2, 2), 3 + t, c * 32))
        a("s_nop 1")
    a.label("K1_END")
    a("s_endpgm")


K2_RING = 5 * 5120
K2_WREG = K2_RING + 4096
K2_LDS = 4 * K2_WREG
K2_VPQ = 176
K2_VH = 96
K2_VB = 56
K2_VZ = 36


def gen_k2(a):
    a.raw(".globl k2_kernel")
    a.raw(".p2align 8")
    a.raw(".type k2_kernel,@function")
    a.label("k2_kernel")
    a("""
    s_cmp_ge_u32 s2, 256
    s_cbranch_scc1 K2_END
    s_load_dwordx2 s[4:5], s[0:1], 0
    s_load_dwordx2 s[6:7], s[0:1], 48
    s_load_dwordx2 s[8:9], s[0:1], 56
    s_load_dwordx2 s[10:11], s[0:1], 64
    s_load_dwordx2 s[16:17], s[0:1], 80
    v_and_b32 v1, 63, v0
    v_lshrrev_b32 v13, 6, v0
    s_nop 0
    v_readfirstlane_b32 s40, v13
    v_lshlrev_b32 v5, 4, v1
    v_lshrrev_b32 v6, 4, v1
    v_lshlrev_b32 v6, 2, v6
    v_and_b32 v7, 15, v1
    s_and_b32 s41, s2, 7
    s_lshl_b32 s41, s41, 2
    s_lshr_b32 s42, s2, 3
    s_and_b32 s42, s42, 3
    s_add_u32 s41, s41, s42
    s_lshl_b32 s41, s41, 6
    s_lshr_b32 s42, s2, 5
    s_mul_i32 s42, s42, 160
    s_waitcnt lgkmcnt(0)
    """)
    srd(a, 20, 16, 2048 * 1536 * 2, WS_H)
    srd(a, 24, 6, SZ_W2)
    srd(a, 28, 16, SZ_WO, WS_M)
    srd(a, 32, 16, 2048 * 640 * 2, WS_PQ)
    srd(a, 36, 16, 1280, WS_Z)
    srd(a, 48, 4, SZ_X)
    srd(a, 52, 8, SZ_B2)
    srd(a, 56, 10, SZ_OUT)
    a("s_mul_i32 s46, s40, %d" % K2_WREG)
    a("""
    v_lshrrev_b32 v13, 2, v1
    v_mul_u32_u24 v2, 160, v13
    v_and_b32 v13, 3, v1
    v_lshl_add_u32 v2, v13, 3, v2
    v_add_u32 v2, s46, v2
    """)
    for q in range(5):
        a("""
        v_add_u32 v13, %d, v1
        v_mul_u32_u24 v14, 6554, v13
        v_lshrrev_b32 v14, 16, v14
        v_mul_u32_u24 v15, 10, v14
        v_sub_u32 v15, v13, v15
        v_lshlrev_b32 v15, 4, v15
        v_and_b32 v13, 0xffffffe3, v14
        v_bfe_u32 v16, v14, 4, 1
        v_lshl_or_b32 v13, v16, 2, v13
        v_bfe_u32 v16, v14, 2, 2
        v_lshl_or_b32 v13, v16, 3, v13
        v_mul_u32_u24 v13, 1280, v13
        v_add_u32 v%d, v13, v15
        """ % (q * 64, 8 + q))
    a("""
    v_add_u32 v13, s41, v7
    v_mul_u32_u24 v16, 3072, v13
    v_lshl_add_u32 v16, v6, 2, v16
    v_add_u32 v17, 0xc000, v16
    v_add_u32 v18, 0x18000, v16
    v_add_u32 v19, 0x24000, v16
    v_mul_u32_u24 v20, 1280, v13
    v_lshl_add_u32 v20, v6, 2, v20
    v_add_u32 v21, 0x5000, v20
    v_add_u32 v22, 0xa000, v20
    v_add_u32 v23, 0xf000, v20
    v_lshlrev_b32 v24, 2, v6
    s_mul_i32 s43, s40, 768
    s_mul_i32 s44, s40, 320
    s_mul_i32 s45, s40, %d
    s_add_u32 s45, s45, s42
    s_mul_i32 s47, s40, %d
    s_add_u32 s47, s47, s42
    """ % (384 * 1280, 160 * 1280))
    q = []

    def issue_step(n):
        slot = n % 5
        if n < 12:
            for m in range(4):
                a("buffer_load_dwordx4 %s, v%d, s[20:23], s43 offen offset:%d" % (vr(K2_VH + (slot * 4 + m) * 4), 16 + m, n * 64))
                q.append(("A", n))
            a("s_add_u32 s60, s45, %d" % (n * 32 * 1280))
            sr = "s[24:27]"
        else:
            a("s_add_u32 s60, s47, %d" % ((n - 12) * 32 * 1280))
            sr = "s[28:31]"
        for qq in range(5):
            a("s_add_u32 m0, s46, %d" % (slot * 5120 + qq * 1024))
            a("s_nop 0")
            a("buffer_load_dwordx4 v%d, %s, s60 offen lds" % (8 + qq, sr))
            q.append(("B", n))

    def wait_for(tag):
        last = max(i for i, t in enumerate(q) if t == tag)
        n = len(q) - 1 - last
        a("s_waitcnt vmcnt(%d)" % min(n, 63))

    def emit_tr2(buf, n):
        slot = n % 5
        for c in range(5):
            for hh in range(2):
                a("ds_read_b64_tr_b16 %s, v2 offset:%d" % (vr(K2_VB + (buf * 5 + c) * 4 + hh * 2, 2), slot * 5120 + hh * 2560 + c * 32))

    for n in range(4):
        issue_step(n)
    for s in range(5):
        for m in range(4):
            a("buffer_load_dwordx4 %s, v%d, s[32:35], s44 offen offset:%d" % (vr(K2_VPQ + (s * 4 + m) * 4), 20 + m, s * 64))
            q.append(("PQ", 0))
    for s in range(5):
        a("buffer_load_dwordx4 %s, v24, s[36:39], s44 offen offset:%d" % (vr(K2_VZ + s * 4), s * 64))
        q.append(("Z", 0))
    wait_for(("B", 0))
    emit_tr2(0, 0)
    for n in range(17):
        buf = n & 1
        if n == 12:
            wait_for(("Z", 0))
            a("v_lshlrev_b32 v13, 1, v6")
            for s in range(5):
                for half in range(2):
                    hreg = 26 + s * 2 + half
                    a("v_add_u32 v14, %d, v13" % (32 * s + 4 * half))
                    a("v_mul_u32_u24 v14, 205, v14")
                    a("v_lshrrev_b32 v%d, 12, v14" % hreg)
            for s in range(5):
                for half in range(2):
                    hreg = 26 + s * 2 + half
                    a("v_cmp_eq_u32 vcc, v%d, v7" % hreg)
                    a("s_nop 1")
                    a("v_cndmask_b32 v%d, 0, v%d, vcc" % (K2_VZ + s * 4 + half * 2, K2_VZ + s * 4 + half * 2))
                    a("v_cndmask_b32 v%d, 0, v%d, vcc" % (K2_VZ + s * 4 + half * 2 + 1, K2_VZ + s * 4 + half * 2 + 1))
            a("s_nop 1")
            for m in range(4):
                for s in range(5):
                    a("v_mfma_f32_16x16x32_bf16 %s, %s, %s, %s" % (vr(96 + m * 4), vr(K2_VZ + s * 4), vr(K2_VPQ + (s * 4 + m) * 4), "0" if s == 0 else vr(96 + m * 4)))
            a("s_nop 7")
            a("s_nop 1")
            for m in range(4):
                for r in range(4):
                    x = 96 + m * 4 + r
                    bf16_round1(a, x, 13)
                    a("v_add_f32 v%d, 0x358637bd, v%d" % (x, x))
                    bf16_round1(a, x, 13)
                    a("v_rcp_f32 v%d, v%d" % (x, x))
            a("""
            v_lshlrev_b32 v13, 6, v7
            v_lshl_add_u32 v13, v6, 2, v13
            v_add_u32 v13, s46, v13
            """)
            for m in range(4):
                a("ds_write_b128 v13, %s offset:%d" % (vr(96 + m * 4), K2_RING + m * 1024))
            a("""
            v_lshlrev_b32 v13, 6, v7
            v_add_u32 v13, s46, v13
            """)
            for i in range(10):
                a("v_lshl_add_u32 v%d, v%d, 2, v13" % (26 + i, 26 + i))
            a("s_waitcnt lgkmcnt(0)")
            for s in range(5):
                for m in range(4):
                    for half in range(2):
                        a("ds_read_b32 v%d, v%d offset:%d" % (112 + (s * 4 + m) * 2 + half, 26 + s * 2 + half, K2_RING + m * 1024))
                a("s_waitcnt lgkmcnt(0)")
            for s in range(5):
                for m in range(4):
                    f = K2_VPQ + (s * 4 + m) * 4
                    for d in range(4):
                        sc = 112 + (s * 4 + m) * 2 + (d >> 1)
                        p = 160 + d * 2
                        a("v_lshlrev_b32 v%d, 16, v%d" % (p, f + d))
                        a("v_and_b32 v%d, 0xffff0000, v%d" % (p + 1, f + d))
                        a("v_mul_f32 v%d, v%d, v%d" % (p, p, sc))
                        a("v_mul_f32 v%d, v%d, v%d" % (p + 1, p + 1, sc))
                    for d in range(4):
                        p = 160 + d * 2
                        a("v_cvt_pk_bf16_f32 v%d, v%d, v%d" % (f + d, p, p + 1))
            a("s_nop 1")
        if n + 1 < 17:
            wait_for(("B", n + 1))
            emit_tr2(buf ^ 1, n + 1)
            a("s_waitcnt lgkmcnt(10)")
        else:
            a("s_waitcnt lgkmcnt(0)")
        if n == 13:
            a("""
            s_lshl_b32 s60, s40, 4
            s_add_u32 s60, s60, s41
            v_add_u32 v13, s60, v7
            v_mul_u32_u24 v25, 1280, v13
            v_lshl_add_u32 v25, v6, 1, v25
            v_lshlrev_b32 v13, 1, v6
            """)
        first = True
        for m in range(4):
            for c in range(5):
                d = ar((m * 5 + c) * 4)
                if n < 12:
                    A_ = vr(K2_VH + ((n % 5) * 4 + m) * 4)
                else:
                    A_ = vr(K2_VPQ + ((n - 12) * 4 + m) * 4)
                B_ = vr(K2_VB + (buf * 5 + c) * 4)
                a("v_mfma_f32_16x16x32_bf16 %s, %s, %s, %s" % (d, B_, A_, "0" if n == 0 else d))
            if m == 0 and n + 4 < 17:
                issue_step(n + 4)
        if n == 13:
            for c in range(5):
                a("buffer_load_dwordx2 %s, v25, s[48:51], s42 offen offset:%d" % (vr(96 + c * 2, 2), c * 32))
                q.append(("X", 0))
            for c in range(5):
                a("buffer_load_dwordx2 %s, v13, s[52:55], s42 offen offset:%d" % (vr(106 + c * 2, 2), c * 32))
                q.append(("X", 0))
    a("s_nop 7")
    a("s_nop 1")
    a("v_add_u32 v13, s46, v5")
    for t in range(20):
        a("ds_write_b128 v13, %s offset:%d" % (ar(t * 4), t * 1024))
    a("s_waitcnt vmcnt(0) lgkmcnt(0)")
    a("s_barrier")
    a("""
    s_mul_i32 s60, s40, 5120
    v_add_u32 v13, s60, v5
    v_add_u32 v14, %d, v13
    """ % (2 * K2_WREG))
    for w in range(4):
        for c in range(5):
            a("ds_read_b128 %s, v%d offset:%d" % (vr(128 + (w * 5 + c) * 4), 13 + (w >> 1), (w & 1) * K2_WREG + c * 1024))
        a("s_waitcnt lgkmcnt(0)")
    for c in range(5):
        b0 = 128 + c * 4
        for r in range(4):
            a("v_add_f32 v%d, v%d, v%d" % (b0 + r, b0 + r, b0 + 20 + r))
            a("v_add_f32 v%d, v%d, v%d" % (b0 + 40 + r, b0 + 40 + r, b0 + 60 + r))
        for r in range(4):
            a("v_add_f32 v%d, v%d, v%d" % (b0 + r, b0 + r, b0 + 40 + r))
        for src in (96 + c * 2, 106 + c * 2):
            a("v_lshlrev_b32 v16, 16, v%d" % src)
            a("v_and_b32 v17, 0xffff0000, v%d" % src)
            a("v_lshlrev_b32 v18, 16, v%d" % (src + 1))
            a("v_and_b32 v19, 0xffff0000, v%d" % (src + 1))
            for r in range(4):
                a("v_add_f32 v%d, v%d, v%d" % (b0 + r, b0 + r, 16 + r))
        a("v_cvt_pk_bf16_f32 v%d, v%d, v%d" % (116 + c * 2, b0, b0 + 1))
        a("v_cvt_pk_bf16_f32 v%d, v%d, v%d" % (117 + c * 2, b0 + 2, b0 + 3))
    for c in range(5):
        a("buffer_store_dwordx2 %s, v25, s[56:59], s42 offen offset:%d" % (vr(116 + c * 2, 2), c * 32))
    a.label("K2_END")
    a("s_endpgm")


def kd(name, vgpr, accum, sgpr=102):
    return """
.amdhsa_kernel %s
  .amdhsa_next_free_vgpr %d
  .amdhsa_next_free_sgpr %d
  .amdhsa_accum_offset %d
  .amdhsa_group_segment_fixed_size 0
  .amdhsa_kernarg_size 88
  .amdhsa_user_sgpr_count 2
  .amdhsa_user_sgpr_kernarg_segment_ptr 1
  .amdhsa_system_sgpr_workgroup_id_x 1
.end_amdhsa_kernel
""" % (name, vgpr, sgpr, accum)


def main():
    a = Asm()
    a.raw("; @launch kernel=k1_kernel grid=(256,1,1) block=(512,1,1) lds=%d" % K1_LDS)
    a.raw("; @launch kernel=k2_kernel grid=(256,1,1) block=(256,1,1) lds=%d" % K2_LDS)
    a.raw('.amdgcn_target "amdgcn-amd-amdhsa--gfx950"')
    a.raw(".text")
    gen_k1(a)
    gen_k2(a)
    a.raw('.section .rodata,"a"')
    a.raw(".p2align 6")
    a.raw(kd("k1_kernel", 256, 256))
    a.raw(".p2align 6")
    a.raw(kd("k2_kernel", 336, 256))
    out = sys.argv[1] if len(sys.argv) > 1 else "cdna_kernels/%s.s" % NAME
    open(out, "w").write(a.text())


if __name__ == "__main__":
    main()
```

```python
import sys

NAME = "parallel_sum__linear_attn_block__mixer_channel_mlp__prompt"

WS_PQ = 0
WS_H = 0x280000
WS_PB = 0x880000
SZ_PB = 8 * 68 * 5120
WS_Z = 0xB30000
WS_SLAB = 0xB40000
SLAB_STRIDE = 7168
WS_PROF = 0x1000000

SZ_X = 2048 * 640 * 2
SZ_WQKV = 640 * 1920 * 2
SZ_WO = 640 * 640 * 2
SZ_W1 = 640 * 1536 * 2
SZ_B1 = 1536 * 2
SZ_W2 = 1536 * 640 * 2
SZ_B2 = 640 * 2
SZ_OUT = 2048 * 640 * 2
OOB = 0x7ffffff0
PROF = False


class Asm:
    def __init__(self):
        self.lines = []
        self.prof_base = 0

    def __call__(self, s):
        for ln in s.strip("\n").split("\n"):
            ln = ln.strip()
            if ln:
                self.lines.append("    " + ln)

    def label(self, l):
        self.lines.append(l + ":")

    def raw(self, s):
        self.lines.append(s)

    def text(self):
        return "\n".join(self.lines) + "\n"


class Q:
    def __init__(self, a, name, cap):
        self.a, self.name, self.cap, self.q = a, name, cap, []

    def add(self, tag):
        self.q.append(tag)

    def wait(self, tag):
        idx = [i for i, t in enumerate(self.q) if t == tag]
        if not idx:
            return
        n = len(self.q) - 1 - idx[-1]
        self.a("s_waitcnt %s(%d)" % (self.name, min(n, self.cap)))
        self.q = self.q[idx[-1] + 1:]

    def drain(self):
        self.a("s_waitcnt %s(0)" % self.name)
        self.q = []


class Fill:
    def __init__(self, a, vm, lg):
        self.a, self.vm, self.lg, self.F = a, vm, lg, []

    def __call__(self, txt):
        for ln in txt.strip("\n").split("\n"):
            ln = ln.strip()
            if ln:
                self.F.append(ln)

    def group(self, lst):
        self.F.append(list(lst))

    def lds(self, txt, tag):
        self.F.append(("lds", txt, tag))

    def vmem(self, txt, tag):
        self.F.append(("vmem", txt, tag))

    def lgwait(self, tag):
        self.F.append(("lgwait", tag))

    def vmwait(self, tag):
        self.F.append(("vmwait", tag))

    def call(self, fn):
        self.F.append(("call", fn))

    def pop(self, k):
        while k > 0 and self.F:
            it = self.F.pop(0)
            if isinstance(it, str):
                self.a(it)
            elif isinstance(it, list):
                for x in it:
                    self.a(x)
            elif it[0] == "vmwait":
                self.vm.wait(it[1])
            elif it[0] == "lgwait":
                self.lg.wait(it[1])
            elif it[0] == "lds":
                self.a(it[1])
                self.lg.add(it[2])
            elif it[0] == "vmem":
                self.a(it[1])
                self.vm.add(it[2])
            elif it[0] == "call":
                it[1]()
            k -= 1

    def flush(self):
        self.pop(1 << 30)


def vr(b, n=4):
    return "v[%d:%d]" % (b, b + n - 1)


def ar(b, n=4):
    return "a[%d:%d]" % (b, b + n - 1)


def srd(a, d, base, size, add=0):
    if add:
        a("s_add_u32 s%d, s%d, 0x%x" % (d, base, add))
        a("s_addc_u32 s%d, s%d, 0" % (d + 1, base + 1))
    else:
        a("s_mov_b32 s%d, s%d" % (d, base))
        a("s_mov_b32 s%d, s%d" % (d + 1, base + 1))
    a("s_mov_b32 s%d, 0x%x" % (d + 2, size))
    a("s_mov_b32 s%d, 0x00020000" % (d + 3))


def stamp_init(a, wsbase=16):
    if not PROF:
        return
    srd(a, 72, wsbase, 0x100000, WS_PROF + a.prof_base)
    a("s_lshl_b32 s76, s2, 3")
    a("s_add_u32 s76, s76, s40")
    a("s_lshl_b32 s76, s76, 7")


def stamp(a, i, vt=14):
    if not PROF:
        return
    a("s_memrealtime s[78:79]")
    a("s_waitcnt lgkmcnt(0)")
    a("v_mov_b32 v%d, s78" % vt)
    a("s_mov_b64 s[80:81], exec")
    a("s_mov_b64 exec, 1")
    a("buffer_store_dword v%d, off, s[72:75], s76 offset:%d" % (vt, i * 4))
    a("s_mov_b64 exec, s[80:81]")
    a("s_nop 1")


def rnd(o, x, t):
    o("v_cvt_pk_bf16_f32 v%d, v%d, v%d" % (t, x, x))
    o("v_lshlrev_b32 v%d, 16, v%d" % (x, t))


def perm_voff(a, dst, p_reg, ld, t0, t1, t2):
    a("""
    v_mul_u32_u24 v%d, 6554, v%d
    v_lshrrev_b32 v%d, 16, v%d
    v_mul_u32_u24 v%d, 10, v%d
    v_sub_u32 v%d, v%d, v%d
    v_lshlrev_b32 v%d, 4, v%d
    v_and_b32 v%d, 0xffffffe3, v%d
    v_bfe_u32 v%d, v%d, 4, 1
    v_lshl_or_b32 v%d, v%d, 2, v%d
    v_bfe_u32 v%d, v%d, 2, 2
    v_lshl_or_b32 v%d, v%d, 3, v%d
    """ % (t0, p_reg, t0, t0, t1, t0, t1, p_reg, t1, t1, t1, dst, t0, t2, t0, dst, t2, dst, t2, t0, dst, t2, dst))
    if isinstance(ld, int):
        a("v_mul_u32_u24 v%d, %d, v%d" % (dst, ld, dst))
    else:
        a("v_mul_lo_u32 v%d, v%d, %s" % (dst, dst, ld))
    a("v_add_u32 v%d, v%d, v%d" % (dst, dst, t1))


VA = 96
VACC = 56
VB = 36
V_ST = 20
V_ONES = 24
V_CSF = 28
V_CSA = 32
BSLOT = 10240
BRING = 5 * BSLOT
AREG = 12288
QH_AR = BRING
QH_TAB = QH_AR + 8 * AREG
KV_AR = 2 * BRING
KV_TAB = KV_AR + 4 * AREG
K1_LDS = 163840
STG_P = 176
K1_FLAG = 122880
K1_KVBD = K1_FLAG + 256
KVBD_PITCH = 208


def a_reg(t, s):
    return VA + (t * 20 + s) * 4


def acc_reg(c, t):
    return VACC + (c * 2 + t) * 4


def b_reg(c):
    return VB + c * 4


def emit_stats_final(f, kind):
    vals = [V_ST, V_ST + 1, V_ST + 2, V_ST + 3]
    T = [12, 13, 14, 15]
    f.group(["s_nop 3"] + ["v_mov_b32 v%d, v%d" % (t, v) for v, t in zip(vals, T)] + ["s_nop 1"] +
            ["v_permlane16_swap_b32 v%d, v%d" % (v, t) for v, t in zip(vals, T)] + ["s_nop 1"])
    for v, t in zip(vals, T):
        f("v_add_f32 v%d, v%d, v%d" % (v, v, t))
    f.group(["v_mov_b32 v%d, v%d" % (t, v) for v, t in zip(vals, T)] + ["s_nop 1"] +
            ["v_permlane32_swap_b32 v%d, v%d" % (v, t) for v, t in zip(vals, T)] + ["s_nop 1"])
    for v, t in zip(vals, T):
        f("v_add_f32 v%d, v%d, v%d" % (v, v, t))
    for t in range(2):
        s, q = V_ST + 2 * t, V_ST + 2 * t + 1
        f("v_mul_f32 v%d, 0x3acccccd, v%d" % (s, s))
        f("v_mul_f32 v%d, 0x3acccccd, v%d" % (q, q))
        f("v_fma_f32 v%d, -v%d, v%d, v%d" % (q, s, s, q))
        f("v_max_f32 v%d, 0, v%d" % (q, q))
        f("v_mov_b32 v12, v%d" % s)
        rnd(f, 12, 15)
        f("v_mov_b32 v13, v%d" % q)
        rnd(f, 13, 15)
        f("v_add_f32 v13, 0x3727c5ac, v13")
        rnd(f, 13, 15)
        f.group(["v_sqrt_f32 v13, v13", "s_nop 0"])
        rnd(f, 13, 15)
        f.group(["v_rcp_f32 v14, v13", "s_nop 0"])
        if kind != "H":
            f("v_mul_f32 v%d, v12, v14" % q)
            f("v_mov_b32 v%d, v14" % s)
        else:
            f("v_sub_f32 v16, v%d, v12" % s)
            f("v_mul_f32 v16, v16, v14")
            rnd(f, 16, 15)
            f("v_mul_f32 v17, v%d, v14" % q)
            f("v_mul_f32 v17, v17, v14")
            rnd(f, 17, 15)
            f("v_add_f32 v17, 0x3727c5ac, v17")
            rnd(f, 17, 15)
            f.group(["v_sqrt_f32 v17, v17", "s_nop 0"])
            rnd(f, 17, 15)
            f.group(["v_rcp_f32 v17, v17", "s_nop 0"])
            f("v_fma_f32 v16, v12, v14, v16")
            f("v_mul_f32 v%d, v16, v17" % q)
            f("v_mul_f32 v%d, v14, v17" % s)


def emit_post(f, kind, nc, T, sreg):
    nchunk = 32 * nc // 64
    D = T[0:4]
    t = T[4:12]
    e = T[12:20]
    for j in range(nchunk):
        ad, go = t[0], e[0]
        f("v_add_u32 v%d, %d, v1" % (t[1], j * 64))
        if nc == 10:
            f("v_mul_u32_u24 v%d, 6554, v%d" % (t[2], t[1]))
            f("v_lshrrev_b32 v%d, 16, v%d" % (t[2], t[2]))
            f("v_mul_u32_u24 v%d, 10, v%d" % (t[3], t[2]))
            f("v_sub_u32 v%d, v%d, v%d" % (t[1], t[1], t[3]))
        else:
            f("v_lshrrev_b32 v%d, 3, v%d" % (t[2], t[1]))
            f("v_and_b32 v%d, 7, v%d" % (t[1], t[1]))
        f("v_lshlrev_b32 v%d, 4, v%d" % (t[1], t[1]))
        f("v_mul_u32_u24 v%d, %d, v%d" % (ad, STG_P, t[2]))
        f("v_add3_u32 v%d, v%d, v%d, s54" % (ad, ad, t[1]))
        f.lds("ds_read_b128 %s, v%d" % (vr(D[0]), ad), "P")
        f("v_add_u32 v%d, s42, v%d" % (t[2], t[2]))
        f("v_mul_lo_u32 v%d, v%d, s55" % (t[2], t[2]))
        f("v_add_u32 v11, v%d, v%d" % (t[2], t[1]))
        f.lgwait("P")
        for d in range(4):
            f("v_lshlrev_b32 v%d, 16, v%d" % (t[2 * d], D[d]))
            f("v_and_b32 v%d, 0xffff0000, v%d" % (t[2 * d + 1], D[d]))
        if kind == "H":
            for i in range(8):
                f("v_mul_f32 v%d, v%d, v%d" % (e[i], t[i], t[i]))
                f("v_fma_f32 v%d, v%d, s61, v10" % (e[i], e[i]))
                f("v_mul_f32 v%d, v%d, v%d" % (e[i], e[i], t[i]))
            for i in range(8):
                f("v_exp_f32 v%d, v%d" % (e[i], e[i]))
            for i in range(8):
                f("v_add_f32 v%d, 1.0, v%d" % (e[i], e[i]))
            for i in range(8):
                f("v_rcp_f32 v%d, v%d" % (e[i], e[i]))
            for i in range(8):
                f("v_mul_f32 v%d, v%d, v%d" % (t[i], t[i], e[i]))
        else:
            for i in range(8):
                f("v_mul_f32 v%d, 0x3fb8aa3b, v%d" % (e[i], t[i]))
            for i in range(8):
                f("v_exp_f32 v%d, v%d" % (e[i], e[i]))
            for i in range(8):
                f.group(["v_cmp_lt_f32 vcc, 0, v%d" % t[i], "v_add_f32 v%d, 1.0, v%d" % (t[i], t[i]), "s_nop 0",
                         "v_cndmask_b32 v%d, v%d, v%d, vcc" % (t[i], e[i], t[i])])
            for i in range(8):
                f("v_add_f32 v%d, 0x358637bd, v%d" % (t[i], t[i]))
        for d in range(4):
            f("v_cvt_pk_bf16_f32 v%d, v%d, v%d" % (D[d], t[2 * d], t[2 * d + 1]))
        f.vmem("buffer_store_dwordx4 %s, v11, s[28:31], %s offen" % (vr(D[0]), sreg), "ST")
        f("s_nop 1")


def gen_main(a, kind):
    kv = kind == "KV"
    passes = [5] if kv else [5, 4]
    nst = 10 * len(passes)
    nA = 2 if kv else 4
    nB = 3 if kv else 2
    ld = 3072 if kind == "H" else 3840
    vm = Q(a, "vmcnt", 63)
    lg = Q(a, "lgkmcnt", 15)
    f = Fill(a, vm, lg)

    def dma_b(gs):
        out = []
        so = (gs % 10) * 64 * ld + (gs // 10) * 160
        for q in range(nB):
            def fn(q=q):
                part = (q == nB - 1)
                a("s_add_u32 m0, s46, %d" % ((gs % 5) * BSLOT + q * 1024))
                a("s_add_u32 s45, s43, %d" % so)
                if part:
                    a("s_mov_b32 exec_hi, 0" if kv else "s_mov_b64 exec, 0xffff")
                a("buffer_load_dwordx4 v%d, s[24:27], s45 offen lds" % (8 + q))
                if part:
                    a("s_mov_b64 exec, -1")
                vm.add(("S", gs))
            out.append(fn)
        return out

    def dma_a(gs):
        out = []
        for q in range(nA):
            def fn(q=q):
                a("s_add_u32 m0, s47, %d" % ((gs % 3) * 4096 + q * 1024))
                a("s_mov_b32 s45, %d" % (gs * 128 + q * 8 * 1280))
                a("buffer_load_dwordx4 v11, s[20:23], s45 offen lds")
                vm.add(("S", gs))
            out.append(fn)
        return out

    def read_b(s_glob, c):
        gs, ks = s_glob // 2, s_glob & 1
        for hh in range(2):
            a("ds_read_b64_tr_b16 %s, v2 offset:%d" % (vr(b_reg(c) + hh * 2, 2), (gs % 5) * BSLOT + ks * 5120 + hh * 2560 + c * 32))
            lg.add(("B", s_glob, c))

    def read_cs(s_glob):
        gs, ks = s_glob // 2, s_glob & 1
        for hh in range(2):
            a("ds_read_b64_tr_b16 %s, v3 offset:%d" % (vr(V_CSF + hh * 2, 2), (gs % 5) * BSLOT + ks * 5120 + hh * 2560))
            lg.add(("C", s_glob))

    def read_a(gs):
        for ks in range(2):
            for t in range(2):
                a("ds_read_b128 %s, v%d offset:%d" % (vr(a_reg(t, gs * 2 + ks)), 4 + ks, (gs % 3) * 4096 + t * 2048))
                lg.add(("A", gs))
        f.lgwait(("A", gs))
        for ks in range(2):
            for t in range(2):
                for i in range(4):
                    x = a_reg(t, gs * 2 + ks) + i
                    f("v_dot2_f32_bf16 v%d, v%d, v%d, v%d" % (V_ST + 2 * t, x, V_ONES, V_ST + 2 * t))
                    f("v_dot2_f32_bf16 v%d, v%d, v%d, v%d" % (V_ST + 2 * t + 1, x, x, V_ST + 2 * t + 1))
        if gs == 9:
            emit_stats_final(f, kind)

    def sync(gs):
        lg.drain()
        vm.wait(("S", gs))
        a("s_barrier")
        d = []
        if gs + 4 < nst:
            d += dma_b(gs + 4)
        if gs + 2 < 10:
            d += dma_a(gs + 2)
        return d

    for fn in dma_a(0) + dma_b(0) + dma_a(1) + dma_b(1) + dma_b(2) + dma_b(3):
        fn()
    for r in range(4):
        a("v_mov_b32 v%d, 0" % (V_ST + r))
        a("v_mov_b32 v%d, 0x3f803f80" % (V_ONES + r))
    yield ("prologue", vm, lg, f)
    dm = sync(0)
    stamp(a, 1)
    read_a(0)
    for c in range(5):
        read_b(0, c)
    read_cs(0)
    for p, NT in enumerate(passes):
        for s in range(20):
            sg = p * 20 + s
            last = sg == 20 * len(passes) - 1
            if (sg & 1) and not last:
                for fn in dm:
                    fn()
                dm = sync((sg + 1) // 2)
                if (sg + 1) // 2 < 10:
                    read_a((sg + 1) // 2)
            NTn = passes[(sg + 1) // 20] if not last else 0
            if p == 0:
                lg.wait(("A", s // 2))
            nf = 3 if p == 0 else 3
            for c in range(NT):
                if s == 0 and p == 1:
                    yield ("stage", c, vm, lg, f)
                lg.wait(("B", sg, c))
                for t in range(2):
                    d = vr(acc_reg(c, t))
                    cin = "0" if s == 0 else d
                    A_, B_ = vr(a_reg(t, s)), vr(b_reg(c))
                    if kv:
                        a("v_mfma_f32_16x16x32_bf16 %s, %s, %s, %s" % (d, A_, B_, cin))
                    else:
                        a("v_mfma_f32_16x16x32_bf16 %s, %s, %s, %s" % (d, B_, A_, cin))
                    if t == 0 and dm:
                        dm.pop(0)()
                    f.pop(nf)
                if kv and c == 4:
                    a("v_mfma_f32_16x16x32_bf16 v[16:19], %s, %s, %s" % (vr(V_ONES), vr(b_reg(4)), "0" if s == 0 else "v[16:19]"))
                if c < NTn:
                    read_b(sg + 1, c)
            lg.wait(("C", sg))
            a("v_mfma_f32_16x16x32_bf16 %s, %s, %s, %s" % (vr(V_CSA), vr(V_ONES), vr(V_CSF), "0" if s == 0 else vr(V_CSA)))
            if not last:
                read_cs(sg + 1)
        f.flush()
        yield ("passend", p, vm, lg, f)


def gen_qh(a, kind):
    g = gen_main(a, kind)
    _, vm, lg, f = next(g)
    a("""
    s_sub_u32 s62, s2, 128
    s_mul_i32 s60, s40, 120
    s_and_b32 s61, s62, 15
    s_mul_i32 s61, s61, 3
    s_lshr_b32 s62, s62, 4
    s_mul_i32 s63, s62, 68
    s_add_u32 s63, s63, s61
    s_mul_i32 s62, s62, 160
    """)
    for q in range(2):
        a("""
        v_add_u32 v12, s60, v1
        v_add_u32 v12, %d, v12
        v_mul_u32_u24 v13, 205, v12
        v_lshrrev_b32 v13, 16, v13
        v_mul_u32_u24 v14, 320, v13
        v_sub_u32 v14, v12, v14
        v_add_u32 v16, s61, v13
        v_add_u32 v17, s63, v13
        v_mul_u32_u24 v17, 320, v17
        v_add_u32 v17, v17, v14
        v_lshlrev_b32 v%d, 4, v17
        """ % (q * 64, 88 + q))
        perm_voff(a, 17, 14, 1280, 12, 13, 18)
        a("""
        v_mul_u32_u24 v16, %d, v16
        v_add_u32 v17, v17, v16
        """ % (32 * 1280))
        a("buffer_load_dwordx4 %s, v17, s[64:67], s62 offen" % vr(80 + q * 4))
        vm.add("RP")
    a("""
    v_cmp_gt_u32 vcc, 56, v1
    v_mov_b32 v12, 0x%x
    s_nop 0
    v_cndmask_b32 v89, v12, v89, vcc
    """ % OOB)
    if kind == "H":
        a("""
        v_lshlrev_b32 v12, 1, v0
        buffer_load_ushort v13, v12, s[32:35], s43 offen
        v_mov_b32 v10, 0xc0135761
        s_mov_b32 s61, 0xbdd2d3e8
        """)
        vm.add("B1")
        vm.wait("B1")
        a("""
        v_lshlrev_b32 v13, 16, v13
        v_lshlrev_b32 v12, 2, v0
        v_add_u32 v12, %d, v12
        v_cmp_gt_u32 vcc, 144, v0
        s_and_saveexec_b64 s[62:63], vcc
        ds_write_b32 v12, v13
        s_mov_b64 exec, s[62:63]
        """ % (QH_TAB + 1024))
        lg.add("T")
    else:
        vm.wait("RP")
    for q in range(2):
        a("buffer_store_dwordx4 %s, v%d, s[68:71], 0 offen" % (vr(80 + q * 4), 88 + q))
        vm.add("RS")

    def publish_cs(p):
        a("s_nop 7")
        a("s_lshl_b32 s60, s40, 6")
        a("v_lshl_add_u32 v12, v7, 2, s60")
        a("v_add_u32 v12, %d, v12" % (QH_TAB + p * 320))
        NT = 5 if p == 0 else 4
        a("s_cmp_ge_u32 s40, %d" % NT)
        a("s_cbranch_scc1 K1_%s_NOCS%d" % (kind, p))
        a("ds_write_b32 v12, v%d" % V_CSA)
        a.label("K1_%s_NOCS%d" % (kind, p))
        a("s_waitcnt lgkmcnt(0)")
        lg.q = []
        a("s_barrier")
        a("v_lshlrev_b32 v12, 2, v6")
        a("v_add_u32 v12, %d, v12" % QH_TAB)
        a("v_mul_u32_u24 v13, %d, v7" % STG_P)
        a("v_lshl_add_u32 v13, v6, 1, v13")
        a("v_add_u32 v13, s54, v13")

    def stage_tile(p, c):
        tile = p * 5 + c
        a("ds_read_b128 v[14:17], v12 offset:%d" % (tile * 64))
        lg.add("X")
        if kind == "H":
            a("ds_read_b128 %s, v12 offset:%d" % (vr(V_CSA), 1024 + tile * 64))
            lg.add("X")
        lg.wait("X")
        for t in range(2):
            al, be = V_ST + 2 * t, V_ST + 2 * t + 1
            b = acc_reg(c, t)
            for r in range(4):
                if kind == "H":
                    a("v_fma_f32 v18, -v%d, v%d, v%d" % (be, 14 + r, V_CSA + r))
                else:
                    a("v_mul_f32 v18, -v%d, v%d" % (be, 14 + r) if False else "v_mul_f32 v18, v%d, v%d" % (be, 14 + r))
                if kind == "H":
                    a("v_fma_f32 v%d, v%d, v%d, v18" % (b + r, b + r, al))
                else:
                    a("v_fma_f32 v%d, v%d, v%d, -v18" % (b + r, b + r, al))
            a("v_cvt_pk_bf16_f32 v%d, v%d, v%d" % (b, b, b + 1))
            a("v_cvt_pk_bf16_f32 v%d, v%d, v%d" % (b + 1, b + 2, b + 3))
            a("ds_write_b64 v13, %s offset:%d" % (vr(b, 2), t * 16 * STG_P + c * 32))
            lg.add("W")

    TP = [52, 53, 54, 55, 88, 89, 90, 91, 92, 93, 94, 95, 12, 13, 14, 15, 16, 17, 18, 19]
    while True:
        ev = next(g)
        if ev[0] == "passend" and ev[1] == 0:
            stamp(a, 2)
            publish_cs(0)
            stage_tile(0, 4)
        elif ev[0] == "stage":
            stage_tile(0, ev[1])
            if ev[1] == 3:
                f.lgwait("W")
                emit_post(f, kind, 10, TP, "s43")
        elif ev[0] == "passend" and ev[1] == 1:
            stamp(a, 3)
            publish_cs(1)
            for c in range(4):
                stage_tile(1, c)
            lg.wait("W")
            a("s_add_u32 s56, s43, 160")
            emit_post(f, kind, 8, TP, "s56")
            f.flush()
            stamp(a, 4)
            break


def emit_phi4(a, src, dst2, tmp, smask):
    t = [tmp + i for i in range(4)]
    e = [tmp + 4 + i for i in range(4)]
    a("v_cvt_pk_bf16_f32 v%d, v%d, v%d" % (e[0], src, src + 1))
    a("v_cvt_pk_bf16_f32 v%d, v%d, v%d" % (e[1], src + 2, src + 3))
    a("v_lshlrev_b32 v%d, 16, v%d" % (t[0], e[0]))
    a("v_and_b32 v%d, 0xffff0000, v%d" % (t[1], e[0]))
    a("v_lshlrev_b32 v%d, 16, v%d" % (t[2], e[1]))
    a("v_and_b32 v%d, 0xffff0000, v%d" % (t[3], e[1]))
    for i in range(4):
        a("v_mul_f32 v%d, 0x3fb8aa3b, v%d" % (e[i], t[i]))
        a("v_cmp_lt_f32 s[%d:%d], 0, v%d" % (smask + 2 * i, smask + 2 * i + 1, t[i]))
    for i in range(4):
        a("v_exp_f32 v%d, v%d" % (e[i], e[i]))
        a("v_add_f32 v%d, 1.0, v%d" % (t[i], t[i]))
    for i in range(4):
        a("v_cndmask_b32 v%d, v%d, v%d, s[%d:%d]" % (t[i], e[i], t[i], smask + 2 * i, smask + 2 * i + 1))
    for i in range(4):
        a("v_add_f32 v%d, 0x358637bd, v%d" % (t[i], t[i]))
    a("v_cvt_pk_bf16_f32 v%d, v%d, v%d" % (dst2, t[0], t[1]))
    a("v_cvt_pk_bf16_f32 v%d, v%d, v%d" % (dst2 + 1, t[2], t[3]))


def gen_kv(a):
    g = gen_main(a, "KV")
    _, vm, lg, f = next(g)
    ev = next(g)
    assert ev[0] == "passend"
    stamp(a, 2)
    a("v_lshlrev_b32 v5, 4, v1")
    a("""
    s_nop 7
    s_lshl_b32 s60, s40, 6
    v_lshl_add_u32 v12, v7, 2, s60
    v_add_u32 v12, %d, v12
    ds_write_b32 v12, v%d
    s_lshl_b32 s60, s40, 8
    v_lshl_add_u32 v13, v7, 2, s60
    v_add_u32 v13, %d, v13
    ds_write_b32 v13, v%d
    ds_write_b32 v13, v%d offset:64
    ds_write_b32 v13, v%d offset:128
    ds_write_b32 v13, v%d offset:192
    s_waitcnt vmcnt(0) lgkmcnt(0)
    s_barrier
    s_lshl_b32 s61, s51, 8
    v_lshl_add_u32 v12, v7, 2, s61
    v_add_u32 v12, %d, v12
    v_lshl_add_u32 v13, v6, 2, s60
    v_add_u32 v13, %d, v13
    """ % (KV_TAB, V_CSA, KV_TAB + 1024, V_ST, V_ST + 2, V_ST + 1, V_ST + 3, KV_TAB, KV_TAB + 1024))
    lg.q = []
    vm.q = []
    for c in range(4):
        a("ds_read_b32 v%d, v12 offset:%d" % (36 + c, c * 64))
    for t in range(2):
        a("ds_read_b128 %s, v13 offset:%d" % (vr(40 + t * 4), t * 64))
        a("ds_read_b128 %s, v13 offset:%d" % (vr(48 + t * 4), 128 + t * 64))
    a("s_waitcnt lgkmcnt(0)")
    for c in range(5):
        cs = 36 + c if c < 4 else 16
        for t in range(2):
            b = acc_reg(c, t)
            for r in range(4):
                a("v_mul_f32 v12, v%d, v%d" % (48 + t * 4 + r, cs))
                a("v_fma_f32 v%d, v%d, v%d, -v12" % (b + r, b + r, 40 + t * 4 + r))
    FR = 96
    a("""
    s_cmp_eq_u32 s51, 1
    s_cbranch_scc1 K1_KV_V
    """)
    for c in range(5):
        for t in range(2):
            emit_phi4(a, acc_reg(c, t), FR + c * 4 + t * 2, 120, 52)
    a("s_branch K1_KV_WR")
    a.label("K1_KV_V")
    for c in range(5):
        for t in range(2):
            s_ = acc_reg(c, t)
            a("v_cvt_pk_bf16_f32 v%d, v%d, v%d" % (FR + c * 4 + t * 2, s_, s_ + 1))
            a("v_cvt_pk_bf16_f32 v%d, v%d, v%d" % (FR + c * 4 + t * 2 + 1, s_ + 2, s_ + 3))
    a.label("K1_KV_WR")
    a("""
    s_mul_i32 s52, s51, 20480
    s_lshl_b32 s54, s50, 10
    s_add_u32 s52, s52, s54
    v_add_u32 v13, s52, v5
    """)
    for c in range(5):
        a("ds_write_b128 v13, %s offset:%d" % (vr(FR + c * 4), c * 4096))
    a("""
    s_cmp_eq_u32 s51, 0
    s_cbranch_scc1 K1_KV_NOONES
    ds_write_b128 v13, %s offset:20480
    """ % vr(V_ONES))
    a.label("K1_KV_NOONES")
    a("""
    s_waitcnt lgkmcnt(0)
    s_barrier
    """)
    stamp(a, 3)
    pairs = [(0, 0), (0, 1), (1, 0), (1, 1), (1, 2), (2, 1), (2, 2), (2, 3), (3, 2), (3, 3), (3, 4), (4, 3), (4, 4)]
    jobs = pairs + [(i, 5) for i in range(5)]
    tabA = sum(((jobs[j][0] | (jobs[j][1] << 3)) << (6 * j)) for j in range(10))
    tabB = sum(((jobs[j][0] | (jobs[j][1] << 3)) << (6 * (j - 10))) for j in range(10, 18))
    a("s_mov_b32 s56, 0x%x" % (tabA & 0xffffffff))
    a("s_mov_b32 s57, 0x%x" % (tabA >> 32))
    a("s_mov_b32 s58, 0x%x" % (tabB & 0xffffffff))
    a("s_mov_b32 s59, 0x%x" % (tabB >> 32))
    a("""
    s_lshl_b32 s62, s48, 4
    s_add_u32 s62, s62, s49
    s_mul_i32 s62, s62, %d
    """ % SLAB_STRIDE)
    for i in range(3):
        lbl = "K1_JOB_SKIP_%d" % i
        a("s_add_u32 s60, s40, %d" % (8 * i))
        if i == 2:
            a("s_cmp_ge_u32 s60, 18")
            a("s_cbranch_scc1 %s" % lbl)
        a("""
        s_cmp_ge_u32 s60, 10
        s_cselect_b32 s64, s58, s56
        s_cselect_b32 s65, s59, s57
        s_cselect_b32 s61, 10, 0
        s_sub_u32 s60, s60, s61
        s_mul_i32 s60, s60, 6
        s_lshr_b64 s[64:65], s[64:65], s60
        s_and_b32 s66, s64, 7
        s_lshr_b32 s67, s64, 3
        s_and_b32 s67, s67, 7
        s_lshl_b32 s60, s66, 12
        s_lshl_b32 s61, s67, 12
        s_add_u32 s61, s61, 20480
        v_add_u32 v13, s60, v5
        v_add_u32 v14, s61, v5
        """)
        R0 = 128 + i * 40
        for rg in range(4):
            a("ds_read_b128 %s, v13 offset:%d" % (vr(R0 + rg * 4), rg * 1024))
            a("ds_read_b128 %s, v14 offset:%d" % (vr(R0 + 16 + rg * 4), rg * 1024))
        a("s_waitcnt lgkmcnt(0)")
        D = R0 + 32
        for rg in range(4):
            a("v_mfma_f32_16x16x32_bf16 %s, %s, %s, %s" % (vr(D), vr(R0 + rg * 4), vr(R0 + 16 + rg * 4), "0" if rg == 0 else vr(D)))
        AD = R0 + 36
        a("""
        s_lshl_b32 s60, s66, 4
        s_lshl_b32 s61, s67, 4
        v_add_u32 v12, s60, v6
        v_add_u32 v13, s61, v7
        """)
        for r in range(4):
            a("""
            v_add_u32 v14, %d, v12
            v_mul_u32_u24 v15, 205, v14
            v_lshrrev_b32 v15, 12, v15
            v_mul_u32_u24 v15, 20, v15
            v_sub_u32 v15, v13, v15
            v_mul_u32_u24 v%d, 20, v14
            v_add_u32 v%d, v%d, v15
            v_lshlrev_b32 v%d, 2, v%d
            v_cmp_gt_u32 vcc, 20, v15
            v_mov_b32 v15, 0x%x
            s_nop 0
            v_cndmask_b32 v%d, v15, v%d, vcc
            """ % (r, AD + r, AD + r, AD + r, AD + r, AD + r, OOB, AD + r, AD + r))
        lz = "K1_JOB_NZ_%d" % i
        a("s_cmp_lg_u32 s67, 5")
        a("s_cbranch_scc1 %s" % lz)
        a("v_cmp_eq_u32 vcc, 0, v7")
        a("v_mov_b32 v15, 0x%x" % OOB)
        for r in range(4):
            a("v_add_u32 v14, %d, v12" % (1600 + r))
            a("v_lshlrev_b32 v14, 2, v14")
            a("v_cndmask_b32 v%d, v15, v14, vcc" % (AD + r))
        a.label(lz)
        a("s_nop 4")
        for r in range(4):
            a("buffer_store_dword v%d, v%d, s[28:31], s62 offen sc1" % (D + r, AD + r))
        a.label(lbl)
    stamp(a, 4)
    a("""
    s_waitcnt vmcnt(0)
    s_barrier
    s_cmp_lg_u32 s40, 0
    s_cbranch_scc1 K1_KV_WAITFLAG
    s_lshl_b32 s60, s48, 5
    v_mov_b32 v14, 1
    v_mov_b32 v13, s60
    s_mov_b64 s[64:65], exec
    s_mov_b64 exec, 1
    buffer_atomic_add v14, v13, s[36:39], 0 offen sc0 sc1
    s_waitcnt vmcnt(0)
    v_mov_b32 v13, %d
    ds_write_b32 v13, v14
    s_waitcnt lgkmcnt(0)
    s_mov_b64 exec, s[64:65]
    """ % K1_FLAG)
    a.label("K1_KV_WAITFLAG")
    a("""
    s_barrier
    v_mov_b32 v13, %d
    ds_read_b32 v14, v13
    s_waitcnt lgkmcnt(0)
    v_readfirstlane_b32 s60, v14
    s_cmp_lg_u32 s60, 15
    s_cbranch_scc1 K1_END
    """ % K1_FLAG)
    stamp(a, 5)
    a("buffer_inv sc1")
    a("""
    s_lshl_b32 s62, s48, 4
    s_mul_i32 s62, s62, %d
    v_lshlrev_b32 v12, 4, v0
    v_mov_b32 v13, 0x%x
    v_cmp_gt_u32 vcc, 420, v0
    s_nop 1
    v_cndmask_b32 v12, v13, v12, vcc
    """ % (SLAB_STRIDE, OOB))
    for rb in range(16):
        a("s_add_u32 s60, s62, %d" % (rb * SLAB_STRIDE))
        a("buffer_load_dwordx4 %s, v12, s[28:31], s60 offen sc1" % vr(96 + rb * 4))
    srd(a, 24, 8, SZ_WO)
    a("""
    s_mul_i32 s45, s48, %d
    s_mul_i32 s60, s40, 160
    s_add_u32 s45, s45, s60
    s_mul_i32 s46, s40, 15360
    """ % (80 * 1280))
    for q in range(15):
        a("v_add_u32 v13, %d, v1" % (q * 64))
        perm_voff(a, 14, 13, 1280, 15, 16, 17)
        a("""
        s_add_u32 m0, s46, %d
        s_nop 0
        buffer_load_dwordx4 v14, s[24:27], s45 offen lds
        """ % (q * 1024))
    a("""
    v_lshlrev_b32 v13, 4, v0
    v_add_u32 v13, %d, v13
    v_mov_b32 v16, 0
    v_mov_b32 v17, 0
    v_mov_b32 v18, 0
    v_mov_b32 v19, 0
    ds_write_b128 v13, v[16:19]
    ds_write_b128 v13, v[16:19] offset:8192
    v_cmp_gt_u32 vcc, 16, v0
    s_and_saveexec_b64 s[64:65], vcc
    ds_write_b128 v13, v[16:19] offset:16384
    s_mov_b64 exec, s[64:65]
    s_waitcnt vmcnt(15)
    """ % K1_KVBD)
    for st in (8, 4, 2, 1):
        for rb in range(st):
            for e in range(4):
                a("v_add_f32 v%d, v%d, v%d" % (96 + rb * 4 + e, 96 + rb * 4 + e, 96 + (rb + st) * 4 + e))
    srd(a, 32, 16, 1280, WS_Z)
    a("""
    v_cvt_pk_bf16_f32 v18, v96, v97
    v_cvt_pk_bf16_f32 v19, v98, v99
    v_mul_u32_u24 v15, 13108, v0
    v_lshrrev_b32 v15, 16, v15
    v_mul_u32_u24 v16, 5, v15
    v_sub_u32 v16, v0, v16
    v_lshlrev_b32 v16, 2, v16
    v_mul_u32_u24 v17, 205, v15
    v_lshrrev_b32 v17, 12, v17
    v_mul_u32_u24 v17, 20, v17
    v_add_u32 v16, v16, v17
    v_mul_u32_u24 v17, %d, v15
    v_lshl_add_u32 v17, v16, 1, v17
    v_add_u32 v17, %d, v17
    s_waitcnt vmcnt(0) lgkmcnt(0)
    s_barrier
    v_cmp_gt_u32 vcc, 400, v0
    s_and_saveexec_b64 s[64:65], vcc
    ds_write_b64 v17, v[18:19]
    s_mov_b64 exec, s[64:65]
    v_subrev_u32 v15, 400, v0
    s_mul_i32 s60, s48, 160
    v_lshlrev_b32 v15, 3, v15
    v_cmp_gt_u32 vcc, 160, v15
    v_mov_b32 v16, 0x%x
    s_nop 0
    v_cndmask_b32 v15, v16, v15, vcc
    buffer_store_dwordx2 v[18:19], v15, s[32:35], s60 offen
    s_waitcnt lgkmcnt(0)
    s_barrier
    """ % (KVBD_PITCH, K1_KVBD, OOB))
    stamp(a, 6)
    a("""
    v_lshrrev_b32 v13, 2, v1
    v_mul_u32_u24 v2, 160, v13
    v_and_b32 v13, 3, v1
    v_lshl_add_u32 v2, v13, 3, v2
    v_add_u32 v2, s46, v2
    v_mul_u32_u24 v3, %d, v7
    v_lshl_add_u32 v3, v6, 2, v3
    v_add_u32 v3, %d, v3
    """ % (KVBD_PITCH, K1_KVBD))
    for aa in range(5):
        for s in range(3):
            a("ds_read_b128 %s, v3 offset:%d" % (vr(96 + (aa * 3 + s) * 4), aa * 16 * KVBD_PITCH + s * 64))
    for c in range(5):
        for s in range(3):
            for hh in range(2):
                a("ds_read_b64_tr_b16 %s, v2 offset:%d" % (vr(160 + (c * 3 + s) * 4 + hh * 2, 2), s * 5120 + hh * 2560 + c * 32))
        a("s_waitcnt lgkmcnt(0)")
    a("""
    s_mul_i32 s60, s48, 80
    s_mul_i32 s61, s40, 68
    s_add_u32 s61, s61, 48
    s_mul_i32 s61, s61, 5120
    v_lshrrev_b32 v12, 3, v6
    v_lshlrev_b32 v12, 4, v12
    v_bfe_u32 v13, v6, 2, 1
    v_lshl_add_u32 v12, v13, 3, v12
    """)
    for aa in range(5):
        a("""
        v_add_u32 v13, s60, v7
        v_add_u32 v13, %d, v13
        v_lshrrev_b32 v14, 5, v13
        v_mul_u32_u24 v14, 5120, v14
        v_and_b32 v15, 3, v13
        v_bfe_u32 v16, v13, 2, 1
        v_lshl_or_b32 v15, v16, 4, v15
        v_bfe_u32 v16, v13, 3, 2
        v_lshl_or_b32 v15, v16, 2, v15
        v_mul_u32_u24 v15, 160, v15
        v_add3_u32 v%d, v14, v15, v12
        """ % (aa * 16, 4 + aa if aa < 1 else 7 + aa))
    adr = [4, 8, 9, 10, 11]
    for aa in range(5):
        for c in range(5):
            d = 16 + c * 4
            for s in range(3):
                a("v_mfma_f32_16x16x32_bf16 %s, %s, %s, %s" % (vr(d), vr(160 + (c * 3 + s) * 4), vr(96 + (aa * 3 + s) * 4), "0" if s == 0 else vr(d)))
        a("s_nop 7")
        a("s_nop 1")
        o = 40 + (aa & 1) * 10
        for c in range(5):
            d = 16 + c * 4
            a("v_cvt_pk_bf16_f32 v%d, v%d, v%d" % (o + c * 2, d, d + 1))
            a("v_cvt_pk_bf16_f32 v%d, v%d, v%d" % (o + 1 + c * 2, d + 2, d + 3))
        for c in range(5):
            a("buffer_store_dwordx2 %s, v%d, s[68:71], s61 offen offset:%d" % (vr(o + c * 2, 2), adr[aa], c * 32))
    stamp(a, 7)


def gen_k1(a):
    a.raw(".globl k1_kernel")
    a.raw(".p2align 8")
    a.raw(".type k1_kernel,@function")
    a.label("k1_kernel")
    a("""
    s_cmp_ge_u32 s2, 256
    s_cbranch_scc1 K1_END
    s_load_dwordx2 s[4:5], s[0:1], 0
    s_load_dwordx2 s[6:7], s[0:1], 8
    s_load_dwordx2 s[8:9], s[0:1], 16
    s_load_dwordx2 s[10:11], s[0:1], 32
    s_load_dwordx2 s[12:13], s[0:1], 40
    s_load_dwordx2 s[14:15], s[0:1], 72
    s_load_dwordx2 s[16:17], s[0:1], 80
    s_load_dwordx2 s[18:19], s[0:1], 48
    v_and_b32 v1, 63, v0
    v_lshrrev_b32 v13, 6, v0
    s_nop 0
    v_readfirstlane_b32 s40, v13
    v_lshlrev_b32 v5, 4, v1
    v_lshrrev_b32 v6, 4, v1
    v_lshlrev_b32 v6, 2, v6
    v_and_b32 v7, 15, v1
    s_waitcnt lgkmcnt(0)
    """)
    srd(a, 20, 4, SZ_X)
    srd(a, 32, 12, SZ_B1)
    srd(a, 36, 14, 256)
    srd(a, 64, 18, SZ_W2)
    srd(a, 68, 16, SZ_PB, WS_PB)
    a.prof_base = 0
    stamp_init(a)
    stamp(a, 0)
    a("""
    s_and_b32 s50, s40, 3
    s_cmp_ge_u32 s2, 128
    s_cbranch_scc1 K1_DEC_QH
    s_mov_b32 s41, 0
    s_and_b32 s48, s2, 7
    s_lshr_b32 s49, s2, 3
    s_lshl_b32 s52, s49, 7
    s_lshl_b32 s42, s50, 5
    s_add_u32 s42, s42, s52
    s_lshl_b32 s60, s40, 4
    s_add_u32 s52, s52, s60
    s_lshr_b32 s51, s40, 2
    s_mul_i32 s43, s51, 1280
    s_mul_i32 s60, s48, 160
    s_add_u32 s43, s43, s60
    s_add_u32 s43, s43, 1280
    s_mov_b32 s44, 3840
    s_mul_i32 s53, s50, 160
    s_mul_i32 s46, s51, %d
    s_lshl_b32 s60, s53, 4
    s_add_u32 s46, s46, s60
    s_lshr_b32 s60, s40, 1
    s_mul_i32 s47, s60, %d
    s_and_b32 s60, s40, 1
    s_lshl_b32 s60, s60, 11
    s_add_u32 s47, s47, s60
    s_add_u32 s47, s47, %d
    s_mul_i32 s54, s50, %d
    s_add_u32 s54, s54, %d
    s_mov_b32 s55, 0
    s_mov_b32 s57, s50
    """ % (BRING, AREG, KV_AR, AREG, KV_AR))
    srd(a, 24, 6, SZ_WQKV)
    srd(a, 28, 16, 8 * 16 * SLAB_STRIDE, WS_SLAB)
    a("s_branch K1_DEC_DONE")
    a.label("K1_DEC_QH")
    a("""
    s_sub_u32 s60, s2, 128
    s_and_b32 s48, s60, 7
    s_lshr_b32 s61, s60, 3
    s_and_b32 s61, s61, 1
    s_lshl_b32 s61, s61, 3
    s_add_u32 s48, s48, s61
    s_lshr_b32 s49, s60, 4
    s_lshl_b32 s42, s49, 8
    s_lshl_b32 s60, s40, 5
    s_add_u32 s42, s42, s60
    s_mov_b32 s52, s42
    s_mov_b32 s51, 0
    s_mul_i32 s53, s40, 80
    s_lshl_b32 s46, s53, 4
    s_mul_i32 s54, s40, %d
    s_add_u32 s54, s54, %d
    s_mov_b32 s47, s54
    s_min_u32 s57, s40, 3
    s_cmp_ge_u32 s48, 5
    s_cbranch_scc1 K1_DEC_H
    s_mov_b32 s41, 1
    s_lshl_b32 s43, s48, 3
    s_min_u32 s43, s43, 31
    s_lshl_b32 s43, s43, 5
    s_mov_b32 s44, 3840
    s_mov_b32 s55, 1280
    """ % (AREG, QH_AR))
    srd(a, 24, 6, SZ_WQKV)
    srd(a, 28, 16, 2048 * 640 * 2, WS_PQ)
    a("s_branch K1_DEC_DONE")
    a.label("K1_DEC_H")
    a("""
    s_mov_b32 s41, 2
    s_sub_u32 s60, s48, 5
    s_mul_i32 s43, s60, 9
    s_min_u32 s43, s43, 87
    s_lshl_b32 s43, s43, 5
    s_mov_b32 s44, 3072
    s_mov_b32 s55, 3072
    """)
    srd(a, 24, 10, SZ_W1)
    srd(a, 28, 16, 2048 * 1536 * 2, WS_H)
    a.label("K1_DEC_DONE")
    a("""
    s_min_u32 s58, s40, 4
    s_cmp_eq_u32 s41, 0
    s_cselect_b32 s58, s50, s58
    s_lshl_b32 s58, s58, 5
    v_lshrrev_b32 v13, 2, v1
    v_mul_u32_u24 v2, 160, v13
    v_and_b32 v13, 3, v1
    v_lshl_add_u32 v2, v13, 3, v2
    s_mul_i32 s60, s51, %d
    v_add_u32 v2, s60, v2
    v_add_u32 v3, s58, v2
    v_lshrrev_b32 v13, 4, v1
    v_and_b32 v14, 7, v1
    v_xor_b32 v13, v13, v14
    v_lshlrev_b32 v4, 7, v7
    v_lshl_add_u32 v4, v13, 4, v4
    v_xor_b32 v5, 64, v4
    v_add_u32 v4, s54, v4
    v_add_u32 v5, s54, v5
    v_lshrrev_b32 v13, 3, v1
    v_xor_b32 v14, v14, v13
    v_add_u32 v13, s52, v13
    v_mul_u32_u24 v11, 1280, v13
    v_lshl_add_u32 v11, v14, 4, v11
    """ % BRING)
    for q in range(3):
        a("v_add_u32 v13, s53, v1")
        a("v_add_u32 v13, %d, v13" % (q * 64))
        perm_voff(a, 8 + q, 13, "s44", 14, 15, 16)
    a("""
    s_cmp_eq_u32 s41, 1
    s_cbranch_scc1 K1_Q
    s_cmp_eq_u32 s41, 2
    s_cbranch_scc1 K1_H
    """)
    gen_kv(a)
    a("s_branch K1_END")
    a.label("K1_Q")
    gen_qh(a, "Q")
    a("s_branch K1_END")
    a.label("K1_H")
    gen_qh(a, "H")
    a.label("K1_END")
    a("s_endpgm")


K2_AR = 16384
K2_RING = K2_AR + 4 * 5120
K2_WREG = K2_RING + 4096
K2_LDS = 4 * K2_WREG
K2_VPQ = 176
K2_VA = 96
K2_VB = 56
K2_VZ = 36
K2_RP = 336


def gen_k2(a):
    a.raw(".globl k2_kernel")
    a.raw(".p2align 8")
    a.raw(".type k2_kernel,@function")
    a.label("k2_kernel")
    a("""
    s_cmp_ge_u32 s2, 256
    s_cbranch_scc1 K2_END
    s_load_dwordx2 s[4:5], s[0:1], 0
    s_load_dwordx2 s[8:9], s[0:1], 56
    s_load_dwordx2 s[10:11], s[0:1], 64
    s_load_dwordx2 s[16:17], s[0:1], 80
    v_and_b32 v1, 63, v0
    v_lshrrev_b32 v13, 6, v0
    s_nop 0
    v_readfirstlane_b32 s40, v13
    v_lshlrev_b32 v5, 4, v1
    v_lshrrev_b32 v6, 4, v1
    v_lshlrev_b32 v6, 2, v6
    v_and_b32 v7, 15, v1
    s_and_b32 s41, s2, 7
    s_lshl_b32 s41, s41, 2
    s_lshr_b32 s42, s2, 3
    s_and_b32 s42, s42, 3
    s_add_u32 s41, s41, s42
    s_lshl_b32 s41, s41, 6
    s_lshr_b32 s43, s2, 5
    s_mul_i32 s42, s43, 160
    s_mul_i32 s45, s43, %d
    s_waitcnt lgkmcnt(0)
    """ % (68 * 5120))
    srd(a, 20, 16, 2048 * 1536 * 2, WS_H)
    srd(a, 24, 16, SZ_PB, WS_PB)
    srd(a, 32, 16, 2048 * 640 * 2, WS_PQ)
    srd(a, 36, 16, 1280, WS_Z)
    srd(a, 48, 4, SZ_X)
    srd(a, 52, 8, SZ_B2)
    srd(a, 56, 10, SZ_OUT)
    a.prof_base = 0x100000
    stamp_init(a)
    stamp(a, 0)
    a("s_mul_i32 s46, s40, %d" % K2_WREG)
    a("""
    v_and_b32 v14, 3, v1
    v_lshrrev_b32 v13, 2, v1
    v_add_u32 v13, s41, v13
    v_mul_u32_u24 v20, 1280, v13
    v_lshl_add_u32 v20, v14, 4, v20
    v_and_b32 v14, 7, v1
    v_lshrrev_b32 v13, 3, v1
    v_xor_b32 v14, v14, v13
    v_add_u32 v13, s41, v13
    v_mul_u32_u24 v16, 3072, v13
    v_lshl_add_u32 v16, v14, 4, v16
    v_lshlrev_b32 v24, 2, v6
    s_mul_i32 s43, s40, 768
    s_mul_i32 s44, s40, 320
    s_mul_i32 s47, s40, %d
    s_add_u32 s47, s47, s45
    s_add_u32 s47, s47, %d
    s_mul_i32 s60, s40, %d
    s_add_u32 s45, s45, s60
    """ % (5 * 5120, 48 * 5120, 12 * 5120))
    vm = Q(a, "vmcnt", 63)
    lg = Q(a, "lgkmcnt", 15)
    f = Fill(a, vm, lg)
    for s in range(5):
        for m in range(4):
            a("s_add_u32 m0, s46, %d" % (K2_AR + s * 4096 + m * 1024))
            a("s_add_u32 s60, s44, %d" % (s * 64 + m * 16 * 1280))
            a("buffer_load_dwordx4 v20, s[32:35], s60 offen lds")
            vm.add("PQ")
    for s in range(5):
        a("buffer_load_dwordx4 %s, v24, s[36:39], s44 offen offset:%d" % (vr(K2_VZ + s * 4), s * 64))
        vm.add("Z")

    def items_a(j):
        out = []
        for q in range(8):
            def fn(q=q):
                a("s_add_u32 m0, s46, %d" % ((j & 1) * 8192 + q * 1024))
                a("s_add_u32 s61, s43, %d" % (j * 128 + q * 8 * 3072))
                a("buffer_load_dwordx4 v16, s[20:23], s61 offen lds")
                vm.add(("A", j))
            out.append(fn)
        return out

    def items_b(n):
        out = []
        base = ("s45", n * 5120) if n < 12 else ("s47", (n - 12) * 5120)
        for q in range(5):
            def fn(q=q):
                a("s_add_u32 m0, s46, %d" % (K2_AR + (n % 4) * 5120 + q * 1024))
                a("s_add_u32 s60, %s, %d" % (base[0], base[1] + q * 1024))
                a("buffer_load_dwordx4 v5, s[24:27], s60 offen lds")
                vm.add(("B", n))
            out.append(fn)
        return out

    for fn in items_a(0) + items_a(1):
        fn()
    a("""
    v_lshrrev_b32 v13, 2, v1
    v_mul_u32_u24 v2, 160, v13
    v_and_b32 v13, 3, v1
    v_lshl_add_u32 v2, v13, 3, v2
    v_add_u32 v2, s46, v2
    v_lshlrev_b32 v13, 2, v6
    v_lshl_add_u32 v25, v7, 6, v13
    v_add_u32 v25, s46, v25
    v_lshrrev_b32 v13, 4, v1
    v_and_b32 v14, 7, v1
    v_xor_b32 v13, v13, v14
    v_lshlrev_b32 v13, 4, v13
    v_lshl_add_u32 v3, v7, 7, v13
    v_xor_b32 v4, 64, v3
    v_add_u32 v3, s46, v3
    v_add_u32 v4, s46, v4
    """)

    def reads(n):
        buf = n & 1
        if n < 12:
            for m in range(4):
                a("ds_read_b128 %s, v%d offset:%d" % (vr(K2_VA + (buf * 4 + m) * 4), 3 + (n & 1), ((n >> 1) & 1) * 8192 + m * 2048))
                lg.add(("R", n))
        for c in range(5):
            for hh in range(2):
                a("ds_read_b64_tr_b16 %s, v2 offset:%d" % (vr(K2_VB + (buf * 5 + c) * 4 + hh * 2, 2), K2_AR + (n % 4) * 5120 + hh * 2560 + c * 32))
                lg.add(("R", n))

    vm.wait("PQ")
    stamp(a, 1)
    for s in range(5):
        for m in range(4):
            a("ds_read_b128 %s, v25 offset:%d" % (vr(K2_VPQ + (s * 4 + m) * 4), K2_AR + s * 4096 + m * 1024))
    a("s_waitcnt lgkmcnt(0)")
    for n in range(4):
        for fn in items_b(n):
            fn()
    f.vmwait("Z")
    f("v_lshlrev_b32 v13, 1, v6")
    for s_ in range(5):
        for half in range(2):
            hreg = 26 + s_ * 2 + half
            f("v_add_u32 v14, %d, v13" % (32 * s_ + 4 * half))
            f("v_mul_u32_u24 v14, 205, v14")
            f("v_lshrrev_b32 v%d, 12, v14" % hreg)
    for s_ in range(5):
        for half in range(2):
            hreg = 26 + s_ * 2 + half
            f.group(["v_cmp_eq_u32 vcc, v%d, v7" % hreg, "s_nop 1",
                     "v_cndmask_b32 v%d, 0, v%d, vcc" % (K2_VZ + s_ * 4 + half * 2, K2_VZ + s_ * 4 + half * 2),
                     "v_cndmask_b32 v%d, 0, v%d, vcc" % (K2_VZ + s_ * 4 + half * 2 + 1, K2_VZ + s_ * 4 + half * 2 + 1)])
    f("s_nop 1")
    DEN = 128
    for m in range(4):
        for s_ in range(5):
            f("v_mfma_f32_16x16x32_bf16 %s, %s, %s, %s" % (vr(DEN + m * 4), vr(K2_VZ + s_ * 4), vr(K2_VPQ + (s_ * 4 + m) * 4), "0" if s_ == 0 else vr(DEN + m * 4)))
    f.group(["s_nop 7", "s_nop 1"])
    for m in range(4):
        for r in range(4):
            x = DEN + m * 4 + r
            rnd(f, x, 13)
            f("v_add_f32 v%d, 0x358637bd, v%d" % (x, x))
            rnd(f, x, 13)
            f("v_rcp_f32 v%d, v%d" % (x, x))
    f("""
    v_lshlrev_b32 v13, 6, v7
    v_lshl_add_u32 v13, v6, 2, v13
    v_add_u32 v13, s46, v13
    """)
    for m in range(4):
        f.lds("ds_write_b128 v13, %s offset:%d" % (vr(DEN + m * 4), K2_RING + m * 1024), "DW")
    f("""
    v_lshlrev_b32 v13, 6, v7
    v_add_u32 v13, s46, v13
    """)
    for i in range(10):
        f("v_lshl_add_u32 v%d, v%d, 2, v13" % (26 + i, 26 + i))
    f.lgwait("DW")
    SC = 128
    for s_ in range(5):
        for m in range(4):
            for half in range(2):
                f.lds("ds_read_b32 v%d, v%d offset:%d" % (SC + (s_ * 4 + m) * 2 + half, 26 + s_ * 2 + half, K2_RING + m * 1024), "DR")
    f.lgwait("DR")
    for s_ in range(5):
        for m in range(4):
            fb = K2_VPQ + (s_ * 4 + m) * 4
            for d in range(4):
                sc = SC + (s_ * 4 + m) * 2 + (d >> 1)
                p = 168 + d * 2
                f("v_lshlrev_b32 v%d, 16, v%d" % (p, fb + d))
                f("v_and_b32 v%d, 0xffff0000, v%d" % (p + 1, fb + d))
                f("v_mul_f32 v%d, v%d, v%d" % (p, p, sc))
                f("v_mul_f32 v%d, v%d, v%d" % (p + 1, p + 1, sc))
            for d in range(4):
                p = 168 + d * 2
                f("v_cvt_pk_bf16_f32 v%d, v%d, v%d" % (fb + d, p, p + 1))
    for j in range(3):
        f("""
        v_add_u32 v13, %d, v0
        v_mul_u32_u24 v14, 6554, v13
        v_lshrrev_b32 v14, 16, v14
        v_mul_u32_u24 v15, 10, v14
        v_sub_u32 v15, v13, v15
        v_lshlrev_b32 v%d, 4, v15
        v_mul_u32_u24 v%d, %d, v14
        v_lshl_add_u32 v%d, v15, 5, v%d
        v_add_u32 v14, s41, v14
        v_mul_u32_u24 v14, 1280, v14
        v_add_u32 v%d, v14, v%d
        """ % (j * 256, 134 + j, 131 + j, K2_RP, 131 + j, 131 + j, 128 + j, 134 + j))
    f("s_nop 1")
    per = (len(f.F) + 10 * 20 - 1) // (10 * 20)

    def wait_step(n):
        if n < 12:
            vm.wait(("A", n >> 1))
        vm.wait(("B", n))

    wait_step(0)
    reads(0)
    for n in range(17):
        buf = n & 1
        if n == 12:
            f.flush()
        if n + 1 < 17:
            wait_step(n + 1)
            reads(n + 1)
        lg.wait(("R", n))
        dm = []
        if n + 4 < 17:
            dm += items_b(n + 4)
        if (n & 1) and (n >> 1) + 2 < 6:
            dm += items_a((n >> 1) + 2)
        if n == 13:
            for j in range(3):
                a("buffer_load_dwordx4 %s, v%d, s[48:51], s42 offen" % (vr(140 + j * 4), 128 + j))
                vm.add("X")
                a("buffer_load_dwordx4 %s, v%d, s[52:55], s42 offen" % (vr(152 + j * 4), 134 + j))
                vm.add("X")
        for m in range(4):
            for c in range(5):
                d = ar((m * 5 + c) * 4)
                if n < 12:
                    A_ = vr(K2_VA + (buf * 4 + m) * 4)
                else:
                    A_ = vr(K2_VPQ + ((n - 12) * 4 + m) * 4)
                B_ = vr(K2_VB + (buf * 5 + c) * 4)
                a("v_mfma_f32_16x16x32_bf16 %s, %s, %s, %s" % (d, B_, A_, "0" if n == 0 else d))
                if dm:
                    dm.pop(0)()
                f.pop(per)
    a("s_nop 7")
    a("s_nop 1")
    stamp(a, 4)
    a("""
    v_mul_u32_u24 v13, %d, v7
    v_lshl_add_u32 v13, v6, 2, v13
    v_add_u32 v13, s46, v13
    """ % K2_RP)
    for m in range(4):
        for c in range(5):
            a("ds_write_b128 v13, %s offset:%d" % (ar((m * 5 + c) * 4), m * 16 * K2_RP + c * 64))
    a("s_waitcnt vmcnt(0) lgkmcnt(0)")
    a("s_barrier")
    for j in range(3):
        if j == 2:
            a("s_cmp_ge_u32 s40, 2")
            a("s_cbranch_scc1 K2_DONE")
        a("v_add_u32 v14, %d, v%d" % (2 * K2_WREG, 131 + j))
        for w in range(4):
            for h in range(2):
                a("ds_read_b128 %s, v%d offset:%d" % (vr(176 + (w * 2 + h) * 4), (131 + j) if w < 2 else 14, (w & 1) * K2_WREG + h * 16))
        a("s_waitcnt lgkmcnt(0)")
        for e in range(8):
            a("v_add_f32 v%d, v%d, v%d" % (176 + e, 176 + e, 184 + e))
            a("v_add_f32 v%d, v%d, v%d" % (192 + e, 192 + e, 200 + e))
        for e in range(8):
            a("v_add_f32 v%d, v%d, v%d" % (176 + e, 176 + e, 192 + e))
        for src in (140 + j * 4, 152 + j * 4):
            for d in range(4):
                a("v_lshlrev_b32 v%d, 16, v%d" % (184 + 2 * d, src + d))
                a("v_and_b32 v%d, 0xffff0000, v%d" % (185 + 2 * d, src + d))
            for e in range(8):
                a("v_add_f32 v%d, v%d, v%d" % (176 + e, 176 + e, 184 + e))
        for d in range(4):
            a("v_cvt_pk_bf16_f32 v%d, v%d, v%d" % (208 + j * 4 + d, 176 + 2 * d, 177 + 2 * d))
        a("buffer_store_dwordx4 %s, v%d, s[56:59], s42 offen" % (vr(208 + j * 4), 128 + j))
    a.label("K2_DONE")
    stamp(a, 5)
    a.label("K2_END")
    a("s_endpgm")


def kd(name, vgpr, accum, sgpr=102):
    return """
.amdhsa_kernel %s
  .amdhsa_next_free_vgpr %d
  .amdhsa_next_free_sgpr %d
  .amdhsa_accum_offset %d
  .amdhsa_group_segment_fixed_size 0
  .amdhsa_kernarg_size 88
  .amdhsa_user_sgpr_count 2
  .amdhsa_user_sgpr_kernarg_segment_ptr 1
  .amdhsa_system_sgpr_workgroup_id_x 1
.end_amdhsa_kernel
""" % (name, vgpr, sgpr, accum)


def main():
    global PROF
    if len(sys.argv) > 2 and sys.argv[2] == "prof":
        PROF = True
    a = Asm()
    a.raw("; @launch kernel=k1_kernel grid=(256,1,1) block=(512,1,1) lds=%d" % K1_LDS)
    a.raw("; @launch kernel=k2_kernel grid=(256,1,1) block=(256,1,1) lds=%d" % K2_LDS)
    a.raw('.amdgcn_target "amdgcn-amd-amdhsa--gfx950"')
    a.raw(".text")
    gen_k1(a)
    gen_k2(a)
    a.raw('.section .rodata,"a"')
    a.raw(".p2align 6")
    a.raw(kd("k1_kernel", 256, 256))
    a.raw(".p2align 6")
    a.raw(kd("k2_kernel", 336, 256))
    out = sys.argv[1] if len(sys.argv) > 1 else "cdna_kernels/%s.s" % NAME
    open(out, "w").write(a.text())


if __name__ == "__main__":
    main()
```

```python
import sys

NAME = "parallel_sum__linear_attn_block__mixer_channel_mlp__prompt"

WS_AP = 0
SZ_AP = 128 * 68 * 1024
WS_PB = 0x900000
SZ_PB = 8 * 68 * 5120
WS_Z = 0xC00000
WS_SLAB = 0xC10000
SLAB_STRIDE = 7168
WS_PROF = 0x1000000

SZ_X = 2048 * 640 * 2
SZ_WQKV = 640 * 1920 * 2
SZ_WO = 640 * 640 * 2
SZ_W1 = 640 * 1536 * 2
SZ_B1 = 1536 * 2
SZ_W2 = 1536 * 640 * 2
SZ_B2 = 640 * 2
SZ_OUT = 2048 * 640 * 2
OOB = 0x7ffffff0
PROF = False
PROF2 = False


class Asm:
    def __init__(self):
        self.lines = []
        self.prof_base = 0

    def __call__(self, s):
        for ln in s.strip("\n").split("\n"):
            ln = ln.strip()
            if ln:
                self.lines.append("    " + ln)

    def label(self, l):
        self.lines.append(l + ":")

    def raw(self, s):
        self.lines.append(s)

    def text(self):
        return "\n".join(self.lines) + "\n"


class Q:
    def __init__(self, a, name, cap):
        self.a, self.name, self.cap, self.q = a, name, cap, []

    def add(self, tag):
        self.q.append(tag)

    def wait(self, tag):
        idx = [i for i, t in enumerate(self.q) if t == tag]
        if not idx:
            return
        n = len(self.q) - 1 - idx[-1]
        self.a("s_waitcnt %s(%d)" % (self.name, min(n, self.cap)))
        self.q = self.q[idx[-1] + 1:]

    def drain(self):
        self.a("s_waitcnt %s(0)" % self.name)
        self.q = []


class Fill:
    def __init__(self, a, vm, lg):
        self.a, self.vm, self.lg, self.F = a, vm, lg, []

    def __call__(self, txt):
        for ln in txt.strip("\n").split("\n"):
            ln = ln.strip()
            if ln:
                self.F.append(ln)

    def group(self, lst):
        self.F.append(list(lst))

    def lds(self, txt, tag):
        self.F.append(("lds", txt, tag))

    def vmem(self, txt, tag):
        self.F.append(("vmem", txt, tag))

    def lgwait(self, tag):
        self.F.append(("lgwait", tag))

    def vmwait(self, tag):
        self.F.append(("vmwait", tag))

    def call(self, fn):
        self.F.append(("call", fn))

    def pop(self, k):
        while k > 0 and self.F:
            it = self.F.pop(0)
            if isinstance(it, str):
                self.a(it)
            elif isinstance(it, list):
                for x in it:
                    self.a(x)
            elif it[0] == "vmwait":
                self.vm.wait(it[1])
            elif it[0] == "lgwait":
                self.lg.wait(it[1])
            elif it[0] == "lds":
                self.a(it[1])
                self.lg.add(it[2])
            elif it[0] == "vmem":
                self.a(it[1])
                self.vm.add(it[2])
            elif it[0] == "call":
                it[1]()
            k -= 1

    def flush(self):
        self.pop(1 << 30)


def vr(b, n=4):
    return "v[%d:%d]" % (b, b + n - 1)


def ar(b, n=4):
    return "a[%d:%d]" % (b, b + n - 1)


def srd(a, d, base, size, add=0):
    if add:
        a("s_add_u32 s%d, s%d, 0x%x" % (d, base, add))
        a("s_addc_u32 s%d, s%d, 0" % (d + 1, base + 1))
    else:
        a("s_mov_b32 s%d, s%d" % (d, base))
        a("s_mov_b32 s%d, s%d" % (d + 1, base + 1))
    a("s_mov_b32 s%d, 0x%x" % (d + 2, size))
    a("s_mov_b32 s%d, 0x00020000" % (d + 3))


def stamp_init(a, wsbase=16):
    if not PROF:
        return
    srd(a, 72, wsbase, 0x100000, WS_PROF + a.prof_base)
    a("s_lshl_b32 s76, s2, 3")
    a("s_add_u32 s76, s76, s40")
    a("s_lshl_b32 s76, s76, 9")


def stamp(a, i, vt=14):
    if not PROF:
        return
    a("s_memrealtime s[78:79]")
    a("s_waitcnt lgkmcnt(0)")
    a("v_mov_b32 v%d, s78" % vt)
    a("s_mov_b64 s[80:81], exec")
    a("s_mov_b64 exec, 1")
    a("buffer_store_dword v%d, off, s[72:75], s76 offset:%d" % (vt, i * 4))
    a("s_mov_b64 exec, s[80:81]")
    a("s_nop 1")


def rnd(o, x, t):
    o("v_cvt_pk_bf16_f32 v%d, v%d, v%d" % (t, x, x))
    o("v_lshlrev_b32 v%d, 16, v%d" % (x, t))


def perm_voff(a, dst, p_reg, ld, t0, t1, t2):
    a("""
    v_mul_u32_u24 v%d, 6554, v%d
    v_lshrrev_b32 v%d, 16, v%d
    v_mul_u32_u24 v%d, 10, v%d
    v_sub_u32 v%d, v%d, v%d
    v_lshlrev_b32 v%d, 4, v%d
    v_and_b32 v%d, 0xffffffe3, v%d
    v_bfe_u32 v%d, v%d, 4, 1
    v_lshl_or_b32 v%d, v%d, 2, v%d
    v_bfe_u32 v%d, v%d, 2, 2
    v_lshl_or_b32 v%d, v%d, 3, v%d
    """ % (t0, p_reg, t0, t0, t1, t0, t1, p_reg, t1, t1, t1, dst, t0, t2, t0, dst, t2, dst, t2, t0, dst, t2, dst))
    if isinstance(ld, int):
        a("v_mul_u32_u24 v%d, %d, v%d" % (dst, ld, dst))
    else:
        a("v_mul_lo_u32 v%d, v%d, %s" % (dst, dst, ld))
    a("v_add_u32 v%d, v%d, v%d" % (dst, dst, t1))


VA = 96
VACC = 56
VB = 36
V_ST = 20
V_ONES = 24
V_CSF = 28
V_CSA = 32
V_CSB = 16
BSLOT = 10240
BRING = 5 * BSLOT
AREG = 12288
K1_AR = 2 * BRING
K1_TAB = K1_AR + 4 * AREG
TAB_CS = K1_TAB
TAB_ST = K1_TAB + 2048
TAB_B1 = K1_TAB + 4096
K1_LDS = 163840
K1_FLAG = 122880
K1_KVBD = K1_FLAG + 256
KVBD_PITCH = 208
P1ACC = [VACC + 20, VACC + 24, VACC + 28, VACC + 32, VACC + 36, VB + 16, 16, 4]


def a_reg(t, s):
    return VA + (t * 20 + s) * 4


def acc_reg(c, t, p=0):
    if p == 0:
        return VACC + (c * 2 + t) * 4
    return P1ACC[c * 2 + t]


def b_reg(c):
    return VB + c * 4


def emit_stats_final(f, kv):
    s, q, h0, h1 = V_ST, V_ST + 1, V_ST + 2, V_ST + 3
    f("v_add_f32 v%d, v%d, v%d" % (s, s, h0))
    f("v_add_f32 v%d, v%d, v%d" % (q, q, h1))
    vals = [s, q]
    T = [12, 13]
    f.group(["v_mov_b32 v%d, v%d" % (t, v) for v, t in zip(vals, T)] + ["s_nop 1"] +
            ["v_permlane16_swap_b32 v%d, v%d" % (v, t) for v, t in zip(vals, T)] + ["s_nop 1"])
    for v, t in zip(vals, T):
        f("v_add_f32 v%d, v%d, v%d" % (v, v, t))
    f.group(["v_mov_b32 v%d, v%d" % (t, v) for v, t in zip(vals, T)] + ["s_nop 1"] +
            ["v_permlane32_swap_b32 v%d, v%d" % (v, t) for v, t in zip(vals, T)] + ["s_nop 1"])
    for v, t in zip(vals, T):
        f("v_add_f32 v%d, v%d, v%d" % (v, v, t))
    f("v_mul_f32 v%d, 0x3acccccd, v%d" % (s, s))
    f("v_mul_f32 v%d, 0x3acccccd, v%d" % (q, q))
    f("v_fma_f32 v%d, -v%d, v%d, v%d" % (q, s, s, q))
    f("v_max_f32 v%d, 0, v%d" % (q, q))
    f("v_mov_b32 v12, v%d" % s)
    rnd(f, 12, 15)
    f("v_mov_b32 v13, v%d" % q)
    rnd(f, 13, 15)
    f("v_add_f32 v13, 0x3727c5ac, v13")
    rnd(f, 13, 15)
    f.group(["v_sqrt_f32 v13, v13", "s_nop 0"])
    rnd(f, 13, 15)
    f.group(["v_rcp_f32 v14, v13", "s_nop 0"])
    if not kv:
        f("v_sub_f32 v%d, v%d, v12" % (h0, s))
        f("v_mul_f32 v%d, v%d, v14" % (h0, h0))
        rnd(f, h0, 15)
        f("v_mul_f32 v%d, v%d, v14" % (h1, q))
        f("v_mul_f32 v%d, v%d, v14" % (h1, h1))
        rnd(f, h1, 15)
        f("v_add_f32 v%d, 0x3727c5ac, v%d" % (h1, h1))
        rnd(f, h1, 15)
        f.group(["v_sqrt_f32 v%d, v%d" % (h1, h1), "s_nop 0"])
        rnd(f, h1, 15)
        f.group(["v_rcp_f32 v%d, v%d" % (h1, h1), "s_nop 0"])
        f("v_fma_f32 v%d, v12, v14, v%d" % (h0, h0))
        f("v_mul_f32 v11, v%d, v%d" % (h0, h1))
        f("v_mul_f32 v%d, v14, v%d" % (h0, h1))
        f("v_mov_b32 v%d, v11" % h1)
    f("v_mul_f32 v%d, v12, v14" % q)
    f("v_mov_b32 v%d, v14" % s)


def act2(o, kind, lo, hi, e0, e1):
    if kind == "H":
        o("v_fmaak_f32 v%d, v%d, v%d, 0x41b2e92f" % (e0, lo, lo))
        o("v_fmaak_f32 v%d, v%d, v%d, 0x41b2e92f" % (e1, hi, hi))
        o("v_mul_f32 v%d, v%d, v%d" % (e0, e0, lo))
        o("v_mul_f32 v%d, v%d, v%d" % (e1, e1, hi))
        o("v_mul_f32 v%d, 0xbdd2d3e8, v%d" % (e0, e0))
        o("v_mul_f32 v%d, 0xbdd2d3e8, v%d" % (e1, e1))
        o("v_exp_f32 v%d, v%d" % (e0, e0))
        o("v_exp_f32 v%d, v%d" % (e1, e1))
        o("v_add_f32 v%d, 1.0, v%d" % (e0, e0))
        o("v_add_f32 v%d, 1.0, v%d" % (e1, e1))
        o("v_rcp_f32 v%d, v%d" % (e0, e0))
        o("v_rcp_f32 v%d, v%d" % (e1, e1))
        o("v_mul_f32 v%d, v%d, v%d" % (lo, lo, e0))
        o("v_mul_f32 v%d, v%d, v%d" % (hi, hi, e1))
    else:
        o("v_mul_f32 v%d, 0x3fb8aa3b, v%d" % (e0, lo))
        o("v_mul_f32 v%d, 0x3fb8aa3b, v%d" % (e1, hi))
        o("v_exp_f32 v%d, v%d" % (e0, e0))
        o("v_exp_f32 v%d, v%d" % (e1, e1))
        o("v_cmp_lt_f32 s[84:85], 0, v%d" % lo)
        o("v_cmp_lt_f32 s[86:87], 0, v%d" % hi)
        o("v_add_f32 v%d, 1.0, v%d" % (lo, lo))
        o("v_add_f32 v%d, 1.0, v%d" % (hi, hi))
        o("v_cndmask_b32 v%d, v%d, v%d, s[84:85]" % (lo, e0, lo))
        o("v_cndmask_b32 v%d, v%d, v%d, s[86:87]" % (hi, e1, hi))
        o("v_add_f32 v%d, 0x358637bd, v%d" % (lo, lo))
        o("v_add_f32 v%d, 0x358637bd, v%d" % (hi, hi))


def st_off(tile_local, t):
    return ["s_add_u32 s60, s55, %d" % tile_local,
            "s_lshr_b32 s61, s60, 1",
            "s_lshl_b32 s61, s61, 10",
            "s_and_b32 s60, s60, 1",
            "s_lshl_b32 s60, s60, 3",
            "s_add_u32 s61, s61, s60",
            "s_add_u32 s62, s61, s%d" % (56 + t)]


def gen_main(a, kind):
    kv = kind == "KV"
    passes = [5] if kv else [5, 4]
    nst = 10 * len(passes)
    nA, nB = 2, 3
    ld = 3072 if kind == "H" else 3840
    vm = Q(a, "vmcnt", 63)
    lg = Q(a, "lgkmcnt", 15)
    f = Fill(a, vm, lg)

    def dma_b(gs):
        out = []
        so = (gs % 10) * 64 * ld + (gs // 10) * 160
        for q in range(nB):
            def fn(q=q):
                part = (q == nB - 1)
                a("s_add_u32 m0, s46, %d" % ((gs % 5) * BSLOT + q * 1024))
                a("s_add_u32 s45, s43, %d" % so)
                if part:
                    a("s_mov_b32 exec_hi, 0")
                a("buffer_load_dwordx4 v%d, s[24:27], s45 offen lds" % (8 + q))
                if part:
                    a("s_mov_b64 exec, -1")
                vm.add(("S", gs))
            out.append(fn)
        return out

    def dma_a(gs):
        out = []
        for q in range(nA):
            def fn(q=q):
                a("s_add_u32 m0, s47, %d" % ((gs % 3) * 4096 + q * 1024))
                a("s_mov_b32 s45, %d" % (gs * 128 + q * 8 * 1280))
                a("buffer_load_dwordx4 v11, s[20:23], s45 offen lds")
                vm.add(("S", gs))
            out.append(fn)
        return out

    def read_b(s_glob, c):
        gs, ks = s_glob // 2, s_glob & 1
        for hh in range(2):
            a("ds_read_b64_tr_b16 %s, v2 offset:%d" % (vr(b_reg(c) + hh * 2, 2), (gs % 5) * BSLOT + ks * 5120 + hh * 2560 + c * 32))
            lg.add(("B", s_glob, c))

    def read_cs(s_glob):
        gs, ks = s_glob // 2, s_glob & 1
        for hh in range(2):
            a("ds_read_b64_tr_b16 %s, v3 offset:%d" % (vr(V_CSF + hh * 2, 2), (gs % 5) * BSLOT + ks * 5120 + hh * 2560))
            lg.add(("C", s_glob))

    def read_a(gs):
        for ks in range(2):
            for t in range(2):
                a("ds_read_b128 %s, v%d offset:%d" % (vr(a_reg(t, gs * 2 + ks)), 4 + t * 2 + ks, (gs % 3) * 4096))
                lg.add(("A", gs))
        f.lgwait(("A", gs))
        for ks in range(2):
            for i in range(4):
                x = a_reg(0, gs * 2 + ks) + i
                t0, t1 = (12, 13) if (i & 1) == 0 else (14, 15)
                f("v_lshlrev_b32 v%d, 16, v%d" % (t0, x))
                f("v_and_b32 v%d, 0xffff0000, v%d" % (t1, x))
                f("v_add_f32 v%d, v%d, v%d" % (V_ST, V_ST, t0))
                f("v_fmac_f32 v%d, v%d, v%d" % (V_ST + 1, t0, t0))
                f("v_add_f32 v%d, v%d, v%d" % (V_ST + 2, V_ST + 2, t1))
                f("v_fmac_f32 v%d, v%d, v%d" % (V_ST + 3, t1, t1))
        if gs == 9:
            emit_stats_final(f, kv)

    def sync(gs):
        lg.drain()
        if PROF2:
            stamp(a, 8 + 3 * gs, 15)
        vm.wait(("S", gs))
        if PROF2:
            stamp(a, 9 + 3 * gs, 15)
        a("s_barrier")
        if PROF2:
            stamp(a, 10 + 3 * gs, 15)
        d = []
        if gs + 4 < nst:
            d += dma_b(gs + 4)
        if gs + 2 < 10:
            d += dma_a(gs + 2)
        return d

    yield ("pre", vm, lg, f)
    for fn in dma_a(0) + dma_b(0) + dma_a(1) + dma_b(1) + dma_b(2) + dma_b(3):
        fn()
    for r in range(4):
        a("v_mov_b32 v%d, 0" % (V_ST + r))
        a("v_mov_b32 v%d, 0x3f803f80" % (V_ONES + r))
    yield ("prologue", vm, lg, f)
    dm = sync(0)
    stamp(a, 1)
    read_a(0)
    for c in range(5):
        read_b(0, c)
    read_cs(0)
    for p, NT in enumerate(passes):
        for s in range(20):
            sg = p * 20 + s
            last = sg == 20 * len(passes) - 1
            if (sg & 1) and not last:
                for fn in dm:
                    fn()
                dm = sync((sg + 1) // 2)
                if (sg + 1) // 2 < 10:
                    read_a((sg + 1) // 2)
            NTn = passes[(sg + 1) // 20] if not last else 0
            if p == 0:
                lg.wait(("A", s // 2))
            nf = 2
            for c in range(NT):
                lg.wait(("B", sg, c))
                for t in range(2):
                    d = vr(acc_reg(c, t, p))
                    cin = "0" if s == 0 else d
                    A_, B_ = vr(a_reg(t, s)), vr(b_reg(c))
                    if kv:
                        a("v_mfma_f32_16x16x32_bf16 %s, %s, %s, %s" % (d, A_, B_, cin))
                    else:
                        a("v_mfma_f32_16x16x32_bf16 %s, %s, %s, %s" % (d, B_, A_, cin))
                    if t == 0 and dm:
                        dm.pop(0)()
                    f.pop(nf + (1 if (p == 0 and c == 0) else 0))
                if p == 0 and c == 4:
                    lbl = "K1_%s_CSB%d" % (kind, s)
                    a("s_cmp_lg_u32 s50, %d" % (s & 3))
                    a("s_cbranch_scc1 %s" % lbl)
                    a("v_mfma_f32_16x16x32_bf16 %s, %s, %s, %s" % (vr(V_CSB), vr(V_ONES), vr(b_reg(4)), "0" if s < 4 else vr(V_CSB)))
                    a.label(lbl)
                if c < NTn:
                    read_b(sg + 1, c)
            lg.wait(("C", sg))
            a("v_mfma_f32_16x16x32_bf16 %s, %s, %s, %s" % (vr(V_CSA), vr(V_ONES), vr(V_CSF), "0" if s == 0 else vr(V_CSA)))
            f.pop(nf)
            if not last:
                read_cs(sg + 1)
        f.flush()
        yield ("passend", p, vm, lg, f)


def gen_qh(a, kind):
    g = gen_main(a, kind)
    _, vm, lg, f = next(g)
    a("""
    v_lshrrev_b32 v12, 1, v1
    v_mul_u32_u24 v12, 1280, v12
    v_and_b32 v13, 1, v1
    v_lshl_add_u32 v12, v13, 4, v12
    s_sub_u32 s62, s2, 128
    s_and_b32 s61, s62, 15
    s_mul_i32 s61, s61, 3
    s_lshr_b32 s62, s62, 4
    s_lshl_b32 s63, s50, 11
    s_add_u32 s63, s63, %d
    s_mul_i32 s60, s51, %d
    s_add_u32 s63, s63, s60
    """ % (4 * BSLOT, BRING))
    for q in range(2):
        a("""
        s_lshl_b32 s84, s40, 1
        s_add_u32 s84, s84, %d
        s_mul_i32 s85, s84, 52
        s_lshr_b32 s85, s85, 8
        s_mul_i32 s86, s85, 5
        s_sub_u32 s86, s84, s86
        s_add_u32 s87, s61, s85
        s_mul_i32 s60, s87, %d
        s_mul_i32 s45, s62, 160
        s_add_u32 s60, s60, s45
        s_lshl_b32 s45, s86, 5
        s_add_u32 s60, s60, s45
        s_add_u32 m0, s63, %d
        s_mul_i32 s45, s62, 68
        buffer_load_dwordx4 v12, s[64:67], s60 offen lds
        s_add_u32 s45, s45, s87
        s_mul_i32 s45, s45, 5
        s_add_u32 s45, s45, s86
        s_lshl_b32 s45, s45, 10
        s_cmp_ge_u32 s84, 15
        s_cselect_b32 s%d, 0x%x, s45
        """ % (q, 32 * 1280, q * 1024, 88 + q, OOB))
        vm.add("RP")
    if kind == "H":
        a("""
        v_lshl_add_u32 v13, s50, 6, v1
        v_lshlrev_b32 v14, 1, v13
        buffer_load_ushort v15, v14, s[32:35], s43 offen
        """)
        vm.add("RP")
    next(g)
    a("""
    v_lshrrev_b32 v12, 2, v1
    v_lshlrev_b32 v12, 5, v12
    v_and_b32 v14, 3, v1
    v_lshl_add_u32 v12, v14, 3, v12
    v_add_u32 v12, s63, v12
    """)
    vm.wait("RP")
    for q in range(2):
        for hh in range(2):
            a("ds_read_b64_tr_b16 %s, v12 offset:%d" % (vr(80 + q * 4 + hh * 2, 2), q * 1024 + hh * 512))
            lg.add("RT")
    if kind == "H":
        a("""
        v_lshlrev_b32 v15, 16, v15
        s_mul_i32 s60, s51, 576
        s_add_u32 s60, s60, %d
        v_lshl_add_u32 v14, v13, 2, s60
        v_cmp_gt_u32 vcc, 144, v13
        s_and_saveexec_b64 s[62:63], vcc
        ds_write_b32 v14, v15
        s_mov_b64 exec, s[62:63]
        """ % TAB_B1)
        lg.add("RT")
    lg.wait("RT")
    for q in range(2):
        a("buffer_store_dwordx4 %s, v0, s[68:71], s%d offen" % (vr(80 + q * 4), 88 + q))
        vm.add("RS")

    def tab_addrs(vcs, vb1):
        a("""
        v_lshrrev_b32 v%d, 4, v1
        v_lshlrev_b32 v%d, 4, v%d
        s_mul_i32 s60, s51, 576
        s_add_u32 s60, s60, %d
        v_add_u32 v%d, s60, v%d
        s_lshl_b32 s60, s51, 10
        s_add_u32 s60, s60, %d
        v_add_u32 v%d, s60, v%d
        """ % (vcs, vcs, vcs, TAB_B1, vb1, vcs, TAB_CS, vcs, vcs))

    ev = next(g)
    assert ev[0] == "passend"
    stamp(a, 2)
    a("""
    s_nop 7
    v_and_b32 v11, 15, v1
    s_lshl_b32 s60, s51, 10
    s_lshl_b32 s61, s50, 6
    s_add_u32 s60, s60, s61
    s_add_u32 s60, s60, %d
    v_lshl_add_u32 v12, v11, 2, s60
    ds_write_b32 v12, v%d
    ds_write_b32 v12, v%d offset:256
    s_lshl_b32 s60, s50, 9
    s_add_u32 s60, s60, %d
    s_lshl_b32 s61, s51, 8
    s_add_u32 s61, s61, s60
    v_lshl_add_u32 v13, v11, 3, s61
    ds_write_b64 v13, v[%d:%d]
    ds_write_b64 v13, v[%d:%d] offset:128
    s_xor_b32 s61, s51, 1
    s_lshl_b32 s61, s61, 8
    s_add_u32 s61, s61, s60
    v_lshl_add_u32 v13, v11, 3, s61
    """ % (TAB_CS, V_CSA, V_CSB, TAB_ST, V_ST, V_ST + 1, V_ST + 2, V_ST + 3))
    lg.drain()
    a("s_barrier")
    if kind == "H":
        a("v_mov_b32 v%d, v%d" % (V_ST, V_ST + 2))
        a("v_mov_b32 v%d, v%d" % (V_ST + 1, V_ST + 3))
    a("ds_read_b64 v[%d:%d], v13 offset:%d" % (V_ST + 2, V_ST + 3, 128 if kind == "H" else 0))
    lg.add("ST")
    tab_addrs(11, 19)
    CSQ = [V_CSA, 4]
    B1Q = [VB + 16, 12]

    def rd(c, base):
        a("ds_read_b128 %s, v11 offset:%d" % (vr(CSQ[c & 1]), base + c * 64))
        lg.add(("X", c))
        if kind == "H":
            a("ds_read_b128 %s, v19 offset:%d" % (vr(B1Q[c & 1]), c * 64))
            lg.add(("X", c))

    def conv(c, p, tmp):
        cs, b1 = CSQ[c & 1], B1Q[c & 1]
        for t in range(2):
            al, be = V_ST + 2 * t, V_ST + 2 * t + 1
            b = acc_reg(c, t, p)
            for r in range(4):
                if kind == "H":
                    a("v_fma_f32 v%d, -v%d, v%d, v%d" % (tmp, be, cs + r, b1 + r))
                    a("v_fma_f32 v%d, v%d, v%d, v%d" % (b + r, b + r, al, tmp))
                else:
                    a("v_mul_f32 v%d, v%d, v%d" % (tmp, be, cs + r))
                    a("v_fma_f32 v%d, v%d, v%d, -v%d" % (b + r, b + r, al, tmp))

    rd(0, 0)
    for c in range(5):
        if c + 1 < 4:
            rd(c + 1, 0)
        elif c + 1 == 4:
            pass
        if c == 4:
            a("ds_read_b128 %s, v11 offset:256" % vr(CSQ[0]))
            lg.add(("X", 4))
            a("ds_read_b128 %s, v11 offset:320" % vr(CSQ[1]))
            lg.add(("X", 4))
            if kind == "H":
                a("ds_read_b128 %s, v19 offset:256" % vr(B1Q[0]))
                lg.add(("X", 4))
            lg.wait(("X", 4))
            for r in range(4):
                a("v_add_f32 v%d, v%d, v%d" % (CSQ[0] + r, CSQ[0] + r, CSQ[1] + r))
            a("ds_read_b128 %s, v11 offset:384" % vr(CSQ[1]))
            a("ds_read_b128 %s, v11 offset:448" % vr(B1Q[1]))
            a("s_waitcnt lgkmcnt(0)")
            lg.q = []
            for r in range(4):
                a("v_add_f32 v%d, v%d, v%d" % (CSQ[1] + r, CSQ[1] + r, B1Q[1] + r))
            for r in range(4):
                a("v_add_f32 v%d, v%d, v%d" % (CSQ[0] + r, CSQ[0] + r, CSQ[1] + r))
        else:
            lg.wait(("X", c))
        conv(c, 0, 16)
        for t in range(2):
            b = acc_reg(c, t, 0)
            pk = VACC + c * 4 + t * 2
            a("v_cvt_pk_bf16_f32 v%d, v%d, v%d" % (pk, b, b + 1))
            a("v_cvt_pk_bf16_f32 v%d, v%d, v%d" % (pk + 1, b + 2, b + 3))
    a("s_nop 1")
    for c in range(5):
        for t in range(2):
            pk = VACC + c * 4 + t * 2
            for h in range(2):
                f("v_lshlrev_b32 v12, 16, v%d" % (pk + h))
                f("v_and_b32 v13, 0xffff0000, v%d" % (pk + h))
                act2(f, kind, 12, 13, 14, 15)
                f("v_cvt_pk_bf16_f32 v%d, v12, v13" % (pk + h))
            f.group(st_off(c, t))
            f.vmem("buffer_store_dwordx2 %s, v0, s[28:31], s62 offen" % vr(pk, 2), "ST")
    ev = next(g)
    assert ev[0] == "passend"
    stamp(a, 3)
    a("""
    s_nop 7
    v_and_b32 v11, 15, v1
    s_lshl_b32 s60, s51, 10
    s_lshl_b32 s61, s50, 6
    s_add_u32 s60, s60, s61
    s_add_u32 s60, s60, %d
    v_lshl_add_u32 v12, v11, 2, s60
    ds_write_b32 v12, v%d
    """ % (TAB_CS + 512, V_CSA))
    lg.drain()
    a("s_barrier")
    tab_addrs(11, 36)
    CSQ[0], CSQ[1] = 40, 44
    B1Q[0], B1Q[1] = 48, 56

    def rd1(c):
        a("ds_read_b128 %s, v11 offset:%d" % (vr(CSQ[c & 1]), 512 + c * 64))
        lg.add(("X", c))
        if kind == "H":
            a("ds_read_b128 %s, v36 offset:%d" % (vr(B1Q[c & 1]), 320 + c * 64))
            lg.add(("X", c))
    rd1(0)
    for c in range(4):
        if c + 1 < 4:
            rd1(c + 1)
        lg.wait(("X", c))
        conv(c, 1, 37)
        for t in range(2):
            b = acc_reg(c, t, 1)
            act2(a, kind, b, b + 1, 12, 13)
            act2(a, kind, b + 2, b + 3, 14, 15)
            a("v_cvt_pk_bf16_f32 v%d, v%d, v%d" % (b, b, b + 1))
            a("v_cvt_pk_bf16_f32 v%d, v%d, v%d" % (b + 1, b + 2, b + 3))
            for x in st_off(5 + c, t):
                a(x)
            a("buffer_store_dwordx2 %s, v0, s[28:31], s62 offen" % vr(b, 2))
    stamp(a, 4)


def emit_phi4(a, src, dst2, tmp, smask):
    t = [tmp + i for i in range(4)]
    e = [tmp + 4 + i for i in range(4)]
    a("v_cvt_pk_bf16_f32 v%d, v%d, v%d" % (e[0], src, src + 1))
    a("v_cvt_pk_bf16_f32 v%d, v%d, v%d" % (e[1], src + 2, src + 3))
    a("v_lshlrev_b32 v%d, 16, v%d" % (t[0], e[0]))
    a("v_and_b32 v%d, 0xffff0000, v%d" % (t[1], e[0]))
    a("v_lshlrev_b32 v%d, 16, v%d" % (t[2], e[1]))
    a("v_and_b32 v%d, 0xffff0000, v%d" % (t[3], e[1]))
    for i in range(4):
        a("v_mul_f32 v%d, 0x3fb8aa3b, v%d" % (e[i], t[i]))
        a("v_cmp_lt_f32 s[%d:%d], 0, v%d" % (smask + 2 * i, smask + 2 * i + 1, t[i]))
    for i in range(4):
        a("v_exp_f32 v%d, v%d" % (e[i], e[i]))
        a("v_add_f32 v%d, 1.0, v%d" % (t[i], t[i]))
    for i in range(4):
        a("v_cndmask_b32 v%d, v%d, v%d, s[%d:%d]" % (t[i], e[i], t[i], smask + 2 * i, smask + 2 * i + 1))
    for i in range(4):
        a("v_add_f32 v%d, 0x358637bd, v%d" % (t[i], t[i]))
    a("v_cvt_pk_bf16_f32 v%d, v%d, v%d" % (dst2, t[0], t[1]))
    a("v_cvt_pk_bf16_f32 v%d, v%d, v%d" % (dst2 + 1, t[2], t[3]))


def gen_kv(a):
    g = gen_main(a, "KV")
    _, vm, lg, f = next(g)
    next(g)
    ev = next(g)
    assert ev[0] == "passend"
    stamp(a, 2)
    a("""
    v_lshlrev_b32 v5, 4, v1
    v_lshrrev_b32 v6, 4, v1
    v_lshlrev_b32 v6, 2, v6
    v_and_b32 v7, 15, v1
    v_lshl_add_u32 v0, s40, 6, v1
    """)
    a("""
    s_nop 3
    s_lshl_b32 s60, s51, 10
    s_lshl_b32 s61, s50, 6
    s_add_u32 s61, s60, s61
    s_add_u32 s61, s61, %d
    v_lshl_add_u32 v12, v7, 2, s61
    ds_write_b32 v12, v%d
    ds_write_b32 v12, v%d offset:256
    s_lshl_b32 s61, s50, 9
    s_add_u32 s61, s61, %d
    s_lshl_b32 s62, s51, 6
    s_add_u32 s62, s62, s61
    v_lshl_add_u32 v13, v7, 2, s62
    ds_write_b32 v13, v%d
    ds_write_b32 v13, v%d offset:128
    s_waitcnt vmcnt(0) lgkmcnt(0)
    s_barrier
    s_add_u32 s60, s60, %d
    v_lshl_add_u32 v12, v7, 2, s60
    v_lshl_add_u32 v13, v6, 2, s62
    s_xor_b32 s62, s51, 1
    s_lshl_b32 s62, s62, 6
    s_add_u32 s62, s62, s61
    v_lshl_add_u32 v14, v6, 2, s62
    """ % (TAB_CS, V_CSA, V_CSB, TAB_ST, V_ST, V_ST + 1, TAB_CS))
    lg.q = []
    vm.q = []
    for c in range(4):
        a("ds_read_b32 v%d, v12 offset:%d" % (36 + c, c * 64))
        a("ds_read_b32 v%d, v12 offset:%d" % (16 + c, 256 + c * 64))
    for t in range(2):
        a("ds_read_b128 %s, v%d" % (vr(40 + t * 4), 13 + t))
        a("ds_read_b128 %s, v%d offset:128" % (vr(48 + t * 4), 13 + t))
    a("""
    s_waitcnt lgkmcnt(0)
    v_add_f32 v16, v16, v17
    v_add_f32 v18, v18, v19
    v_add_f32 v16, v16, v18
    """)
    for c in range(5):
        cs = 36 + c if c < 4 else 16
        for t in range(2):
            b = acc_reg(c, t)
            for r in range(4):
                a("v_mul_f32 v12, v%d, v%d" % (48 + t * 4 + r, cs))
                a("v_fma_f32 v%d, v%d, v%d, -v12" % (b + r, b + r, 40 + t * 4 + r))
    FR = 96
    a("""
    s_cmp_eq_u32 s51, 1
    s_cbranch_scc1 K1_KV_V
    """)
    for c in range(5):
        for t in range(2):
            emit_phi4(a, acc_reg(c, t), FR + c * 4 + t * 2, 120, 52)
    a("s_branch K1_KV_WR")
    a.label("K1_KV_V")
    for c in range(5):
        for t in range(2):
            s_ = acc_reg(c, t)
            a("v_cvt_pk_bf16_f32 v%d, v%d, v%d" % (FR + c * 4 + (t ^ 1) * 2, s_, s_ + 1))
            a("v_cvt_pk_bf16_f32 v%d, v%d, v%d" % (FR + c * 4 + (t ^ 1) * 2 + 1, s_ + 2, s_ + 3))
    a.label("K1_KV_WR")
    a("""
    s_mul_i32 s52, s51, 20480
    s_lshl_b32 s54, s50, 10
    s_add_u32 s52, s52, s54
    v_add_u32 v13, s52, v5
    """)
    for c in range(5):
        a("ds_write_b128 v13, %s offset:%d" % (vr(FR + c * 4), c * 4096))
    a("""
    s_cmp_eq_u32 s51, 0
    s_cbranch_scc1 K1_KV_NOONES
    ds_write_b128 v13, %s offset:20480
    """ % vr(V_ONES))
    a.label("K1_KV_NOONES")
    a("""
    s_waitcnt lgkmcnt(0)
    s_barrier
    """)
    stamp(a, 3)
    pairs = [(0, 0), (0, 1), (1, 0), (1, 1), (1, 2), (2, 1), (2, 2), (2, 3), (3, 2), (3, 3), (3, 4), (4, 3), (4, 4)]
    jobs = pairs + [(i, 5) for i in range(5)]
    tabA = sum(((jobs[j][0] | (jobs[j][1] << 3)) << (6 * j)) for j in range(10))
    tabB = sum(((jobs[j][0] | (jobs[j][1] << 3)) << (6 * (j - 10))) for j in range(10, 18))
    a("s_mov_b32 s56, 0x%x" % (tabA & 0xffffffff))
    a("s_mov_b32 s57, 0x%x" % (tabA >> 32))
    a("s_mov_b32 s58, 0x%x" % (tabB & 0xffffffff))
    a("s_mov_b32 s59, 0x%x" % (tabB >> 32))
    a("""
    s_lshl_b32 s62, s48, 4
    s_add_u32 s62, s62, s49
    s_mul_i32 s62, s62, %d
    """ % SLAB_STRIDE)
    for i in range(3):
        lbl = "K1_JOB_SKIP_%d" % i
        a("s_add_u32 s60, s40, %d" % (8 * i))
        if i == 2:
            a("s_cmp_ge_u32 s60, 18")
            a("s_cbranch_scc1 %s" % lbl)
        a("""
        s_cmp_ge_u32 s60, 10
        s_cselect_b32 s64, s58, s56
        s_cselect_b32 s65, s59, s57
        s_cselect_b32 s61, 10, 0
        s_sub_u32 s60, s60, s61
        s_mul_i32 s60, s60, 6
        s_lshr_b64 s[64:65], s[64:65], s60
        s_and_b32 s66, s64, 7
        s_lshr_b32 s67, s64, 3
        s_and_b32 s67, s67, 7
        s_lshl_b32 s60, s66, 12
        s_lshl_b32 s61, s67, 12
        s_add_u32 s61, s61, 20480
        v_add_u32 v13, s60, v5
        v_add_u32 v14, s61, v5
        """)
        R0 = 128 + i * 40
        for rg in range(4):
            a("ds_read_b128 %s, v13 offset:%d" % (vr(R0 + rg * 4), rg * 1024))
            a("ds_read_b128 %s, v14 offset:%d" % (vr(R0 + 16 + rg * 4), rg * 1024))
        a("s_waitcnt lgkmcnt(0)")
        D = R0 + 32
        for rg in range(4):
            a("v_mfma_f32_16x16x32_bf16 %s, %s, %s, %s" % (vr(D), vr(R0 + rg * 4), vr(R0 + 16 + rg * 4), "0" if rg == 0 else vr(D)))
        AD = R0 + 36
        a("""
        s_lshl_b32 s60, s66, 4
        s_lshl_b32 s61, s67, 4
        v_add_u32 v12, s60, v6
        v_add_u32 v13, s61, v7
        """)
        for r in range(4):
            a("""
            v_add_u32 v14, %d, v12
            v_mul_u32_u24 v15, 205, v14
            v_lshrrev_b32 v15, 12, v15
            v_mul_u32_u24 v15, 20, v15
            v_sub_u32 v15, v13, v15
            v_mul_u32_u24 v%d, 20, v14
            v_add_u32 v%d, v%d, v15
            v_lshlrev_b32 v%d, 2, v%d
            v_cmp_gt_u32 vcc, 20, v15
            v_mov_b32 v15, 0x%x
            s_nop 0
            v_cndmask_b32 v%d, v15, v%d, vcc
            """ % (r, AD + r, AD + r, AD + r, AD + r, AD + r, OOB, AD + r, AD + r))
        lz = "K1_JOB_NZ_%d" % i
        a("s_cmp_lg_u32 s67, 5")
        a("s_cbranch_scc1 %s" % lz)
        a("v_cmp_eq_u32 vcc, 0, v7")
        a("v_mov_b32 v15, 0x%x" % OOB)
        for r in range(4):
            a("v_add_u32 v14, %d, v12" % (1600 + r))
            a("v_lshlrev_b32 v14, 2, v14")
            a("v_cndmask_b32 v%d, v15, v14, vcc" % (AD + r))
        a.label(lz)
        a("s_nop 4")
        for r in range(4):
            a("buffer_store_dword v%d, v%d, s[28:31], s62 offen sc1" % (D + r, AD + r))
        a.label(lbl)
    stamp(a, 4)
    srd(a, 24, 8, SZ_WO)
    for q in range(15):
        a("v_add_u32 v13, %d, v1" % (q * 64))
        perm_voff(a, 100 + q, 13, 1280, 15, 16, 17)
    a("""
    s_mul_i32 s45, s48, %d
    s_mul_i32 s60, s40, 160
    s_add_u32 s45, s45, s60
    s_mul_i32 s46, s40, 15360
    s_waitcnt vmcnt(0)
    s_barrier
    s_cmp_lg_u32 s40, 0
    s_cbranch_scc1 K1_KV_NOATOM
    s_lshl_b32 s60, s48, 5
    v_mov_b32 v14, 1
    v_mov_b32 v13, s60
    s_mov_b64 exec, 1
    buffer_atomic_add v14, v13, s[36:39], 0 offen sc0 sc1
    s_mov_b64 exec, -1
    """ % (80 * 1280))
    a.label("K1_KV_NOATOM")
    for q in range(15):
        a("""
        s_add_u32 m0, s46, %d
        s_nop 0
        buffer_load_dwordx4 v%d, s[24:27], s45 offen lds
        """ % (q * 1024, 100 + q))
    a("""
    v_lshlrev_b32 v13, 4, v0
    v_add_u32 v13, %d, v13
    v_mov_b32 v16, 0
    v_mov_b32 v17, 0
    v_mov_b32 v18, 0
    v_mov_b32 v19, 0
    ds_write_b128 v13, v[16:19]
    ds_write_b128 v13, v[16:19] offset:8192
    v_cmp_gt_u32 vcc, 16, v0
    s_and_saveexec_b64 s[64:65], vcc
    ds_write_b128 v13, v[16:19] offset:16384
    s_mov_b64 exec, s[64:65]
    s_cmp_lg_u32 s40, 0
    s_cbranch_scc1 K1_KV_WAITFLAG
    s_waitcnt vmcnt(15)
    v_mov_b32 v13, %d
    s_mov_b64 exec, 1
    ds_write_b32 v13, v14
    s_mov_b64 exec, -1
    """ % (K1_KVBD, K1_FLAG))
    a.label("K1_KV_WAITFLAG")
    a("""
    s_waitcnt lgkmcnt(0)
    s_barrier
    v_mov_b32 v13, %d
    ds_read_b32 v14, v13
    s_waitcnt lgkmcnt(0)
    v_readfirstlane_b32 s60, v14
    s_cmp_lg_u32 s60, 15
    s_cbranch_scc1 K1_KV_EXIT
    """ % K1_FLAG)
    stamp(a, 5)
    a("buffer_inv sc1")
    a("""
    s_lshl_b32 s62, s48, 4
    s_mul_i32 s62, s62, %d
    v_lshlrev_b32 v12, 4, v0
    v_mov_b32 v13, 0x%x
    v_cmp_gt_u32 vcc, 420, v0
    s_nop 1
    v_cndmask_b32 v12, v13, v12, vcc
    """ % (SLAB_STRIDE, OOB))
    for rb in range(16):
        a("s_add_u32 s60, s62, %d" % (rb * SLAB_STRIDE))
        a("buffer_load_dwordx4 %s, v12, s[28:31], s60 offen sc1" % vr(96 + rb * 4))
    a("""
    v_lshrrev_b32 v13, 2, v1
    v_mul_u32_u24 v2, 160, v13
    v_and_b32 v13, 3, v1
    v_lshl_add_u32 v2, v13, 3, v2
    v_add_u32 v2, s46, v2
    v_mul_u32_u24 v3, %d, v7
    v_lshl_add_u32 v3, v6, 2, v3
    v_add_u32 v3, %d, v3
    s_waitcnt vmcnt(16)
    """ % (KVBD_PITCH, K1_KVBD))
    for c in range(5):
        for s in range(3):
            for hh in range(2):
                a("ds_read_b64_tr_b16 %s, v2 offset:%d" % (vr(160 + (c * 3 + s) * 4 + hh * 2, 2), s * 5120 + hh * 2560 + c * 32))
        a("s_waitcnt lgkmcnt(0)")
    srd(a, 32, 16, 1280, WS_Z)
    a("""
    v_mul_u32_u24 v15, 13108, v0
    v_lshrrev_b32 v15, 16, v15
    v_mul_u32_u24 v16, 5, v15
    v_sub_u32 v16, v0, v16
    v_lshlrev_b32 v16, 2, v16
    v_mul_u32_u24 v17, 205, v15
    v_lshrrev_b32 v17, 12, v17
    v_mul_u32_u24 v17, 20, v17
    v_add_u32 v16, v16, v17
    v_mul_u32_u24 v17, %d, v15
    v_lshl_add_u32 v17, v16, 1, v17
    v_add_u32 v17, %d, v17
    v_subrev_u32 v15, 400, v0
    s_mul_i32 s60, s48, 20
    v_add_u32 v14, s60, v15
    v_lshrrev_b32 v13, 3, v14
    v_lshlrev_b32 v13, 6, v13
    v_and_b32 v16, 3, v14
    v_lshl_add_u32 v13, v16, 4, v13
    v_bfe_u32 v16, v14, 2, 1
    v_lshl_add_u32 v13, v16, 3, v13
    v_cmp_gt_u32 vcc, 20, v15
    v_mov_b32 v16, 0x%x
    s_nop 0
    v_cndmask_b32 v15, v16, v13, vcc
    """ % (KVBD_PITCH, K1_KVBD, OOB))
    for st, nw in ((8, 8), (4, 0), (2, 0), (1, 0)):
        if st == 8:
            a("s_waitcnt vmcnt(0)")
        for rb in range(st):
            for e in range(4):
                a("v_add_f32 v%d, v%d, v%d" % (96 + rb * 4 + e, 96 + rb * 4 + e, 96 + (rb + st) * 4 + e))
    a("""
    v_cvt_pk_bf16_f32 v18, v96, v97
    v_cvt_pk_bf16_f32 v19, v98, v99
    v_cmp_gt_u32 vcc, 400, v0
    s_and_saveexec_b64 s[64:65], vcc
    ds_write_b64 v17, v[18:19]
    s_mov_b64 exec, s[64:65]
    buffer_store_dwordx2 v[18:19], v15, s[32:35], 0 offen
    s_waitcnt lgkmcnt(0)
    s_barrier
    """)
    stamp(a, 6)
    ksteps = [[0], [0, 1], [0, 1], [1, 2], [1, 2]]
    for aa in range(5):
        for s in ksteps[aa]:
            a("ds_read_b128 %s, v3 offset:%d" % (vr(96 + (aa * 3 + s) * 4), aa * 16 * KVBD_PITCH + s * 64))
    a("""
    s_mul_i32 s61, s40, 68
    s_add_u32 s61, s61, 48
    s_mul_i32 s60, s48, 5
    s_waitcnt lgkmcnt(0)
    """)
    for aa in range(5):
        for c in range(5):
            d = 16 + c * 4 + (aa & 1) * 20
            for i, s in enumerate(ksteps[aa]):
                a("v_mfma_f32_16x16x32_bf16 %s, %s, %s, %s" % (vr(d), vr(96 + (aa * 3 + s) * 4), vr(160 + (c * 3 + s) * 4), "0" if i == 0 else vr(d)))
        a("""
        s_add_u32 s62, s60, %d
        s_lshr_b32 s63, s62, 1
        s_add_u32 s63, s63, s61
        s_mul_i32 s63, s63, 5120
        s_and_b32 s62, s62, 1
        s_lshl_b32 s62, s62, 3
        s_add_u32 s%d, s63, s62
        """ % (aa, 84 + aa))
        if aa > 0:
            pa = aa - 1
            o = 60 + (pa & 1) * 10
            for c in range(5):
                d = 16 + c * 4 + (pa & 1) * 20
                a("v_cvt_pk_bf16_f32 v%d, v%d, v%d" % (o + c * 2, d, d + 1))
                a("v_cvt_pk_bf16_f32 v%d, v%d, v%d" % (o + 1 + c * 2, d + 2, d + 3))
            for c in range(5):
                if c < 4:
                    a("buffer_store_dwordx2 %s, v5, s[68:71], s%d offen offset:%d" % (vr(o + c * 2, 2), 84 + pa, c * 1024))
                else:
                    a("s_add_u32 s62, s%d, 4096" % (84 + pa))
                    a("buffer_store_dwordx2 %s, v5, s[68:71], s62 offen" % vr(o + c * 2, 2))
    a("s_nop 7")
    a("s_nop 1")
    pa = 4
    o = 60
    for c in range(5):
        d = 16 + c * 4
        a("v_cvt_pk_bf16_f32 v%d, v%d, v%d" % (o + c * 2, d, d + 1))
        a("v_cvt_pk_bf16_f32 v%d, v%d, v%d" % (o + 1 + c * 2, d + 2, d + 3))
    for c in range(5):
        if c < 4:
            a("buffer_store_dwordx2 %s, v5, s[68:71], s%d offen offset:%d" % (vr(o + c * 2, 2), 84 + pa, c * 1024))
        else:
            a("s_add_u32 s62, s%d, 4096" % (84 + pa))
            a("buffer_store_dwordx2 %s, v5, s[68:71], s62 offen" % vr(o + c * 2, 2))
    stamp(a, 7)
    a.label("K1_KV_EXIT")
    a("s_waitcnt vmcnt(0)")


def gen_k1(a):
    a.raw(".globl k1_kernel")
    a.raw(".p2align 8")
    a.raw(".type k1_kernel,@function")
    a.label("k1_kernel")
    a("""
    s_cmp_ge_u32 s2, 256
    s_cbranch_scc1 K1_END
    s_load_dwordx2 s[4:5], s[0:1], 0
    s_load_dwordx2 s[6:7], s[0:1], 8
    s_load_dwordx2 s[8:9], s[0:1], 16
    s_load_dwordx2 s[10:11], s[0:1], 32
    s_load_dwordx2 s[12:13], s[0:1], 40
    s_load_dwordx2 s[14:15], s[0:1], 72
    s_load_dwordx2 s[16:17], s[0:1], 80
    s_load_dwordx2 s[18:19], s[0:1], 48
    v_and_b32 v1, 63, v0
    v_lshrrev_b32 v13, 6, v0
    s_nop 0
    v_readfirstlane_b32 s40, v13
    v_lshlrev_b32 v0, 4, v1
    """)
    a("""
    s_and_b32 s50, s40, 3
    s_lshr_b32 s51, s40, 2
    s_lshr_b32 s49, s2, 3
    s_and_b32 s49, s49, 15
    s_and_b32 s48, s2, 7
    s_lshl_b32 s52, s49, 7
    s_lshl_b32 s60, s40, 4
    s_add_u32 s52, s52, s60
    s_mul_i32 s53, s50, 160
    s_mul_i32 s46, s51, %d
    s_lshl_b32 s60, s53, 4
    s_add_u32 s46, s46, s60
    s_lshr_b32 s60, s40, 1
    s_mul_i32 s47, s60, %d
    s_and_b32 s60, s40, 1
    s_lshl_b32 s60, s60, 11
    s_add_u32 s47, s47, s60
    s_add_u32 s47, s47, %d
    s_mul_i32 s54, s50, %d
    s_add_u32 s54, s54, %d
    s_lshl_b32 s60, s49, 3
    s_lshl_b32 s61, s50, 1
    s_add_u32 s60, s60, s61
    s_add_u32 s56, s60, s51
    s_xor_b32 s61, s51, 1
    s_add_u32 s57, s60, s61
    s_mul_i32 s56, s56, %d
    s_mul_i32 s57, s57, %d
    s_waitcnt lgkmcnt(0)
    """ % (BRING, AREG, K1_AR, AREG, K1_AR, 68 * 1024, 68 * 1024))
    srd(a, 20, 4, SZ_X)
    srd(a, 32, 12, SZ_B1)
    srd(a, 36, 14, 256)
    srd(a, 64, 18, SZ_W2)
    srd(a, 68, 16, SZ_PB, WS_PB)
    a.prof_base = 0
    stamp_init(a)
    stamp(a, 0)
    a("""
    s_cmp_ge_u32 s2, 128
    s_cbranch_scc1 K1_DEC_QH
    s_mov_b32 s41, 0
    s_mul_i32 s43, s51, 1280
    s_mul_i32 s60, s48, 160
    s_add_u32 s43, s43, s60
    s_add_u32 s43, s43, 1280
    s_mov_b32 s44, 3840
    s_mov_b32 s55, 0
    """)
    srd(a, 24, 6, SZ_WQKV)
    srd(a, 28, 16, 8 * 16 * SLAB_STRIDE, WS_SLAB)
    a("s_branch K1_DEC_DONE")
    a.label("K1_DEC_QH")
    srd(a, 28, 16, SZ_AP, WS_AP)
    a("""
    s_lshl_b32 s48, s48, 1
    s_add_u32 s48, s48, s51
    s_cmp_ge_u32 s48, 5
    s_cbranch_scc1 K1_DEC_H
    s_mov_b32 s41, 1
    s_lshl_b32 s55, s48, 3
    s_min_u32 s55, s55, 31
    s_lshl_b32 s43, s55, 5
    s_mov_b32 s44, 3840
    s_add_u32 s56, s56, %d
    s_add_u32 s57, s57, %d
    """ % (48 * 1024, 48 * 1024))
    srd(a, 24, 6, SZ_WQKV)
    a("s_branch K1_DEC_DONE")
    a.label("K1_DEC_H")
    a("""
    s_mov_b32 s41, 2
    s_sub_u32 s60, s48, 5
    s_mul_i32 s55, s60, 9
    s_min_u32 s55, s55, 87
    s_lshl_b32 s43, s55, 5
    s_mov_b32 s44, 3072
    """)
    srd(a, 24, 10, SZ_W1)
    a.label("K1_DEC_DONE")
    a("""
    s_lshl_b32 s58, s50, 5
    v_lshrrev_b32 v13, 2, v1
    v_mul_u32_u24 v2, 160, v13
    v_and_b32 v13, 3, v1
    v_lshl_add_u32 v2, v13, 3, v2
    s_mul_i32 s60, s51, %d
    v_add_u32 v2, s60, v2
    v_add_u32 v3, s58, v2
    v_lshrrev_b32 v13, 4, v1
    v_and_b32 v14, 7, v1
    v_xor_b32 v13, v13, v14
    v_and_b32 v15, 15, v1
    v_lshlrev_b32 v4, 7, v15
    v_lshl_add_u32 v4, v13, 4, v4
    v_xor_b32 v5, 64, v4
    s_lshl_b32 s60, s51, 11
    s_add_u32 s60, s60, s54
    s_xor_b32 s61, s51, 1
    s_lshl_b32 s61, s61, 11
    s_add_u32 s61, s61, s54
    v_add_u32 v6, s61, v4
    v_add_u32 v7, s61, v5
    v_add_u32 v4, s60, v4
    v_add_u32 v5, s60, v5
    v_lshrrev_b32 v13, 3, v1
    v_xor_b32 v14, v14, v13
    v_add_u32 v13, s52, v13
    v_mul_u32_u24 v11, 1280, v13
    v_lshl_add_u32 v11, v14, 4, v11
    """ % BRING)
    for q in range(3):
        a("v_add_u32 v13, s53, v1")
        a("v_add_u32 v13, %d, v13" % (q * 64))
        perm_voff(a, 8 + q, 13, "s44", 14, 15, 16)
    a("""
    s_cmp_eq_u32 s41, 1
    s_cbranch_scc1 K1_Q
    s_cmp_eq_u32 s41, 2
    s_cbranch_scc1 K1_H
    """)
    gen_kv(a)
    a("s_branch K1_END")
    a.label("K1_Q")
    gen_qh(a, "Q")
    a("s_branch K1_END")
    a.label("K1_H")
    gen_qh(a, "H")
    a.label("K1_END")
    a("s_endpgm")


K2_RP = 336
K2_DEN = 64 * K2_RP
K2_WREG = K2_DEN + 4096
K2_LDS = 4 * K2_WREG
K2_VPQ = 96
K2_VZ = 36
K2_SC = 56
K2_NSLOT = 7


def k2_frag(slot, i):
    f = slot * 9 + i
    if f < 44:
        return ar(80 + 4 * f)
    return vr(176 + 4 * (f - 44))


def gen_k2(a):
    a.raw(".globl k2_kernel")
    a.raw(".p2align 8")
    a.raw(".type k2_kernel,@function")
    a.label("k2_kernel")
    a("""
    s_cmp_ge_u32 s2, 256
    s_cbranch_scc1 K2_END
    s_load_dwordx2 s[16:17], s[0:1], 80
    s_load_dwordx2 s[4:5], s[0:1], 0
    s_load_dwordx2 s[8:9], s[0:1], 56
    s_load_dwordx2 s[10:11], s[0:1], 64
    v_and_b32 v1, 63, v0
    v_lshrrev_b32 v13, 6, v0
    s_nop 0
    v_readfirstlane_b32 s40, v13
    v_lshlrev_b32 v5, 4, v1
    v_lshrrev_b32 v6, 4, v1
    v_lshlrev_b32 v6, 2, v6
    v_and_b32 v7, 15, v1
    v_lshlrev_b32 v24, 2, v6
    s_and_b32 s41, s2, 7
    s_lshl_b32 s41, s41, 2
    s_lshr_b32 s42, s2, 3
    s_and_b32 s42, s42, 3
    s_add_u32 s41, s41, s42
    s_mul_i32 s44, s41, %d
    s_lshl_b32 s41, s41, 6
    s_lshr_b32 s43, s2, 5
    s_mul_i32 s42, s43, 160
    s_mul_i32 s45, s43, %d
    s_mul_i32 s60, s40, %d
    s_add_u32 s47, s45, %d
    s_add_u32 s47, s47, s60
    s_mul_i32 s60, s40, %d
    s_add_u32 s45, s45, s60
    s_mul_i32 s60, s40, 5120
    s_add_u32 s43, s44, %d
    s_add_u32 s43, s43, s60
    s_mul_i32 s60, s40, 12288
    s_add_u32 s44, s44, s60
    s_mul_i32 s46, s40, %d
    s_mul_i32 s62, s40, 320
    s_waitcnt lgkmcnt(0)
    """ % (4 * 68 * 1024, 68 * 5120, 5 * 5120, 48 * 5120, 12 * 5120, 48 * 1024, K2_WREG))
    srd(a, 20, 16, SZ_AP, WS_AP)
    srd(a, 24, 16, SZ_PB, WS_PB)
    srd(a, 36, 16, 1280, WS_Z)
    srd(a, 48, 4, SZ_X)
    srd(a, 52, 8, SZ_B2)
    srd(a, 56, 10, SZ_OUT)
    a.prof_base = 0x100000
    stamp_init(a)
    stamp(a, 0)
    vm = Q(a, "vmcnt", 63)
    lg = Q(a, "lgkmcnt", 15)
    f = Fill(a, vm, lg)

    pend = []

    def add_step(n):
        slot = n % K2_NSLOT
        order = ([("A", 0)] if n < 12 else []) + [("B", c) for c in range(5)] + ([("A", m) for m in (1, 2, 3)] if n < 12 else [])
        for kind, i in order:
            if kind == "A":
                def fn(i=i):
                    a("s_add_u32 s60, s44, %d" % (i * 68 * 1024 + n * 1024))
                    a("buffer_load_dwordx4 %s, v5, s[20:23], s60 offen" % k2_frag(slot, i))
            else:
                def fn(i=i):
                    base = ("s45", n * 5120) if n < 12 else ("s47", (n - 12) * 5120)
                    if i == 0 or i == 4:
                        a("s_add_u32 s61, %s, %d" % (base[0], base[1] + i * 1024))
                    a("buffer_load_dwordx4 %s, v5, s[24:27], s61 offen offset:%d" % (k2_frag(slot, 4 + i), (i & 3) * 1024))
            pend.append(((kind, n, i), n - K2_NSLOT, fn))

    def add_pq():
        for s in range(5):
            def fz(s=s):
                a("buffer_load_dwordx4 %s, v24, s[36:39], s62 offen offset:%d" % (vr(K2_VZ + s * 4), s * 64))
            pend.append(("Z", -1, fz))
        for m in range(4):
            for s in range(5):
                def fn(s=s, m=m):
                    if s == 0 or s == 4:
                        a("s_add_u32 s60, s43, %d" % (m * 68 * 1024 + s * 1024))
                    a("buffer_load_dwordx4 %s, v5, s[20:23], s60 offen offset:%d" % (vr(K2_VPQ + (s * 4 + m) * 4), (s & 3) * 1024))
                pend.append((("PQ", m), -1, fn))

    done_step = [-1]

    def issue(k):
        while k > 0 and pend and pend[0][1] <= done_step[0] and len(vm.q) < 62:
            tag, _, fn = pend.pop(0)
            fn()
            vm.add(tag)
            k -= 1

    for n in range(3):
        add_step(n)
    add_pq()
    for n in range(3, 17):
        add_step(n)
    issue(100)
    for s_ in range(5):
        for half in range(2):
            hreg = 26 + s_ * 2 + half
            a("v_add_u32 v14, %d, v6" % (32 * s_ + 16 * half))
            a("v_mul_u32_u24 v14, 205, v14")
            a("v_lshrrev_b32 v%d, 12, v14" % hreg)
    a("""
    v_lshlrev_b32 v13, 6, v7
    v_add_u32 v13, s46, v13
    v_lshl_add_u32 v25, v6, 2, v13
    """)
    MS = [64 + 2 * i if i < 4 else 84 + 2 * (i - 4) for i in range(10)]
    for i in range(10):
        a("v_cmp_eq_u32 s[%d:%d], v%d, v7" % (MS[i], MS[i] + 1, 26 + i))
        a("v_lshl_add_u32 v%d, v%d, 2, v13" % (26 + i, 26 + i))
    f.vmwait("Z")
    for s_ in range(5):
        for half in range(2):
            i = s_ * 2 + half
            for d in range(2):
                r = K2_VZ + s_ * 4 + half * 2 + d
                f("v_cndmask_b32 v%d, 0, v%d, s[%d:%d]" % (r, r, MS[i], MS[i] + 1))
    f("s_nop 1")
    DEN = K2_SC
    for m in range(4):
        f.vmwait(("PQ", m))
        for s_ in range(5):
            f("v_mfma_f32_16x16x32_bf16 %s, %s, %s, %s" % (vr(DEN + m * 4), vr(K2_VZ + s_ * 4), vr(K2_VPQ + (s_ * 4 + m) * 4), "0" if s_ == 0 else vr(DEN + m * 4)))
    f.group(["s_nop 7", "s_nop 1"])
    for m in range(4):
        for r in range(4):
            x = DEN + m * 4 + r
            t = 8 + r
            rnd(f, x, t)
            f("v_add_f32 v%d, 0x358637bd, v%d" % (x, x))
            rnd(f, x, t)
            f("v_rcp_f32 v%d, v%d" % (x, x))
    f("s_nop 0")
    for m in range(4):
        f.lds("ds_write_b128 v25, %s offset:%d" % (vr(DEN + m * 4), K2_DEN + m * 1024), "DW")
    f.lgwait("DW")
    SC = K2_SC
    for s_ in range(5):
        for m in range(4):
            for half in range(2):
                f.lds("ds_read_b32 v%d, v%d offset:%d" % (SC + (s_ * 4 + m) * 2 + half, 26 + s_ * 2 + half, K2_DEN + m * 1024), ("DR", s_))
    for s_ in range(5):
        f.lgwait(("DR", s_))
        for m in range(4):
            fb = K2_VPQ + (s_ * 4 + m) * 4
            for d in range(4):
                sc = SC + (s_ * 4 + m) * 2 + (d >> 1)
                p = 8 + d * 2
                f("v_lshlrev_b32 v%d, 16, v%d" % (p, fb + d))
                f("v_and_b32 v%d, 0xffff0000, v%d" % (p + 1, fb + d))
                f("v_mul_f32 v%d, v%d, v%d" % (p, p, sc))
                f("v_mul_f32 v%d, v%d, v%d" % (p + 1, p + 1, sc))
            for d in range(4):
                p = 8 + d * 2
                f("v_cvt_pk_bf16_f32 v%d, v%d, v%d" % (fb + d, p, p + 1))
    B2V = [22, 23, 2]
    for j in range(3):
        f("""
        v_add_u32 v13, %d, v0
        v_mul_u32_u24 v14, 6554, v13
        v_lshrrev_b32 v14, 16, v14
        v_mul_u32_u24 v15, 10, v14
        v_sub_u32 v15, v13, v15
        v_lshlrev_b32 v%d, 4, v15
        v_mul_u32_u24 v%d, %d, v14
        v_lshl_add_u32 v%d, v15, 5, v%d
        v_add_u32 v14, s41, v14
        v_mul_u32_u24 v14, 1280, v14
        v_add_u32 v%d, v14, v%d
        """ % (j * 256, B2V[j], 19 + j, K2_RP, 19 + j, 19 + j, 16 + j, B2V[j]))
    f("s_nop 1")
    F0 = 3
    per = (len(f.F) + (12 - F0) * 20 - 1) // ((12 - F0) * 20)
    XR, BR = 56, 68
    for n in range(17):
        slot = n % K2_NSLOT
        if n == 12:
            f.flush()
            for j in range(3):
                def fx(j=j):
                    a("buffer_load_dwordx4 %s, v%d, s[48:51], s42 offen" % (vr(XR + j * 4), 16 + j))
                def fb_(j=j):
                    a("buffer_load_dwordx4 %s, v%d, s[52:55], s42 offen" % (vr(BR + j * 4), B2V[j]))
                pend.append(("X", -1, fx))
                pend.append(("X", -1, fb_))
        if n == 1:
            stamp(a, 1)
        for m in range(4):
            for c in range(5):
                d = ar((m * 5 + c) * 4)
                if n < 12:
                    if c == 0:
                        vm.wait(("A", n, m))
                    A_ = k2_frag(slot, m)
                else:
                    A_ = vr(K2_VPQ + ((n - 12) * 4 + m) * 4)
                if m == 0:
                    vm.wait(("B", n, c))
                B_ = k2_frag(slot, 4 + c)
                a("v_mfma_f32_16x16x32_bf16 %s, %s, %s, %s" % (d, B_, A_, "0" if n == 0 else d))
                issue(2)
                if n >= F0:
                    f.pop(per)
        done_step[0] = n
    issue(100)
    assert not pend
    a("s_nop 7")
    a("s_nop 1")
    stamp(a, 4)
    a("""
    v_mul_u32_u24 v13, %d, v7
    v_lshl_add_u32 v13, v6, 2, v13
    v_add_u32 v13, s46, v13
    """ % K2_RP)
    for m in range(4):
        for c in range(5):
            a("ds_write_b128 v13, %s offset:%d" % (ar((m * 5 + c) * 4), m * 16 * K2_RP + c * 64))
    a("s_waitcnt vmcnt(0) lgkmcnt(0)")
    a("s_barrier")
    for j in range(3):
        if j == 2:
            a("s_cmp_ge_u32 s40, 2")
            a("s_cbranch_scc1 K2_DONE")
        a("v_add_u32 v14, %d, v%d" % (2 * K2_WREG, 19 + j))
        for w in range(4):
            for h in range(2):
                a("ds_read_b128 %s, v%d offset:%d" % (vr(176 + (w * 2 + h) * 4), (19 + j) if w < 2 else 14, (w & 1) * K2_WREG + h * 16))
        a("s_waitcnt lgkmcnt(0)")
        for e in range(8):
            a("v_add_f32 v%d, v%d, v%d" % (176 + e, 176 + e, 184 + e))
            a("v_add_f32 v%d, v%d, v%d" % (192 + e, 192 + e, 200 + e))
        for e in range(8):
            a("v_add_f32 v%d, v%d, v%d" % (176 + e, 176 + e, 192 + e))
        for src in (XR + j * 4, BR + j * 4):
            for d in range(4):
                a("v_lshlrev_b32 v%d, 16, v%d" % (184 + 2 * d, src + d))
                a("v_and_b32 v%d, 0xffff0000, v%d" % (185 + 2 * d, src + d))
            for e in range(8):
                a("v_add_f32 v%d, v%d, v%d" % (176 + e, 176 + e, 184 + e))
        for d in range(4):
            a("v_cvt_pk_bf16_f32 v%d, v%d, v%d" % (208 + j * 4 + d, 176 + 2 * d, 177 + 2 * d))
        a("buffer_store_dwordx4 %s, v%d, s[56:59], s42 offen" % (vr(208 + j * 4), 16 + j))
    a.label("K2_DONE")
    stamp(a, 5)
    a.label("K2_END")
    a("s_endpgm")


def kd(name, vgpr, accum, sgpr=102):
    return """
.amdhsa_kernel %s
  .amdhsa_next_free_vgpr %d
  .amdhsa_next_free_sgpr %d
  .amdhsa_accum_offset %d
  .amdhsa_group_segment_fixed_size 0
  .amdhsa_kernarg_size 88
  .amdhsa_user_sgpr_count 2
  .amdhsa_user_sgpr_kernarg_segment_ptr 1
  .amdhsa_system_sgpr_workgroup_id_x 1
.end_amdhsa_kernel
""" % (name, vgpr, sgpr, accum)


def main():
    global PROF, PROF2
    if len(sys.argv) > 2 and sys.argv[2].startswith("prof"):
        PROF = True
        PROF2 = sys.argv[2] == "prof2"
    a = Asm()
    a.raw("; @launch kernel=k1_kernel grid=(256,1,1) block=(512,1,1) lds=%d" % K1_LDS)
    a.raw("; @launch kernel=k2_kernel grid=(256,1,1) block=(256,1,1) lds=%d" % K2_LDS)
    a.raw('.amdgcn_target "amdgcn-amd-amdhsa--gfx950"')
    a.raw(".text")
    gen_k1(a)
    gen_k2(a)
    a.raw('.section .rodata,"a"')
    a.raw(".p2align 6")
    a.raw(kd("k1_kernel", 256, 256))
    a.raw(".p2align 6")
    a.raw(kd("k2_kernel", 512, 256))
    out = sys.argv[1] if len(sys.argv) > 1 else "cdna_kernels/%s.s" % NAME
    open(out, "w").write(a.text())


if __name__ == "__main__":
    main()
```

```python
import sys, os

NAME = "parallel_sum__linear_attn_block__mixer_channel_mlp__prompt"
ABL = os.environ.get("ABL", "").split(",")

WS_AP = 0
SZ_AP = 128 * 68 * 1024
WS_PB = 0x900000
SZ_PB = 8 * 68 * 5120
WS_KV = 0xC00000
KV_Z = 65536
SZ_KV = 65536 + 1280
WS_SLAB = 0xD00000
SZ_SLAB = 16 * 16 * 8192
WS_PROF = 0x1000000

SZ_X = 2048 * 640 * 2
SZ_WQKV = 640 * 1920 * 2
SZ_WO = 640 * 640 * 2
SZ_W1 = 640 * 1536 * 2
SZ_B1 = 1536 * 2
SZ_W2 = 1536 * 640 * 2
SZ_B2 = 640 * 2
SZ_OUT = 2048 * 640 * 2
OOB = 0x7ffffff0
PROF = False


class Asm:
    def __init__(self):
        self.lines = []
        self.prof_base = 0

    def __call__(self, s):
        for ln in s.strip("\n").split("\n"):
            ln = ln.strip()
            if ln:
                self.lines.append("    " + ln)

    def label(self, l):
        self.lines.append(l + ":")

    def raw(self, s):
        self.lines.append(s)

    def text(self):
        return "\n".join(self.lines) + "\n"


class Q:
    def __init__(self, a, name, cap):
        self.a, self.name, self.cap, self.q = a, name, cap, []

    def add(self, tag):
        self.q.append(tag)

    def wait(self, tag):
        idx = [i for i, t in enumerate(self.q) if t == tag]
        if not idx:
            return
        n = len(self.q) - 1 - idx[-1]
        self.a("s_waitcnt %s(%d)" % (self.name, min(n, self.cap)))
        self.q = self.q[idx[-1] + 1:]

    def drain(self):
        self.a("s_waitcnt %s(0)" % self.name)
        self.q = []


class Fill:
    def __init__(self, a, vm, lg):
        self.a, self.vm, self.lg, self.F = a, vm, lg, []

    def __call__(self, txt):
        for ln in txt.strip("\n").split("\n"):
            ln = ln.strip()
            if ln:
                self.F.append(ln)

    def group(self, lst):
        self.F.append(list(lst))

    def lds(self, txt, tag):
        self.F.append(("lds", txt, tag))

    def vmem(self, txt, tag, pre=()):
        self.F.append(("vmem", txt, tag, list(pre)))

    def lgwait(self, tag):
        self.F.append(("lgwait", tag))

    def vmwait(self, tag):
        self.F.append(("vmwait", tag))

    def call(self, fn):
        self.F.append(("call", fn))

    def sp(self, n):
        self.F.append(("sp", n))

    def after(self, step):
        self.F.append(("after", step))

    cur = 0

    def pop(self, k):
        while k > 0 and self.F:
            it = self.F[0]
            if isinstance(it, tuple) and it[0] == "sp":
                return
            if isinstance(it, tuple) and it[0] == "after":
                if self.cur < it[1]:
                    return
                self.F.pop(0)
                continue
            self.F.pop(0)
            if isinstance(it, str):
                self.a(it)
            elif isinstance(it, list):
                for x in it:
                    self.a(x)
            elif it[0] == "vmwait":
                self.vm.wait(it[1])
            elif it[0] == "lgwait":
                self.lg.wait(it[1])
            elif it[0] == "lds":
                self.a(it[1])
                self.lg.add(it[2])
            elif it[0] == "vmem":
                for x in it[3]:
                    self.a(x)
                self.a(it[1])
                self.vm.add(it[2])
            elif it[0] == "call":
                it[1]()
            k -= 1

    def has_sp(self, n):
        return any(isinstance(it, tuple) and it[0] == "sp" and it[1] == n for it in self.F)

    def flush_to_sp(self, n):
        cnt = 0
        while True:
            it = self.F[0]
            if isinstance(it, tuple) and it[0] == "sp":
                assert it[1] == n, (it, n)
                return cnt
            if isinstance(it, tuple) and it[0] == "after":
                assert self.cur >= it[1], (it, self.cur)
            self.pop(1)
            cnt += 1

    def drop_sp(self, n):
        assert self.F[0] == ("sp", n)
        self.F.pop(0)

    def flush(self):
        while self.F:
            it = self.F[0]
            assert not (isinstance(it, tuple) and it[0] == "sp"), it
            if isinstance(it, tuple) and it[0] == "after":
                assert self.cur >= it[1]
            self.pop(1)


def vr(b, n=4):
    return "v[%d:%d]" % (b, b + n - 1)


def ar(b, n=4):
    return "a[%d:%d]" % (b, b + n - 1)


def srd(a, d, base, size, add=0):
    if add:
        a("s_add_u32 s%d, s%d, 0x%x" % (d, base, add))
        a("s_addc_u32 s%d, s%d, 0" % (d + 1, base + 1))
    else:
        a("s_mov_b32 s%d, s%d" % (d, base))
        a("s_mov_b32 s%d, s%d" % (d + 1, base + 1))
    a("s_mov_b32 s%d, 0x%x" % (d + 2, size))
    a("s_mov_b32 s%d, 0x00020000" % (d + 3))


def stamp_init(a, wsbase=16):
    if not PROF:
        return
    srd(a, 72, wsbase, 0x100000, WS_PROF + a.prof_base)
    a("s_lshl_b32 s76, s2, 3")
    a("s_add_u32 s76, s76, s40")
    a("s_lshl_b32 s76, s76, 9")


def stamp(a, i, vt, lg=None):
    if not PROF:
        return
    a("s_memrealtime s[78:79]")
    a("s_waitcnt lgkmcnt(0)")
    if lg is not None:
        lg.q = []
    a("v_mov_b32 v%d, s78" % vt)
    a("s_mov_b64 s[80:81], exec")
    a("s_mov_b64 exec, 1")
    a("buffer_store_dword v%d, off, s[72:75], s76 offset:%d" % (vt, i * 4))
    a("s_mov_b64 exec, s[80:81]")
    a("s_nop 1")


def rnd(o, x, t):
    o("v_cvt_pk_bf16_f32 v%d, v%d, v%d" % (t, x, x))
    o("v_lshlrev_b32 v%d, 16, v%d" % (x, t))


def perm(a, dst, rho, t):
    a("""
    v_and_b32 v%d, 0xffffffe3, v%d
    v_bfe_u32 v%d, v%d, 4, 1
    v_lshl_or_b32 v%d, v%d, 2, v%d
    v_bfe_u32 v%d, v%d, 2, 2
    v_lshl_or_b32 v%d, v%d, 3, v%d
    """ % (dst, rho, t, rho, dst, t, dst, t, rho, dst, t, dst))

VA = 96
VB = 40
V_ONES = 20
V_CS = 24
V_GR = 36
ACC = [[64 + 4 * i for i in range(6)], [88, 92, 56, 60], [64, 68, 72, 76]]
NTP = [3, 2, 2]
BSLOT = 6144
BSTR = 6 * BSLOT
K1_AR = 2 * BSTR
AREG = 5 * 4096
K1_TAB = K1_AR + 4 * AREG
T_CS = 0
T_B1 = 3584
T_ST = 4096
K1_LDS = 163840
R_RAW = 0
R_KVF = 4096
R_FLAG = 10240
R_RP = 12288
SP1 = 11
SP2 = int(os.environ.get("SP2", "14"))
SP3 = int(os.environ.get("SP3", "20"))
SP4 = int(os.environ.get("SP4", "26"))
NF1 = int(os.environ.get("NF1", "6"))
NF2 = int(os.environ.get("NF2", "4"))
L2E = "0x3fb8aa3b"
EPS6 = "0x358637bd"
NEPS6 = "0xb58637bd"


def a_reg(t, s):
    return VA + (t * 20 + s) * 4


def b_reg(sg, c):
    return VB + (sg & 1) * (12 if sg < 20 else 8) + c * 4


def stats_chain(f, s, q, h0, h1, m, v, r, t):
    f("v_mul_f32 v%d, 0x3acccccd, v%d" % (s, s))
    f("v_mul_f32 v%d, 0x3acccccd, v%d" % (q, q))
    f("v_fma_f32 v%d, -v%d, v%d, v%d" % (q, s, s, q))
    f("v_max_f32 v%d, 0, v%d" % (q, q))
    f("v_cvt_pk_bf16_f32 v%d, v%d, v%d" % (t, s, q))
    f("v_lshlrev_b32 v%d, 16, v%d" % (m, t))
    f("v_and_b32 v%d, 0xffff0000, v%d" % (v, t))
    f("v_add_f32 v%d, 0x3727c5ac, v%d" % (v, v))
    rnd(f, v, t)
    f.group(["v_sqrt_f32 v%d, v%d" % (v, v), "s_nop 0"])
    rnd(f, v, t)
    f.group(["v_rcp_f32 v%d, v%d" % (r, v), "s_nop 0"])
    f("v_sub_f32 v%d, v%d, v%d" % (h0, s, m))
    f("v_mul_f32 v%d, v%d, v%d" % (h0, h0, r))
    f("v_mul_f32 v%d, v%d, v%d" % (h1, q, r))
    f("v_mul_f32 v%d, v%d, v%d" % (h1, h1, r))
    f("v_cvt_pk_bf16_f32 v%d, v%d, v%d" % (t, h0, h1))
    f("v_lshlrev_b32 v%d, 16, v%d" % (h0, t))
    f("v_and_b32 v%d, 0xffff0000, v%d" % (h1, t))
    f("v_add_f32 v%d, 0x3727c5ac, v%d" % (h1, h1))
    rnd(f, h1, t)
    f.group(["v_sqrt_f32 v%d, v%d" % (h1, h1), "s_nop 0"])
    rnd(f, h1, t)
    f.group(["v_rcp_f32 v%d, v%d" % (v, h1), "s_nop 0"])
    f("v_mul_f32 v%d, v%d, v%d" % (m, m, r))
    f("v_add_f32 v%d, v%d, v%d" % (h1, m, h0))
    f("v_mul_f32 v%d, v%d, v%d" % (h1, h1, v))
    f("v_mul_f32 v%d, v%d, v%d" % (h0, r, v))


def gelu2(o, lo, hi, e0, e1):
    o("v_fmaak_f32 v%d, v%d, v%d, 0x41b2e92f" % (e0, lo, lo))
    o("v_fmaak_f32 v%d, v%d, v%d, 0x41b2e92f" % (e1, hi, hi))
    o("v_mul_f32 v%d, v%d, v%d" % (e0, e0, lo))
    o("v_mul_f32 v%d, v%d, v%d" % (e1, e1, hi))
    o("v_mul_f32 v%d, 0xbdd2d3e8, v%d" % (e0, e0))
    o("v_mul_f32 v%d, 0xbdd2d3e8, v%d" % (e1, e1))
    o("v_exp_f32 v%d, v%d" % (e0, e0))
    o("v_exp_f32 v%d, v%d" % (e1, e1))
    o("v_add_f32 v%d, 1.0, v%d" % (e0, e0))
    o("v_add_f32 v%d, 1.0, v%d" % (e1, e1))
    o("v_rcp_f32 v%d, v%d" % (e0, e0))
    o("v_rcp_f32 v%d, v%d" % (e1, e1))
    o("v_mul_f32 v%d, v%d, v%d" % (lo, lo, e0))
    o("v_mul_f32 v%d, v%d, v%d" % (hi, hi, e1))


def phi2(o, lo, hi, e0, e1, dlo=None, dhi=None, eps_in=True):
    dlo = lo if dlo is None else dlo
    dhi = hi if dhi is None else dhi
    o("v_mul_f32 v%d, %s, v%d" % (e0, L2E, lo))
    o("v_mul_f32 v%d, %s, v%d" % (e1, L2E, hi))
    o("v_exp_f32_e64 v%d, v%d clamp" % (e0, e0))
    o("v_exp_f32_e64 v%d, v%d clamp" % (e1, e1))
    o("v_max_f32 v%d, %s, v%d" % (dlo, EPS6 if eps_in else "0", lo))
    o("v_max_f32 v%d, %s, v%d" % (dhi, EPS6 if eps_in else "0", hi))
    o("v_add_f32 v%d, v%d, v%d" % (dlo, dlo, e0))
    o("v_add_f32 v%d, v%d, v%d" % (dhi, dhi, e1))
    if not eps_in:
        o("v_add_f32 v%d, %s, v%d" % (dlo, EPS6, dlo))
        o("v_add_f32 v%d, %s, v%d" % (dhi, EPS6, dhi))


def gen_stream(a, st):
    N = "KV"[st]
    vm = Q(a, "vmcnt", 63)
    lg = Q(a, "lgkmcnt", 15)
    fA = Fill(a, vm, lg)
    fB = Fill(a, vm, lg)
    dmaq = []

    def dma(gs):
        out = []
        if gs >= 30:
            return out
        if gs < 10:
            for q in range(2):
                def fa(q=q):
                    a("s_add_u32 m0, s47, %d" % ((gs % 5) * 4096 + q * 1024))
                    a("s_mov_b32 s45, %d" % (gs * 128 + q * 8 * 1280))
                    a("buffer_load_dwordx4 v7, s[20:23], s45 offen lds")
                    vm.add(("S", gs))
                out.append((gs, fa))

            def fm():
                a("s_add_u32 m0, s46, %d" % ((gs % 6) * BSLOT))
                a("s_mov_b32 s45, %d" % (gs * 64 * 3840))
                a("s_mov_b64 exec, s[54:55]")
                a("buffer_load_dwordx4 v8, s[24:27], s45 offen lds")
                a("s_mov_b64 exec, -1")
                vm.add(("S", gs))
            out.append((gs, fm))
            if (gs & 1) == st:
                def fx():
                    a("s_add_u32 m0, s52, %d" % ((gs % 6) * BSLOT))
                    a("s_mov_b32 s45, %d" % (gs * 64 * 3840))
                    a("buffer_load_dwordx4 v9, s[24:27], s45 offen lds")
                    vm.add(("S", gs))
                out.append((gs, fx))
        else:
            def fb():
                a("s_add_u32 m0, s53, %d" % ((gs % 6) * BSLOT))
                if gs >= 20 and st == 0:
                    a("s_mov_b32 s45, %d" % ((gs - 20) * 64 * 3840))
                    a("buffer_load_dwordx4 v11, s[24:27], s45 offen lds")
                else:
                    a("s_mov_b32 s45, %d" % ((gs % 10) * 64 * 3072 + (64 if gs >= 20 else 0)))
                    a("buffer_load_dwordx4 v10, s[28:31], s45 offen lds")
                vm.add(("S", gs))
            out.append((gs, fb))
        return out

    def reads(sg):
        L = []
        gs, ks = sg >> 1, sg & 1
        if sg < 20:
            for t in range(2):
                L.append(("ds_read_b128 %s, v%d offset:%d" % (vr(a_reg(t, sg)), 5 + ks, (gs % 5) * 4096 + t * 2048), ("A", sg)))
        for c in range(NTP[sg // 20]):
            for hh in range(2):
                if sg < 20:
                    txt = "ds_read_b64_tr_b16 %s, v2 offset:%d" % (vr(b_reg(sg, c) + hh * 2, 2), (gs % 6) * BSLOT + ks * 3072 + hh * 1536 + c * 32)
                else:
                    txt = "ds_read_b64_tr_b16 %s, v%d offset:%d" % (vr(b_reg(sg, c) + hh * 2, 2), 3 + c, (gs % 6) * BSLOT + ks * 2048 + hh * 1024)
                L.append((txt, ("B", sg, c)))
        return L

    def barrier(n):
        for f in (fA, fB):
            if f.has_sp(n):
                f.flush_to_sp(n)
        while dmaq and dmaq[0][0] <= n:
            dmaq.pop(0)[1]()
        vm.wait(("S", n))
        a("s_barrier")
        for f in (fA, fB):
            if f.has_sp(n):
                f.drop_sp(n)

    def seg_cs(f, p):
        f.group(["s_nop 7", "s_nop 3", "v_lshl_add_u32 v18, v1, 2, s59"])
        for c in range(NTP[p]):
            tid = [st * 3 + c, 6 + st * 2 + c, 10 + st * 2 + c][p]
            f.lds("ds_add_f32 v18, v%d offset:%d" % (V_CS + 4 * c, T_CS + tid * 256), "CSA")

    def seg_epi(f, p):
        kind = "Q" if (p == 2 and st == 0) else "H"
        acc = ACC[p]
        AB = [6, 8]
        CSR, B1R = [80, 32], [84, 36]
        if kind == "H":
            f("v_and_b32 v13, 15, v1")
            f("v_lshl_add_u32 v13, v13, 3, s44")
            for t in range(2):
                f.lds("ds_read_b64 v[%d:%d], v13 offset:%d" % (AB[t], AB[t] + 1, 256 + t * 128), "E")
        else:
            f("v_and_b32 v13, 15, v1")
            f("v_lshl_add_u32 v13, v13, 2, s44")
            for t in range(2):
                f.lds("ds_read_b32 v%d, v13 offset:%d" % (AB[t], t * 64), "E")
                f.lds("ds_read_b32 v%d, v13 offset:%d" % (AB[t] + 1, 128 + t * 64), "E")
        for c in range(2):
            tid = [0, 6 + st * 2 + c, 10 + st * 2 + c][p]
            f.lds("ds_read_b128 %s, v5 offset:%d" % (vr(CSR[c]), T_CS + tid * 256), ("E", c))
            if kind == "H":
                col = (0 if st == 0 else (32 if p == 1 else 64)) + c * 16
                f.lds("ds_read_b128 %s, v5 offset:%d" % (vr(B1R[c]), T_B1 + col * 4), ("E", c))
        for c in range(2):
            f.lgwait(("E", c))
            for t in range(2):
                b = acc[c * 2 + t]
                al, be = AB[t], AB[t] + 1
                for r in range(4):
                    tmp = 16 + (r & 1)
                    if kind == "H":
                        f("v_fma_f32 v%d, -v%d, v%d, v%d" % (tmp, be, CSR[c] + r, B1R[c] + r))
                        f("v_fma_f32 v%d, v%d, v%d, v%d" % (b + r, b + r, al, tmp))
                    else:
                        f("v_fmaak_f32 v%d, v%d, v%d, %s" % (tmp, be, CSR[c] + r, NEPS6))
                        f("v_fma_f32 v%d, v%d, v%d, -v%d" % (b + r, b + r, al, tmp))
                for h in range(2):
                    (gelu2 if kind == "H" else phi2)(f, b + 2 * h, b + 2 * h + 1, 12 + 2 * h, 13 + 2 * h)
                d = acc[t] + 2 * c
                f("v_cvt_pk_bf16_f32 v%d, v%d, v%d" % (d, b, b + 1))
                f("v_cvt_pk_bf16_f32 v%d, v%d, v%d" % (d + 1, b + 2, b + 3))
                if c == 1:
                    if kind == "H":
                        j = 0 if st == 0 else p
                        pre = ["s_add_u32 s60, s56, %d" % (t * 68 * 1024 + j * 1024)]
                    else:
                        pre = ["s_add_u32 s60, s57, %d" % (t * 68 * 1024)]
                    f.vmem("buffer_store_dwordx4 %s, v0, s[32:35], s60 offen" % vr(acc[t]), "ST", pre)

    def seg_kv(f):
        acc = ACC[0]
        seg_cs(f, 0)
        f("v_add_u32 v13, s43, v0")
        if st == 0:
            for t in range(2):
                f.lds("ds_write_b128 v13, %s offset:%d" % (vr(acc[4 + t]), R_RAW + t * 1024), "RW")
        f.lds("ds_write_b128 v13, %s offset:%d" % (vr(V_GR), R_RAW + 2048 + st * 1024), "RW")
        f("""
        v_and_b32 v16, 15, v1
        v_lshl_add_u32 v12, v16, 2, s59
        v_bfe_u32 v17, v1, 4, 1
        v_lshlrev_b32 v17, 10, v17
        v_bfe_u32 v18, v1, 2, 2
        v_lshl_add_u32 v17, v18, 8, v17
        v_and_b32 v18, 3, v1
        v_lshl_add_u32 v17, v18, 2, v17
        v_add_u32 v14, s43, v17
        v_lshl_add_u32 v15, v16, 4, v14
        v_lshrrev_b32 v5, 4, v1
        v_lshl_add_u32 v5, v5, 4, s59
        """)
        if st == 1:
            f("""
            v_cmp_le_u32 s[84:85], 8, v16
            v_lshrrev_b32 v17, 4, v1
            v_lshlrev_b32 v9, 6, v17
            v_bfe_u32 v17, v1, 2, 1
            v_lshl_add_u32 v9, v17, 8, v9
            v_lshl_add_u32 v9, v18, 1, v9
            """)
            f.group(["s_and_b32 s60, s48, 1", "s_lshl_b32 s60, s60, 9", "s_bfe_u32 s61, s48, 0x10001", "s_lshl_b32 s61, s61, 3",
                     "s_add_u32 s60, s60, s61", "v_add_u32 v9, s60, v9"])
            f("v_mov_b32 v17, 0x%x" % OOB)
            f("v_cndmask_b32 v9, v17, v9, s[84:85]")
        f.lgwait("RW")
        f.sp(SP1)
        f.lds("ds_read_b32 v32, v14 offset:%d" % (R_RAW + 128), "SR")
        f.lds("ds_read_b32 v33, v15 offset:%d" % (R_RAW + 2048), "SR")
        for c in range(3):
            f.lds("ds_read_b32 v%d, v12 offset:%d" % (6 + c, T_CS + (st * 3 + c) * 256), "CR")
        if st == 1:
            seg_rp_load(f)
        f("""
        v_and_b32 v16, 31, v1
        v_lshl_add_u32 v14, v16, 2, s44
        v_lshl_add_u32 v15, v16, 3, s44
        v_lshrrev_b32 v16, 4, v1
        v_lshl_add_u32 v16, v16, 4, s44
        """)
        f.lgwait("SR")
        stats_chain(f, 32, 33, 34, 35, 36, 37, 38, 39)
        f.lds("ds_write_b32 v14, v38", "SW")
        f.lds("ds_write_b32 v14, v36 offset:128", "SW")
        f.lds("ds_write_b64 v15, v[34:35] offset:256", "SW")
        f.lgwait("SW")
        for t in range(2):
            f.lds("ds_read_b128 v[32:35], v16 offset:%d" % (t * 64), ("AB", t))
            f.lds("ds_read_b128 v[36:39], v16 offset:%d" % (128 + t * 64), ("AB", t))
            f.lgwait(("AB", t))
            for c in range(3):
                b = acc[c * 2 + t]
                for r in range(4):
                    tmp = 17 + (r & 1)
                    if st == 0:
                        f("v_fmaak_f32 v%d, v%d, v%d, %s" % (tmp, 36 + r, 6 + c, NEPS6))
                    else:
                        f("v_mul_f32 v%d, v%d, v%d" % (tmp, 36 + r, 6 + c))
                    f("v_fma_f32 v%d, v%d, v%d, -v%d" % (b + r, b + r, 32 + r, tmp))
                if st == 0:
                    for h in range(2):
                        phi2(f, b + 2 * h, b + 2 * h + 1, 12 + 2 * h, 13 + 2 * h)
                elif c == 2:
                    for h in range(2):
                        phi2(f, b + 2 * h, b + 2 * h + 1, 12, 13, 14, 15, eps_in=False)
                        f("v_cvt_pk_bf16_f32 v%d, v14, v15" % (17 + h))
                    for h in range(2):
                        pre = ["s_add_u32 s60, s58, %d" % (t * 68 * 1024)] if h == 0 else []
                        f.vmem("buffer_store_short v%d, v9, s[32:35], s60 offen offset:%d" % (17 + h, h * 32), "ST", pre)
                        f.vmem("buffer_store_short_d16_hi v%d, v9, s[32:35], s60 offen offset:%d" % (17 + h, h * 32 + 16), "ST")
                d = acc[c * 2] + 2 * t
                f("v_cvt_pk_bf16_f32 v%d, v%d, v%d" % (d, b, b + 1))
                f("v_cvt_pk_bf16_f32 v%d, v%d, v%d" % (d + 1, b + 2, b + 3))
                if st == 1 and c == 2:
                    f("v_cndmask_b32 v%d, v%d, v%d, s[84:85]" % (d, d, V_ONES))
                    f("v_cndmask_b32 v%d, v%d, v%d, s[84:85]" % (d + 1, d + 1, V_ONES))
        f("v_add_u32 v13, s43, v0")
        for c in range(3):
            f.lds("ds_write_b128 v13, %s offset:%d" % (vr(acc[c * 2]), R_KVF + (st * 3 + c) * 1024), "FW")
        f("v_add_u32 v12, s86, v0")
        f("v_add_u32 v14, s87, v0")
        f.lgwait("FW")
        f.sp(SP2)
        KF = [64, 68, 72, 76]
        VF = [80, 84, 32, 36]
        for rg in range(4):
            f.lds("ds_read_b128 %s, v12 offset:%d" % (vr(KF[rg]), rg * AREG), ("J", rg))
            f.lds("ds_read_b128 %s, v14 offset:%d" % (vr(VF[rg]), rg * AREG), ("J", rg))
        for rg in range(4):
            f.lgwait(("J", rg))
            f("v_mfma_f32_16x16x32_bf16 v[12:15], %s, %s, %s" % (vr(KF[rg]), vr(VF[rg]), "0" if rg == 0 else "v[12:15]"))
        f.group(["s_nop 7", "s_nop 3"])
        f.vmem("buffer_store_dwordx4 v[12:15], v0, s[92:95], s42 offen sc1", "SL")
        if st == 1:
            seg_rp_store(f)
        f.vmwait("SL")
        f.sp(SP3)
        f.after(41)
        if st == 0:
            f("v_mov_b32 v97, 1")
            f("v_add_u32 v96, s40, v1")
            f("v_cmp_eq_u32 vcc, 0, v96")
            f("v_mov_b32 v96, 0x%x" % OOB)
            f("v_mov_b32 v98, s41")
            f("v_cndmask_b32 v96, v96, v98, vcc")
            f.vmem("buffer_atomic_add v97, v96, s[36:39], 0 offen sc0 sc1", "AT")
            f("v_lshl_add_u32 v96, v1, 2, s43")
            f.after(2 * SP4 - 3)
            f.vmwait("AT")
            f.lds("ds_write_b32 v96, v97 offset:%d" % R_FLAG, "FL")
            f.lgwait("FL")
        f.sp(SP4)
        f("v_mov_b32 v96, %d" % (K1_AR + R_FLAG))
        f.lds("ds_read_b32 v97, v96", "FR")
        f.lgwait("FR")
        f.group(["s_nop 0", "v_readfirstlane_b32 s41, v97", "s_nop 3", "s_cmp_eq_u32 s41, 15",
                 "s_cselect_b32 s61, s77, 0x%x" % OOB])
        f.after(48)
        for rb in range(16):
            d = a_reg(rb >> 3, rb & 7)
            f.vmem("buffer_load_dwordx4 %s, v0, s[92:95], s62 offen sc1" % vr(d), "FO", ["s_add_u32 s62, s61, %d" % (rb * 8192)])

    def seg_rp_load(f):
        f("""
        v_lshrrev_b32 v16, 1, v1
        v_mul_u32_u24 v17, 1280, v16
        v_and_b32 v18, 1, v1
        v_lshl_add_u32 v17, v18, 4, v17
        """)
        for j in range(3):
            pre = ["s_lshl_b32 s60, s2, 2",
                   "s_add_u32 s60, s60, s50",
                   "s_add_u32 s60, s60, %d" % (1024 if j == 1 else 0),
                   "s_mul_i32 s61, s60, 1639",
                   "s_lshr_b32 s61, s61, 16",
                   "s_mul_i32 s62, s61, 40",
                   "s_sub_u32 s62, s60, s62",
                   "s_mul_i32 s63, s62, 205",
                   "s_lshr_b32 s63, s63, 10",
                   "s_mul_i32 s45, s63, %d" % (68 * 5 - 5),
                   "s_add_u32 s45, s45, s62",
                   "s_mul_i32 s63, s61, 5",
                   "s_add_u32 s45, s45, s63",
                   "s_add_u32 s45, s45, %d" % (240 if j == 2 else 0),
                   "s_lshl_b32 s45, s45, 10",
                   "s_cmp_lt_u32 s60, %d" % (800 if j == 2 else 1920),
                   "s_cselect_b32 s%d, s45, 0x%x" % (96 + j, OOB),
                   "s_lshl_b32 s62, s62, 5"]
            f.group(pre)
            if j < 2:
                f.vmem("buffer_load_dwordx4 v17, s[64:67], s62 offen lds", "RP",
                       ["s_mul_i32 s61, s61, %d" % (32 * 1280), "s_add_u32 s62, s62, s61", "s_add_u32 m0, s43, %d" % (R_RP + j * 1024), "s_nop 0"])
            else:
                f.group(["s_mul_i32 s45, s61, 40",
                         "s_mul_i32 s60, s61, 160",
                         "s_sub_u32 s60, s60, %d" % (16 * 160 - 32),
                         "s_cmp_lt_u32 s61, 16",
                         "s_cselect_b32 s63, 8, 40",
                         "s_cselect_b32 s61, s45, s60",
                         "s_mul_i32 s61, s61, 1280",
                         "s_add_u32 s62, s62, s61"])
                f("""
                v_lshrrev_b32 v17, 3, v16
                v_mul_u32_u24 v17, s63, v17
                v_and_b32 v16, 7, v16
                v_add_u32 v17, v17, v16
                v_mul_u32_u24 v17, 1280, v17
                v_lshl_add_u32 v17, v18, 4, v17
                """)
                f.vmem("buffer_load_dwordx4 v17, s[88:91], s62 offen lds", "RP", ["s_add_u32 m0, s43, %d" % (R_RP + j * 1024), "s_nop 0"])

    def seg_rp_store(f):
        f("""
        v_lshrrev_b32 v16, 2, v1
        v_lshlrev_b32 v16, 5, v16
        v_and_b32 v17, 3, v1
        v_lshl_add_u32 v16, v17, 3, v16
        v_add_u32 v16, s43, v16
        """)
        f.vmwait("RP")
        for j in range(3):
            for hh in range(2):
                f.lds("ds_read_b64_tr_b16 %s, v16 offset:%d" % (vr(64 + j * 4 + hh * 2, 2), R_RP + j * 1024 + hh * 512), ("RT", j))
        for j in range(3):
            f.lgwait(("RT", j))
            f.vmem("buffer_store_dwordx4 %s, v0, s[68:71], s%d offen" % (vr(64 + j * 4), 96 + j), "RS")

    for gs in range(2):
        for _, fn in dma(gs):
            fn()
    yield
    for gs in range(2, 4):
        dmaq += dma(gs)
    if st == 0:
        fA("""
        v_lshl_add_u32 v13, s50, 6, v1
        v_lshlrev_b32 v14, 1, v13
        s_mul_i32 s60, s48, 192
        """)
        fA.vmem("buffer_load_ushort v15, v14, s[96:99], s60 offen", "B1")
        fA("""
        v_min_u32 v13, 127, v13
        v_lshl_add_u32 v14, v13, 2, s59
        """)
        fA.after(8)
        fA.vmwait("B1")
        fA("v_lshlrev_b32 v15, 16, v15")
        fA.lds("ds_write_b32 v14, v15 offset:%d" % T_B1, "B1W")
    a("s_waitcnt lgkmcnt(0)")
    barrier(0)
    stamp(a, 1, 19, lg)
    dmaq += dma(4)
    for txt, tag in reads(0):
        a(txt)
        lg.add(tag)
    for sg in range(60):
        p, s = sg // 20, sg % 20
        NT = NTP[p]
        fA.cur = fB.cur = sg
        if p == 0:
            lg.wait(("A", sg))
        if (sg & 1) and sg < 59:
            n = (sg + 1) // 2
            barrier(n)
            dmaq += dma(n + 4)
        dsq = reads(sg + 1) if sg < 59 else []
        ml = []
        for c in range(NT):
            for t in range(2):
                ml.append((c, t))
        if p == 0:
            ml.append(("G", st))
        nds = (len(dsq) + len(ml) - 1) // len(ml)
        for i, (c, t) in enumerate(ml):
            A_ = vr(a_reg(t, s))
            if c == "G":
                a("v_mfma_f32_16x16x32_bf16 %s, %s, %s, %s" % (vr(V_GR), A_, A_, "0" if s == 0 else vr(V_GR)))
            else:
                if t == 0:
                    lg.wait(("B", sg, c))
                d = vr(ACC[p][c * 2 + t])
                B_ = vr(b_reg(sg, c))
                if p == 0:
                    a("v_mfma_f32_16x16x32_bf16 %s, %s, %s, %s" % (d, A_, B_, "0" if s == 0 else d))
                else:
                    a("v_mfma_f32_16x16x32_bf16 %s, %s, %s, %s" % (d, B_, A_, "0" if s == 0 else d))
            k = (len(dsq) + (len(ml) - i) - 1) // (len(ml) - i)
            for _ in range(k):
                if dsq:
                    txt, tag = dsq.pop(0)
                    a(txt)
                    lg.add(tag)
            if dmaq:
                dmaq.pop(0)[1]()
            nf = 2 if p == 0 else (NF1 if p == 1 else NF2)
            n0 = len(fB.F)
            fB.pop(nf)
            used = n0 - len(fB.F)
            fA.pop(max(nf - used, 2 if p == 2 else 0))
        assert not dsq
        lbl = "K1_%s_CS%d" % (N, sg)
        a("s_cmp_lg_u32 s50, %d" % (s & 3))
        a("s_cbranch_scc1 %s" % lbl)
        for c in range(NT):
            d = vr(V_CS + 4 * c)
            a("v_mfma_f32_16x16x32_bf16 %s, %s, %s, %s" % (d, vr(V_ONES), vr(b_reg(sg, c)), "0" if s < 4 else d))
        a.label(lbl)
        if s == 0 and p > 0:
            assert not any(isinstance(it, tuple) and it[0] == "lds" and it[2] == "CSA" for it in fA.F + fB.F)
        if s == 19:
            stamp(a, 2 + p, 19, lg)
            if p == 0:
                fA.flush()
                seg_kv(fA)
            elif p == 1:
                assert not any(isinstance(it, tuple) and it[0] in ("lds",) and it[2] != "FL" and it[2] != "FR" for it in fA.F), [it for it in fA.F if isinstance(it, tuple)][:5]
                seg_cs(fB, 1)
                fB.lgwait("CSA")
                fB.sp(21)
                seg_epi(fB, 1)
    fA.cur = fB.cur = 60
    fC = Fill(a, vm, lg)
    seg_cs(fC, 2)
    fC.flush()
    fA.flush()
    fB.flush()
    lg.wait("CSA")
    a("s_barrier")
    seg_epi(fC, 2)
    fC.flush()
    stamp(a, 5, 19, lg)
    a("s_cmp_lg_u32 s41, 15")
    a("s_cbranch_scc1 K1_END")
    a("s_branch K1_FOLD_%d" % st)
    return_vm[st] = vm


return_vm = {}


def gen_fold(a, st):
    vm = return_vm[st]
    a.label("K1_FOLD_%d" % st)
    a("""
    v_and_b32 v2, 15, v1
    v_lshrrev_b32 v3, 4, v1
    s_lshl_b32 s60, s82, 4
    v_lshl_add_u32 v4, v3, 2, s60
    s_lshl_b32 s60, s83, 4
    v_add_u32 v5, s60, v2
    v_cmp_le_u32 vcc, 20, v4
    v_cmp_le_u32 s[60:61], 20, v5
    s_xnor_b64 s[84:85], vcc, s[60:61]
    v_cmp_gt_u32 vcc, 40, v4
    s_and_b64 s[84:85], s[84:85], vcc
    v_cmp_gt_u32 s[86:87], 40, v5
    s_and_b64 s[84:85], s[84:85], s[86:87]
    s_and_b32 s62, s48, 1
    s_lshl_b32 s63, s62, 3
    s_cmp_eq_u32 s83, 2
    s_cselect_b32 s63, s63, 0
    v_xor_b32 v6, s63, v2
    s_lshl_b32 s63, s62, 1
    s_lshl_b32 s60, s83, 10
    s_lshl_b32 s61, s82, 3
    s_add_u32 s60, s60, s61
    s_lshl_b32 s61, s83, 9
    s_add_u32 s61, s61, 2560
    s_cmp_eq_u32 s82, 2
    s_cselect_b32 s63, s63, 0
    s_cselect_b32 s45, 3, 4
    s_cselect_b32 s60, s61, s60
    v_xor_b32 v7, s63, v3
    v_lshl_add_u32 v6, v7, 4, v6
    v_lshlrev_b32 v6, s45, v6
    s_lshl_b32 s61, s48, 12
    s_add_u32 s60, s60, s61
    s_lshl_b32 s63, s62, 12
    s_add_u32 s61, s82, s83
    s_cmp_eq_u32 s61, 4
    s_cselect_b32 s61, s63, 0
    s_cselect_b64 s[86:87], s[86:87], -1
    s_sub_u32 s60, s60, s61
    v_mov_b32 v8, 0x%x
    v_cndmask_b32 v6, v8, v6, s[86:87]
    """ % OOB)
    a("""
    s_lshl_b32 s61, s48, 6
    s_lshl_b32 s63, s82, 3
    s_add_u32 s61, s61, s63
    s_lshr_b32 s63, s48, 2
    s_lshl_b32 s63, s63, 6
    s_add_u32 s63, s63, 1024
    s_lshl_b32 s45, s62, 5
    s_add_u32 s63, s63, s45
    s_bfe_u32 s45, s48, 0x10001
    s_lshl_b32 s45, s45, 3
    s_add_u32 s63, s63, s45
    s_cmp_eq_u32 s82, 2
    s_cselect_b32 s61, s63, s61
    s_add_u32 s61, s61, %d
    v_lshl_add_u32 v7, v3, 4, s61
    v_cmp_eq_u32 s[86:87], 40, v5
    s_and_b64 s[86:87], s[86:87], vcc
    v_cndmask_b32 v7, v8, v7, s[86:87]
    """ % KV_Z)
    srd(a, 24, 16, SZ_KV, WS_KV)
    vm.wait("FO")
    R = [a_reg(rb >> 3, rb & 7) for rb in range(16)]
    for stp in (8, 4, 2, 1):
        for rb in range(stp):
            for e in range(4):
                a("v_add_f32 v%d, v%d, v%d" % (R[rb] + e, R[rb] + e, R[rb + stp] + e))
    a("""
    v_cvt_pk_bf16_f32 v10, v96, v97
    v_cvt_pk_bf16_f32 v11, v98, v99
    v_cndmask_b32 v12, 0, v10, s[84:85]
    v_cndmask_b32 v13, 0, v11, s[84:85]
    buffer_store_dwordx2 v[12:13], v6, s[24:27], s60 offen
    buffer_store_dwordx2 v[10:11], v7, s[24:27], 0 offen
    """)
    stamp(a, 6, 19)
    a("s_branch K1_END")


def gen_k1(a):
    a.raw(".globl k1_kernel")
    a.raw(".p2align 8")
    a.raw(".type k1_kernel,@function")
    a.label("k1_kernel")
    a("""
    s_cmp_ge_u32 s2, 256
    s_cbranch_scc1 K1_END
    s_load_dwordx4 s[4:7], s[0:1], 0
    s_load_dwordx2 s[8:9], s[0:1], 16
    s_load_dwordx4 s[12:15], s[0:1], 32
    s_load_dwordx2 s[18:19], s[0:1], 48
    s_load_dwordx4 s[64:67], s[0:1], 72
    v_and_b32 v1, 63, v0
    v_lshrrev_b32 v13, 6, v0
    s_nop 0
    v_readfirstlane_b32 s40, v13
    v_lshlrev_b32 v0, 4, v1
    """)
    a("""
    s_and_b32 s60, s2, 3
    s_lshl_b32 s48, s60, 2
    s_bfe_u32 s60, s2, 0x20003
    s_add_u32 s48, s48, s60
    s_bfe_u32 s60, s2, 0x10002
    s_lshl_b32 s49, s60, 3
    s_lshr_b32 s60, s2, 5
    s_add_u32 s49, s49, s60
    s_and_b32 s50, s40, 3
    s_lshr_b32 s51, s40, 2
    s_lshl_b32 s60, s49, 7
    s_lshl_b32 s61, s40, 4
    s_add_u32 s60, s60, s61
    v_lshrrev_b32 v13, 3, v1
    v_and_b32 v14, 7, v1
    v_xor_b32 v15, v14, v13
    v_add_u32 v13, s60, v13
    v_mul_u32_u24 v7, 1280, v13
    v_lshl_add_u32 v7, v15, 4, v7
    s_lshr_b32 s60, s40, 1
    s_mul_i32 s47, s60, %d
    s_and_b32 s60, s40, 1
    s_lshl_b32 s60, s60, 11
    s_add_u32 s47, s47, s60
    s_add_u32 s47, s47, %d
    """ % (AREG, K1_AR))
    a("""
    s_cmp_ge_u32 s40, 6
    s_cselect_b32 s61, 6, 0
    s_cselect_b32 s62, 1, 0
    s_sub_u32 s61, s40, s61
    s_lshl_b32 s46, s61, 10
    s_mul_i32 s63, s62, %d
    s_add_u32 s46, s46, s63
    s_lshl_b32 s52, s50, 10
    s_add_u32 s52, s52, %d
    s_mul_i32 s45, s48, 80
    s_mul_i32 s60, s62, 1280
    s_add_u32 s60, s60, s45
    s_add_u32 s60, s60, 1280
    s_add_u32 s63, s45, 2560
    s_sub_u32 s58, s45, 16
    """ % (BSTR, BSTR + 2048))

    def bvoff(dst, sj, jadd, scol, mask):
        a("""
        v_lshl_add_u32 v13, %s, 6, v1
        v_add_u32 v13, %d, v13
        v_mul_u32_u24 v14, 10923, v13
        v_lshrrev_b32 v14, 16, v14
        v_mul_u32_u24 v15, 6, v14
        v_sub_u32 v15, v13, v15
        v_cmp_eq_u32 vcc, 5, v15
        v_mov_b32 v16, %s
        v_mov_b32 v17, s58
        v_cndmask_b32 v16, v16, v17, vcc
        v_lshl_add_u32 v15, v15, 4, v16
        """ % (sj, jadd, scol))
        perm(a, dst, 14, 16)
        a("v_mul_u32_u24 v%d, 3840, v%d" % (dst, dst))
        a("v_add_u32 v%d, v%d, v15" % (dst, dst))
        if mask:
            a("s_not_b64 s[54:55], vcc")
            a("s_cmp_eq_u32 s62, 1")
            a("s_cselect_b64 s[54:55], -1, s[54:55]")
    bvoff(8, "s61", 0, "s60", True)
    bvoff(9, "s50", 128, "s63", False)
    a("s_waitcnt lgkmcnt(0)")
    srd(a, 20, 4, SZ_X)
    srd(a, 24, 6, SZ_WQKV)
    a("""
    s_mov_b64 s[10:11], s[64:65]
    s_mov_b64 s[16:17], s[66:67]
    s_cmp_eq_u32 s51, 1
    s_cbranch_scc1 K1_V_PRO
    """)
    gens = [gen_stream(a, 0), gen_stream(a, 1)]
    next(gens[0])
    a("s_branch K1_SETUP")
    a.label("K1_V_PRO")
    next(gens[1])
    a.label("K1_SETUP")
    a.prof_base = 0
    stamp_init(a)
    stamp(a, 0, 19)
    srd(a, 28, 12, SZ_W1)
    srd(a, 32, 16, SZ_AP, WS_AP)
    srd(a, 36, 10, 256)
    srd(a, 64, 18, SZ_W2)
    srd(a, 68, 16, SZ_PB, WS_PB)
    srd(a, 88, 8, SZ_WO)
    srd(a, 92, 16, SZ_SLAB, WS_SLAB)
    jobs = [(0, 0), (0, 1), (1, 0), (1, 1), (1, 2), (2, 1), (2, 2), (0, 2)]
    jt = sum((ja | (jb << 2)) << (4 * w) for w, (ja, jb) in enumerate(jobs))
    a("""
    s_mov_b32 s59, %d
    s_mul_i32 s43, s50, %d
    s_add_u32 s43, s43, %d
    s_lshl_b32 s44, s40, 9
    s_add_u32 s44, s44, %d
    s_lshl_b32 s41, s48, 4
    s_add_u32 s42, s41, s49
    s_lshl_b32 s42, s42, 3
    s_add_u32 s42, s42, s40
    s_lshl_b32 s42, s42, 10
    s_lshl_b32 s63, s48, 7
    s_add_u32 s63, s63, s40
    s_lshl_b32 s63, s63, 10
    s_lshl_b32 s60, s40, 2
    s_lshr_b32 s60, 0x%x, s60
    s_and_b32 s82, s60, 3
    s_bfe_u32 s83, s60, 0x20002
    s_lshl_b32 s86, s82, 10
    s_add_u32 s86, s86, %d
    s_lshl_b32 s87, s83, 10
    s_add_u32 s87, s87, %d
    s_lshl_b32 s60, s49, 3
    s_lshl_b32 s61, s50, 1
    s_add_u32 s60, s60, s61
    s_mul_i32 s60, s60, %d
    s_mul_i32 s61, s48, 3072
    s_add_u32 s56, s60, s61
    s_lshl_b32 s61, s48, 10
    s_add_u32 s57, s60, s61
    s_add_u32 s57, s57, %d
    s_lshr_b32 s61, s48, 2
    s_lshl_b32 s61, s61, 10
    s_add_u32 s58, s60, s61
    s_add_u32 s58, s58, %d
    s_mul_i32 s53, s51, %d
    s_lshl_b32 s60, s50, 10
    s_add_u32 s53, s53, s60
    """ % (K1_TAB, AREG, K1_AR, K1_TAB + T_ST, jt, K1_AR + R_KVF, K1_AR + R_KVF + 3072, 68 * 1024, 48 * 1024, 64 * 1024, BSTR))
    a("s_mov_b32 s77, s63")
    a("""
    s_mul_i32 s60, s51, %d
    v_lshrrev_b32 v13, 2, v1
    v_and_b32 v14, 3, v1
    v_mul_u32_u24 v2, 96, v13
    v_lshl_add_u32 v2, v14, 3, v2
    v_add_u32 v2, s60, v2
    v_lshlrev_b32 v3, 6, v13
    v_lshl_add_u32 v3, v14, 3, v3
    v_bfe_u32 v15, v13, 2, 1
    v_lshl_add_u32 v3, v15, 5, v3
    v_add_u32 v3, s60, v3
    v_xor_b32 v4, 32, v3
    v_lshrrev_b32 v16, 4, v1
    v_and_b32 v17, 7, v1
    v_xor_b32 v16, v16, v17
    v_and_b32 v17, 15, v1
    v_lshlrev_b32 v5, 7, v17
    v_lshl_add_u32 v5, v16, 4, v5
    v_add_u32 v5, s43, v5
    v_xor_b32 v6, 64, v5
    v_lshlrev_b32 v15, 1, v15
    v_xor_b32 v14, v15, v14
    v_lshlrev_b32 v14, 4, v14
    v_lshl_add_u32 v13, s50, 4, v13
    """ % BSTR)
    perm(a, 16, 13, 17)
    a("""
    s_mul_i32 s60, s48, 192
    s_lshl_b32 s61, s51, 6
    s_add_u32 s60, s60, s61
    v_mul_u32_u24 v10, 3072, v16
    v_add3_u32 v10, v10, v14, s60
    s_mul_i32 s60, s48, 80
    v_mul_u32_u24 v11, 3840, v16
    v_add3_u32 v11, v11, v14, s60
    v_mov_b32 v20, 0x3f803f80
    v_mov_b32 v21, 0x3f803f80
    v_mov_b32 v22, 0x3f803f80
    v_mov_b32 v23, 0x3f803f80
    v_mov_b32 v12, 0
    v_mov_b32 v13, 0
    v_mov_b32 v14, 0
    v_mov_b32 v15, 0
    s_lshl_b32 s60, s50, 10
    s_add_u32 s60, s60, s59
    v_add_u32 v16, s60, v0
    ds_write_b128 v16, v[12:15]
    s_cmp_ge_u32 s40, 6
    s_cselect_b32 s60, 6, 0
    s_sub_u32 s60, s40, s60
    s_mul_i32 s60, s60, %d
    v_mul_u32_u24 v16, 96, v1
    v_add_u32 v16, s60, v16
    ds_write_b128 v16, v[20:23] offset:80
    s_cmp_eq_u32 s51, 1
    s_cbranch_scc1 K1_V
    """ % BSLOT)
    srd(a, 96, 14, SZ_B1)
    for _ in gens[0]:
        pass
    a.label("K1_V")
    for _ in gens[1]:
        pass
    gen_fold(a, 0)
    gen_fold(a, 1)
    a.label("K1_END")
    a("s_endpgm")

K2_REG = 20480
K2_LDS = 8 * K2_REG
K2_PRIO = int(os.environ.get("K2_PRIO", "2"))
K2_NF = int(os.environ.get("K2_NF", "4"))
XR, BR = 16, 24


def k2_epi_addr(f):
    for j in range(2):
        if j == 0:
            f("v_lshrrev_b32 v11, 4, v0")
        else:
            f("v_mov_b32 v11, s40")
            f("v_add_u32 v11, 32, v11")
        f("""
        v_mul_u32_u24 v12, 205, v11
        v_lshrrev_b32 v12, 11, v12
        v_mul_u32_u24 v13, 10, v12
        v_sub_u32 v13, v11, v13
        v_lshlrev_b32 v%d, 4, v13
        v_and_b32 v14, 15, v1
        v_mul_u32_u24 v15, 5120, v12
        v_lshl_add_u32 v15, v13, 9, v15
        v_lshl_add_u32 v%d, v14, 4, v15
        v_lshl_add_u32 v14, v12, 4, v14
        v_add_u32 v14, s41, v14
        v_mul_u32_u24 v14, 1280, v14
        v_add_u32 v%d, v14, v%d
        """ % (9 + j, 7 + j, 5 + j, 9 + j))


def k2_xloads(a, vm):
    L = []
    for j in range(2):
        def fx(j=j):
            a("buffer_load_dwordx4 %s, v%d, s[48:51], s42 offen" % (vr(XR + j * 4), 5 + j))
            vm.add("X")

        def fb(j=j):
            a("buffer_load_dwordx4 %s, v%d, s[52:55], s42 offen" % (vr(BR + j * 4), 9 + j))
            vm.add("X")
        L += [fx, fb]
    return L


def k2_h(a):
    vm = Q(a, "vmcnt", 63)
    NS = 4

    def frag(slot, i):
        return vr(112 + slot * 36 + i * 4)

    pend = []

    def add_step(n):
        slot = n % NS
        for kind, i in [("A", 0)] + [("B", c) for c in range(5)] + [("A", m) for m in (1, 2, 3)]:
            if kind == "A":
                def fn(i=i):
                    a("s_add_u32 s60, s44, %d" % (i * 68 * 1024 + n * 1024))
                    a("buffer_load_dwordx4 %s, v2, s[20:23], s60 offen" % frag(slot, i))
            else:
                def fn(i=i):
                    if i == 0 or i == 4:
                        a("s_add_u32 s61, s45, %d" % (n * 5120 + i * 1024))
                    a("buffer_load_dwordx4 %s, v2, s[24:27], s61 offen offset:%d" % (frag(slot, 4 + i), (i & 3) * 1024))
            pend.append(((kind, n, i), n - NS, fn))

    for n in range(12):
        add_step(n)
    done = [-1]

    def issue(k):
        while k > 0 and pend and pend[0][1] <= done[0]:
            tag, _, fn = pend.pop(0)
            fn()
            vm.add(tag)
            k -= 1

    issue(100)
    k2_epi_addr(a)
    xl = k2_xloads(a, vm)
    for n in range(12):
        slot = n % NS
        if n == 1:
            stamp(a, 1, 15)
        for m in range(4):
            for c in range(5):
                d = vr(32 + (m * 5 + c) * 4)
                if c == 0:
                    vm.wait(("A", n, m))
                if m == 0:
                    vm.wait(("B", n, c))
                a("v_mfma_f32_16x16x32_bf16 %s, %s, %s, %s" % (d, frag(slot, 4 + c), frag(slot, m), "0" if n == 0 else d))
                issue(1)
                if n == 9 and m == 2 and xl:
                    xl.pop(0)()
        done[0] = n
    assert not pend and not xl
    a("s_nop 7")
    a("s_nop 1")
    stamp(a, 4, 15)
    a("v_add_u32 v11, s46, v2")
    for i in range(20):
        a("ds_write_b128 v11, %s offset:%d" % (vr(32 + i * 4), i * 1024))


def k2_att(a):
    vm = Q(a, "vmcnt", 63)
    lg = Q(a, "lgkmcnt", 15)
    f = Fill(a, vm, lg)
    PQ = lambda m, s: 32 + (m * 5 + s) * 4
    KF = lambda s, k: 112 + (s * 3 + k) * 4
    G2 = lambda grp, half: 160 + grp * 6 + half * 2
    WOB = [178, 214]
    ZM = lambda s: 198 + 4 * s
    ZC = lambda half: 214 + half * 2
    DB = [[220 + 4 * i for i in range(6)], [16, 20, 24, 28, 244, 248]]
    ACCT = [112 + 4 * i for i in range(16)] + [198 + 4 * i for i in range(4)]
    if K2_PRIO:
        a("s_setprio %d" % K2_PRIO)
    for s in range(4):
        a("buffer_load_dwordx4 %s, v4, s[36:39], s62 offen offset:%d" % (vr(ZM(s)), s * 64))
        vm.add("Z")
    a("buffer_load_dwordx4 v[252:255], v4, s[36:39], s63 offen")
    vm.add("Z")

    def pq_loads(m):
        a("s_add_u32 s60, s43, %d" % (m * 68 * 1024))
        for s in range(4):
            a("buffer_load_dwordx4 %s, v2, s[20:23], s60 offen offset:%d" % (vr(PQ(m, s)), s * 1024))
            vm.add(("PQ", m))
        a("s_add_u32 s60, s44, %d" % (m * 68 * 1024))
        a("buffer_load_dwordx4 %s, v2, s[20:23], s60 offen" % vr(PQ(m, 4)))
        vm.add(("PQ", m))

    def kv_loads(p):
        for s in (2 * p, 2 * p + 1):
            a("s_add_u32 s60, s47, %d" % (s * 4096))
            for k in range(3):
                a("buffer_load_dwordx4 %s, v2, s[36:39], s60 offen offset:%d" % (vr(KF(s, k)), k * 1024))
                vm.add(("KV", p))
            a("buffer_load_dwordx2 %s, v3, s[36:39], s60 offen offset:3072" % vr(G2(s & 1, p) + 2 * p, 2))
            vm.add(("KV", p))
            if s == 2 * p:
                a("buffer_load_dwordx2 %s, v3, s[36:39], s60 offen offset:3584" % vr(G2(2, p) + 2 * p, 2))
                vm.add(("KV", p))

    pq_loads(0)
    kv_loads(0)
    kv_loads(1)
    for m in (1, 2, 3):
        pq_loads(m)
    for c in range(5):
        if c == 0 or c == 4:
            a("s_add_u32 s61, s45, %d" % (c * 1024))
        a("buffer_load_dwordx4 %s, v2, s[24:27], s61 offen offset:%d" % (vr(WOB[0] + c * 4), (c & 3) * 1024))
        vm.add(("WO", 0))
    dma = []
    for s in range(1, 5):
        for c in range(5):
            def fd(s=s, c=c):
                a("s_add_u32 m0, s46, %d" % ((s - 1) * 5120 + c * 1024))
                if s < 4:
                    a("s_add_u32 s61, s45, %d" % (s * 5120 + c * 1024))
                else:
                    a("s_add_u32 s61, s28, %d" % (c * 1024))
                a("buffer_load_dwordx4 v2, s[24:27], s61 offen lds")
                vm.add(("WO", s))
            dma.append(fd)
    while dma and len(vm.q) < 60:
        dma.pop(0)()
    a("""
    v_and_b32 v11, 3, v1
    v_lshrrev_b32 v12, 4, v1
    v_min_u32 v13, 1, v12
    v_cmp_eq_u32 s[64:65], 0, v11
    v_cmp_eq_u32 s[66:67], v13, v11
    v_cmp_eq_u32 s[68:69], 2, v11
    v_add_u32 v13, 2, v13
    v_cmp_eq_u32 s[70:71], v13, v11
    v_or_b32 v13, 1, v12
    v_cmp_eq_u32 s[82:83], v13, v11
    v_cmp_eq_u32 s[84:85], 0, v12
    v_cmp_gt_u32 s[86:87], 2, v12
    """)
    for b in (162, 168, 174, 216):
        a("v_mov_b32 v%d, 0" % b)
        a("v_mov_b32 v%d, 0" % (b + 1))
    k2_epi_addr(a)
    a("v_add_u32 v4, s46, v2")
    vm.wait("Z")
    for s in range(4):
        for h in range(2):
            ms = 64 + 4 * (s & 1) + 2 * h
            for d in range(2):
                r = ZM(s) + 2 * h + d
                a("v_cndmask_b32 v%d, 0, v%d, s[%d:%d]" % (r, r, ms, ms + 1))
    for h in range(2):
        for d in range(2):
            a("v_cndmask_b32 v%d, 0, v%d, s[82:83]" % (214 + 4 * h + d, 252 + 2 * h + d))

    def post(m, p):
        D = DB[p]
        dn = D[5]
        f.group(["s_nop 1"])
        for r in range(4):
            f("v_add_f32 v%d, %s, v%d" % (dn + r, EPS6, dn + r))
        for r in range(4):
            f("v_rcp_f32 v%d, v%d" % (dn + r, dn + r))
        f("v_cndmask_b32 v11, v%d, v%d, s[84:85]" % (dn + 1, dn))
        f("v_cndmask_b32 v12, v%d, v%d, s[84:85]" % (dn + 3, dn + 2))
        f("v_cndmask_b32 v13, v%d, v%d, s[86:87]" % (dn + 3, dn + 1))
        sc = [dn, 11, dn + 2, 12, 13]
        dst = [PQ(m, 2 * p), PQ(m, 2 * p) + 2, PQ(m, 2 * p + 1), PQ(m, 2 * p + 1) + 2, PQ(m, 4) + 2 * p]
        for T in range(5):
            if T == 4:
                f.after(("ck", m))
            for r in range(4):
                f("v_mul_f32 v%d, v%d, v%d" % (D[T] + r, D[T] + r, sc[T]))
            f("v_cvt_pk_bf16_f32 v%d, v%d, v%d" % (dst[T], D[T], D[T] + 1))
            f("v_cvt_pk_bf16_f32 v%d, v%d, v%d" % (dst[T] + 1, D[T] + 2, D[T] + 3))

    f.cur = ("a", 0)
    for m in range(4):
        for p in range(2):
            D = DB[p]
            u0, u1 = 2 * p, 2 * p + 1
            ck = vr(PQ(m, 4))
            ml = [(D[5], ZC(p), PQ(m, 4), 1),
                  (D[1], G2(0, p), PQ(m, 4), 1),
                  (D[3], G2(1, p), PQ(m, 4), 1),
                  (D[4], G2(2, p), PQ(m, 4), 1),
                  (D[5], ZM(u0), PQ(m, u0), 0),
                  (D[0], KF(u0, 0), PQ(m, u0), 1),
                  (D[2], KF(u1, 0), PQ(m, u1), 1),
                  (D[5], ZM(u1), PQ(m, u1), 0),
                  (D[1], KF(u0, 1), PQ(m, u0), 0),
                  (D[3], KF(u1, 1), PQ(m, u1), 0),
                  (D[4], KF(u0, 2), PQ(m, u0), 0),
                  (D[4], KF(u1, 2), PQ(m, u1), 0)]
            vm.wait(("PQ", m))
            if m == 0:
                if p == 0:
                    stamp(a, 1, 15)
            for i, (d, A_, B_, first) in enumerate(ml):
                if i == 1:
                    vm.wait(("KV", p))
                a("v_mfma_f32_16x16x32_bf16 %s, %s, %s, %s" % (vr(d), vr(A_), vr(B_), "0" if first else vr(d)))
                if p == 1 and i == 3:
                    f.cur = ("ck", m)
                if dma and len(vm.q) < 60:
                    dma.pop(0)()
                f.pop(K2_NF)
            f.flush()
            post(m, p)
    assert not dma
    stamp(a, 2, 15)
    xl = k2_xloads(a, vm)
    for s in range(5):
        B0 = WOB[s & 1]
        rd = []
        if s < 4:
            for c in range(5):
                rd.append(("ds_read_b128 %s, v4 offset:%d" % (vr(WOB[(s + 1) & 1] + c * 4), s * 5120 + c * 1024), ("W", s + 1, c)))
        if s == 0:
            vm.wait(("WO", 0))
        if s == 1:
            f.flush()
            a("s_nop 1")
        for m in range(4):
            for c in range(5):
                d = vr(ACCT[m * 5 + c])
                if m == 0 and s > 0:
                    lg.wait(("W", s, c))
                a("v_mfma_f32_16x16x32_bf16 %s, %s, %s, %s" % (d, vr(B0 + c * 4), vr(PQ(m, s)), "0" if s == 0 else d))
                if m >= 1 and rd:
                    if len(rd) == 5:
                        vm.wait(("WO", s + 1))
                    txt, tag = rd.pop(0)
                    a(txt)
                    lg.add(tag)
                if s == 2 and m == 3 and xl:
                    xl.pop(0)()
                f.pop(K2_NF)
    assert not xl
    a("s_nop 7")
    a("s_nop 1")
    stamp(a, 4, 15)
    for i in range(20):
        a("ds_write_b128 v4, %s offset:%d" % (vr(ACCT[i]), i * 1024))
    if K2_PRIO:
        a("s_setprio 0")


def gen_k2(a):
    a.raw(".globl k2_kernel")
    a.raw(".p2align 8")
    a.raw(".type k2_kernel,@function")
    a.label("k2_kernel")
    a("""
    s_cmp_ge_u32 s2, 256
    s_cbranch_scc1 K2_END
    s_load_dwordx2 s[16:17], s[0:1], 80
    s_load_dwordx2 s[4:5], s[0:1], 0
    s_load_dwordx2 s[8:9], s[0:1], 56
    s_load_dwordx2 s[10:11], s[0:1], 64
    v_and_b32 v1, 63, v0
    v_lshrrev_b32 v13, 6, v0
    s_nop 0
    v_readfirstlane_b32 s40, v13
    v_lshlrev_b32 v2, 4, v1
    v_lshlrev_b32 v3, 3, v1
    v_and_b32 v4, 48, v1
    s_and_b32 s41, s2, 7
    s_lshl_b32 s41, s41, 2
    s_bfe_u32 s42, s2, 0x20003
    s_add_u32 s41, s41, s42
    s_mul_i32 s44, s41, %d
    s_lshl_b32 s41, s41, 6
    s_lshr_b32 s43, s2, 5
    s_mul_i32 s42, s43, 160
    s_mul_i32 s45, s43, %d
    s_mul_i32 s46, s40, %d
    s_and_b32 s60, s40, 3
    s_cmp_ge_u32 s40, 4
    s_cbranch_scc1 K2_HSET
    s_lshl_b32 s61, s60, 12
    s_add_u32 s43, s44, s61
    s_add_u32 s43, s43, %d
    s_lshl_b32 s61, s60, 10
    s_add_u32 s44, s44, s61
    s_add_u32 s44, s44, %d
    s_mul_i32 s61, s60, 5120
    s_add_u32 s28, s45, s61
    s_add_u32 s28, s28, %d
    s_mul_i32 s61, s60, 20480
    s_add_u32 s45, s45, s61
    s_add_u32 s45, s45, %d
    s_lshl_b32 s47, s60, 14
    s_lshl_b32 s62, s60, 8
    s_add_u32 s62, s62, %d
    s_lshl_b32 s63, s60, 6
    s_add_u32 s63, s63, %d
    s_branch K2_SET
    """ % (4 * 68 * 1024, 68 * 5120, K2_REG, 48 * 1024, 64 * 1024, 64 * 5120, 48 * 5120, KV_Z, KV_Z + 1024))
    a.label("K2_HSET")
    a("""
    s_mul_i32 s61, s60, 12288
    s_add_u32 s44, s44, s61
    s_mul_i32 s61, s60, %d
    s_add_u32 s45, s45, s61
    s_mov_b32 s43, 0
    s_mov_b32 s47, 0
    s_mov_b32 s28, 0
    s_mov_b32 s62, 0
    s_mov_b32 s63, 0
    """ % (12 * 5120))
    a.label("K2_SET")
    a("s_waitcnt lgkmcnt(0)")
    srd(a, 20, 16, SZ_AP, WS_AP)
    srd(a, 24, 16, SZ_PB, WS_PB)
    srd(a, 36, 16, SZ_KV, WS_KV)
    srd(a, 48, 4, SZ_X)
    srd(a, 52, 8, SZ_B2)
    srd(a, 56, 10, SZ_OUT)
    a.prof_base = 0x100000
    stamp_init(a)
    stamp(a, 0, 15)
    a("s_cmp_ge_u32 s40, 4")
    a("s_cbranch_scc1 K2_H")
    k2_att(a)
    a("s_branch K2_RED")
    a.label("K2_H")
    k2_h(a)
    a.label("K2_RED")
    a("""
    v_add_u32 v11, %d, v7
    v_add_u32 v12, %d, v7
    v_add_u32 v13, %d, v8
    v_add_u32 v14, %d, v8
    s_waitcnt vmcnt(0) lgkmcnt(0)
    s_barrier
    """ % (3 * K2_REG, 6 * K2_REG, 3 * K2_REG, 6 * K2_REG))
    lg = Q(a, "lgkmcnt", 15)
    R = lambda j, w: 32 + (j * 8 + w) * 8
    AD = [[7, 11, 12], [8, 13, 14]]
    for j in range(2):
        if j == 1:
            a("s_mov_b64 exec, 0xffff")
        for w in range(8):
            for h in range(2):
                a("ds_read_b128 %s, v%d offset:%d" % (vr(R(j, w) + h * 4), AD[j][w // 3], (w % 3) * K2_REG + h * 256))
                lg.add((j, w))
    for j in (1, 0):
        T = 160 + j * 16
        for d in range(4):
            a("v_lshlrev_b32 v%d, 16, v%d" % (T + 2 * d, XR + j * 4 + d))
            a("v_and_b32 v%d, 0xffff0000, v%d" % (T + 1 + 2 * d, XR + j * 4 + d))
            a("v_lshlrev_b32 v%d, 16, v%d" % (T + 8 + 2 * d, BR + j * 4 + d))
            a("v_and_b32 v%d, 0xffff0000, v%d" % (T + 9 + 2 * d, BR + j * 4 + d))
        for e in range(8):
            a("v_add_f32 v%d, v%d, v%d" % (T + e, T + e, T + 8 + e))
        if j == 1:
            a("s_mov_b64 exec, -1")
    for j in range(2):
        T = 160 + j * 16
        if j == 1:
            a("s_mov_b64 exec, 0xffff")
        for w in range(0, 8, 2):
            lg.wait((j, w + 1))
            for e in range(8):
                a("v_add_f32 v%d, v%d, v%d" % (R(j, w) + e, R(j, w) + e, R(j, w + 1) + e))
            for e in range(8):
                a("v_add_f32 v%d, v%d, v%d" % (T + e, T + e, R(j, w) + e))
        for d in range(4):
            a("v_cvt_pk_bf16_f32 v%d, v%d, v%d" % (T + 8 + d, T + 2 * d, T + 1 + 2 * d))
        a("buffer_store_dwordx4 %s, v%d, s[56:59], s42 offen" % (vr(T + 8), 5 + j))
    a("s_mov_b64 exec, -1")
    stamp(a, 5, 15)
    a.label("K2_END")
    a("s_endpgm")


def kd(name, vgpr, accum, sgpr=102):
    return """
.amdhsa_kernel %s
  .amdhsa_next_free_vgpr %d
  .amdhsa_next_free_sgpr %d
  .amdhsa_accum_offset %d
  .amdhsa_group_segment_fixed_size 0
  .amdhsa_kernarg_size 88
  .amdhsa_user_sgpr_count 2
  .amdhsa_user_sgpr_kernarg_segment_ptr 1
  .amdhsa_system_sgpr_workgroup_id_x 1
.end_amdhsa_kernel
""" % (name, vgpr, sgpr, accum)


def main():
    global PROF
    if len(sys.argv) > 2 and sys.argv[2].startswith("prof"):
        PROF = True
    a = Asm()
    a.raw("; @launch kernel=k1_kernel grid=(256,1,1) block=(512,1,1) lds=%d" % K1_LDS)
    a.raw("; @launch kernel=k2_kernel grid=(256,1,1) block=(512,1,1) lds=%d" % K2_LDS)
    a.raw('.amdgcn_target "amdgcn-amd-amdhsa--gfx950"')
    a.raw(".text")
    gen_k1(a)
    gen_k2(a)
    a.raw('.section .rodata,"a"')
    a.raw(".p2align 6")
    a.raw(kd("k1_kernel", 256, 256))
    a.raw(".p2align 6")
    a.raw(kd("k2_kernel", 256, 256))
    out = sys.argv[1] if len(sys.argv) > 1 else "cdna_kernels/%s.s" % NAME
    open(out, "w").write(a.text())


if __name__ == "__main__":
    main()
```

```python
import sys, os

NAME = "parallel_sum__linear_attn_block__mixer_channel_mlp__prompt"
ABL = os.environ.get("ABL", "").split(",")

WS_AP = 0
SZ_AP = 128 * 68 * 1024
WS_PB = 0x900000
SZ_PB = 8 * 68 * 5120
WS_KV = 0xC00000
KV_Z = 65536
SZ_KV = 65536 + 1280
WS_SLAB = 0xD00000
SZ_SLAB = 16 * 16 * 8192
WS_PROF = 0x1000000

SZ_X = 2048 * 640 * 2
SZ_WQKV = 640 * 1920 * 2
SZ_WO = 640 * 640 * 2
SZ_W1 = 640 * 1536 * 2
SZ_B1 = 1536 * 2
SZ_W2 = 1536 * 640 * 2
SZ_B2 = 640 * 2
SZ_OUT = 2048 * 640 * 2
OOB = 0x7ffffff0
PROF = False
PROF2 = False


class Asm:
    def __init__(self):
        self.lines = []
        self.prof_base = 0

    def __call__(self, s):
        for ln in s.strip("\n").split("\n"):
            ln = ln.strip()
            if ln:
                self.lines.append("    " + ln)

    def label(self, l):
        self.lines.append(l + ":")

    def raw(self, s):
        self.lines.append(s)

    def text(self):
        return "\n".join(self.lines) + "\n"


class Q:
    def __init__(self, a, name, cap):
        self.a, self.name, self.cap, self.q = a, name, cap, []

    def add(self, tag):
        self.q.append(tag)

    def wait(self, tag):
        idx = [i for i, t in enumerate(self.q) if t == tag]
        if not idx:
            return
        n = len(self.q) - 1 - idx[-1]
        self.a("s_waitcnt %s(%d)" % (self.name, min(n, self.cap)))
        self.q = self.q[idx[-1] + 1:]

    def drain(self):
        self.a("s_waitcnt %s(0)" % self.name)
        self.q = []


class Fill:
    def __init__(self, a, vm, lg):
        self.a, self.vm, self.lg, self.F = a, vm, lg, []

    def __call__(self, txt):
        for ln in txt.strip("\n").split("\n"):
            ln = ln.strip()
            if ln:
                self.F.append(ln)

    def group(self, lst):
        self.F.append(list(lst))

    def lds(self, txt, tag):
        self.F.append(("lds", txt, tag))

    def vmem(self, txt, tag, pre=()):
        self.F.append(("vmem", txt, tag, list(pre)))

    def lgwait(self, tag):
        self.F.append(("lgwait", tag))

    def vmwait(self, tag):
        self.F.append(("vmwait", tag))

    def call(self, fn):
        self.F.append(("call", fn))

    def sp(self, n):
        self.F.append(("sp", n))

    def after(self, step):
        self.F.append(("after", step))

    cur = 0
    drop = False

    def pop(self, k):
        while k > 0 and self.F:
            it = self.F[0]
            if isinstance(it, tuple) and it[0] == "sp":
                return
            if isinstance(it, tuple) and it[0] == "after":
                if self.cur < it[1]:
                    return
                self.F.pop(0)
                continue
            self.F.pop(0)
            if self.drop:
                pass
            elif isinstance(it, str):
                self.a(it)
            elif isinstance(it, list):
                for x in it:
                    self.a(x)
            elif it[0] == "vmwait":
                self.vm.wait(it[1])
            elif it[0] == "lgwait":
                self.lg.wait(it[1])
            elif it[0] == "lds":
                self.a(it[1])
                self.lg.add(it[2])
            elif it[0] == "vmem":
                for x in it[3]:
                    self.a(x)
                self.a(it[1])
                self.vm.add(it[2])
            elif it[0] == "call":
                it[1]()
            k -= 1

    def has_sp(self, n):
        return any(isinstance(it, tuple) and it[0] == "sp" and it[1] == n for it in self.F)

    def flush_to_sp(self, n):
        cnt = 0
        while True:
            it = self.F[0]
            if isinstance(it, tuple) and it[0] == "sp":
                assert it[1] == n, (it, n)
                return cnt
            if isinstance(it, tuple) and it[0] == "after":
                assert self.cur >= it[1], (it, self.cur)
            self.pop(1)
            cnt += 1

    def drop_sp(self, n):
        assert self.F[0] == ("sp", n)
        self.F.pop(0)

    def flush(self):
        while self.F:
            it = self.F[0]
            assert not (isinstance(it, tuple) and it[0] == "sp"), it
            if isinstance(it, tuple) and it[0] == "after":
                assert self.cur >= it[1]
            self.pop(1)


def vr(b, n=4):
    return "v[%d:%d]" % (b, b + n - 1)


def ar(b, n=4):
    return "a[%d:%d]" % (b, b + n - 1)


def srd(a, d, base, size, add=0):
    if add:
        a("s_add_u32 s%d, s%d, 0x%x" % (d, base, add))
        a("s_addc_u32 s%d, s%d, 0" % (d + 1, base + 1))
    else:
        a("s_mov_b32 s%d, s%d" % (d, base))
        a("s_mov_b32 s%d, s%d" % (d + 1, base + 1))
    a("s_mov_b32 s%d, 0x%x" % (d + 2, size))
    a("s_mov_b32 s%d, 0x00020000" % (d + 3))


def stamp_init(a, wsbase=16):
    if not PROF:
        return
    srd(a, 72, wsbase, 0x100000, WS_PROF + a.prof_base)
    a("s_lshl_b32 s76, s2, 3")
    a("s_add_u32 s76, s76, s40")
    a("s_lshl_b32 s76, s76, 9")


def stamp(a, i, vt, lg=None, vm=None):
    if not PROF:
        return
    a("s_memrealtime s[78:79]")
    a("s_waitcnt lgkmcnt(0)")
    if lg is not None:
        lg.q = []
    a("v_mov_b32 v%d, s78" % vt)
    a("s_mov_b64 s[80:81], exec")
    a("s_mov_b64 exec, 1")
    a("buffer_store_dword v%d, off, s[72:75], s76 offset:%d" % (vt, i * 4))
    if vm is not None:
        vm.add("P")
    a("s_mov_b64 exec, s[80:81]")
    a("s_nop 1")


def rnd(o, x, t):
    o("v_cvt_pk_bf16_f32 v%d, v%d, v%d" % (t, x, x))
    o("v_lshlrev_b32 v%d, 16, v%d" % (x, t))


def perm(a, dst, rho, t):
    a("""
    v_and_b32 v%d, 0xffffffe3, v%d
    v_bfe_u32 v%d, v%d, 4, 1
    v_lshl_or_b32 v%d, v%d, 2, v%d
    v_bfe_u32 v%d, v%d, 2, 2
    v_lshl_or_b32 v%d, v%d, 3, v%d
    """ % (dst, rho, t, rho, dst, t, dst, t, rho, dst, t, dst))

VA = 96
VB = 40
V_ONES = 20
V_CS = 24
V_GR = 36
ACC = [[64 + 4 * i for i in range(6)], [88, 92, 56, 60], [64, 68, 72, 76]]
NTP = [3, 2, 2]
BSLOT = 6144
BSTR = 6 * BSLOT
K1_AR = 2 * BSTR
AREG = 5 * 4096
K1_TAB = K1_AR + 4 * AREG
T_CS = 0
T_B1 = 3584
T_ST = 4096
K1_LDS = 163840
R_RAW = 0
R_KVF = 4096
R_FLAG = 10240
R_RP = 12288
SP1 = 11
SP2 = int(os.environ.get("SP2", "14"))
SP3 = int(os.environ.get("SP3", "20"))
SP4 = int(os.environ.get("SP4", "28"))
NF1 = int(os.environ.get("NF1", "6"))
NF2 = int(os.environ.get("NF2", "4"))
ROT = int(os.environ.get("ROT", "0"))
L2E = "0x3fb8aa3b"
EPS6 = "0x358637bd"
NEPS6 = "0xb58637bd"


def a_reg(t, s):
    return VA + (t * 20 + s) * 4


def b_reg(sg, c):
    return VB + (sg & 1) * (12 if sg < 20 else 8) + c * 4


def stats_chain(f, s, q, h0, h1, m, v, r, t):
    f("v_mul_f32 v%d, 0x3acccccd, v%d" % (s, s))
    f("v_mul_f32 v%d, 0x3acccccd, v%d" % (q, q))
    f("v_fma_f32 v%d, -v%d, v%d, v%d" % (q, s, s, q))
    f("v_max_f32 v%d, 0, v%d" % (q, q))
    f("v_cvt_pk_bf16_f32 v%d, v%d, v%d" % (t, s, q))
    f("v_lshlrev_b32 v%d, 16, v%d" % (m, t))
    f("v_and_b32 v%d, 0xffff0000, v%d" % (v, t))
    f("v_add_f32 v%d, 0x3727c5ac, v%d" % (v, v))
    rnd(f, v, t)
    f.group(["v_sqrt_f32 v%d, v%d" % (v, v), "s_nop 0"])
    rnd(f, v, t)
    f.group(["v_rcp_f32 v%d, v%d" % (r, v), "s_nop 0"])
    f("v_sub_f32 v%d, v%d, v%d" % (h0, s, m))
    f("v_mul_f32 v%d, v%d, v%d" % (h0, h0, r))
    f("v_mul_f32 v%d, v%d, v%d" % (h1, q, r))
    f("v_mul_f32 v%d, v%d, v%d" % (h1, h1, r))
    f("v_cvt_pk_bf16_f32 v%d, v%d, v%d" % (t, h0, h1))
    f("v_lshlrev_b32 v%d, 16, v%d" % (h0, t))
    f("v_and_b32 v%d, 0xffff0000, v%d" % (h1, t))
    f("v_add_f32 v%d, 0x3727c5ac, v%d" % (h1, h1))
    rnd(f, h1, t)
    f.group(["v_sqrt_f32 v%d, v%d" % (h1, h1), "s_nop 0"])
    rnd(f, h1, t)
    f.group(["v_rcp_f32 v%d, v%d" % (v, h1), "s_nop 0"])
    f("v_mul_f32 v%d, v%d, v%d" % (m, m, r))
    f("v_add_f32 v%d, v%d, v%d" % (h1, m, h0))
    f("v_mul_f32 v%d, v%d, v%d" % (h1, h1, v))
    f("v_mul_f32 v%d, v%d, v%d" % (h0, r, v))


def gelu2(o, lo, hi, e0, e1):
    o("v_fmaak_f32 v%d, v%d, v%d, 0x41b2e92f" % (e0, lo, lo))
    o("v_fmaak_f32 v%d, v%d, v%d, 0x41b2e92f" % (e1, hi, hi))
    o("v_mul_f32 v%d, v%d, v%d" % (e0, e0, lo))
    o("v_mul_f32 v%d, v%d, v%d" % (e1, e1, hi))
    o("v_mul_f32 v%d, 0xbdd2d3e8, v%d" % (e0, e0))
    o("v_mul_f32 v%d, 0xbdd2d3e8, v%d" % (e1, e1))
    o("v_exp_f32 v%d, v%d" % (e0, e0))
    o("v_exp_f32 v%d, v%d" % (e1, e1))
    o("v_add_f32 v%d, 1.0, v%d" % (e0, e0))
    o("v_add_f32 v%d, 1.0, v%d" % (e1, e1))
    o("v_rcp_f32 v%d, v%d" % (e0, e0))
    o("v_rcp_f32 v%d, v%d" % (e1, e1))
    o("v_mul_f32 v%d, v%d, v%d" % (lo, lo, e0))
    o("v_mul_f32 v%d, v%d, v%d" % (hi, hi, e1))


def phi2(o, lo, hi, e0, e1, dlo=None, dhi=None, eps_in=True):
    dlo = lo if dlo is None else dlo
    dhi = hi if dhi is None else dhi
    o("v_mul_f32 v%d, %s, v%d" % (e0, L2E, lo))
    o("v_mul_f32 v%d, %s, v%d" % (e1, L2E, hi))
    o("v_exp_f32_e64 v%d, v%d clamp" % (e0, e0))
    o("v_exp_f32_e64 v%d, v%d clamp" % (e1, e1))
    o("v_max_f32 v%d, %s, v%d" % (dlo, EPS6 if eps_in else "0", lo))
    o("v_max_f32 v%d, %s, v%d" % (dhi, EPS6 if eps_in else "0", hi))
    o("v_add_f32 v%d, v%d, v%d" % (dlo, dlo, e0))
    o("v_add_f32 v%d, v%d, v%d" % (dhi, dhi, e1))
    if not eps_in:
        o("v_add_f32 v%d, %s, v%d" % (dlo, EPS6, dlo))
        o("v_add_f32 v%d, %s, v%d" % (dhi, EPS6, dhi))


def gen_stream(a, st):
    N = "KV"[st]
    vm = Q(a, "vmcnt", 63)
    lg = Q(a, "lgkmcnt", 15)
    fA = Fill(a, vm, lg)
    fB = Fill(a, vm, lg)
    dmaq = []
    fA.drop = fB.drop = "nofill" in ABL

    def dma(gs):
        out = []
        if gs >= 30 or ("nodma" in ABL and gs > 4):
            return out
        def kupd():
            if gs > 0 and ROT:
                a("s_add_u32 s3, s3, 1")
                a("s_cmp_eq_u32 s3, 10")
                a("s_cselect_b32 s3, 0, s3")

        def soff(stride, add=0):
            if ROT:
                a("s_mul_i32 s45, s3, %d" % stride)
                if add:
                    a("s_add_u32 s45, s45, %d" % add)
            else:
                a("s_mov_b32 s45, %d" % ((gs % 10) * stride + add))
        if gs < 10:
            for q in range(2):
                def fa(q=q):
                    if q == 0:
                        kupd()
                    a("s_add_u32 m0, s47, %d" % ((gs % 5) * 4096 + q * 1024))
                    if q == 0:
                        soff(128)
                    else:
                        a("s_add_u32 s45, s45, %d" % (8 * 1280))
                    if "noA" in ABL:
                        return
                    a("buffer_load_dwordx4 v7, s[20:23], s45 offen lds")
                    vm.add(("S", gs))
                out.append((gs, fa))

            def fm():
                a("s_add_u32 m0, s46, %d" % ((gs % 6) * BSLOT))
                soff(64 * 3840)
                if "noB" in ABL:
                    return
                a("s_mov_b64 exec, s[54:55]")
                a("buffer_load_dwordx4 v8, s[24:27], s45 offen lds")
                a("s_mov_b64 exec, -1")
                vm.add(("S", gs))
            out.append((gs, fm))
            if (gs & 1) == st and "noB" not in ABL:
                def fx():
                    a("s_add_u32 m0, s52, %d" % ((gs % 6) * BSLOT))
                    a("s_nop 0")
                    a("buffer_load_dwordx4 v9, s[24:27], s45 offen lds")
                    vm.add(("S", gs))
                out.append((gs, fx))
        else:
            def fb():
                kupd()
                a("s_add_u32 m0, s53, %d" % ((gs % 6) * BSLOT - (64 if gs >= 20 and st == 1 else 0)))
                if gs >= 20 and st == 0:
                    soff(64 * 3840)
                    a("buffer_load_dwordx4 v11, s[24:27], s45 offen lds")
                else:
                    soff(64 * 3072)
                    a("buffer_load_dwordx4 v10, s[28:31], s45 offen%s lds" % (" offset:64" if gs >= 20 else ""))
                vm.add(("S", gs))
            out.append((gs, fb))
        return out

    def reads(sg):
        L = []
        gs, ks = sg >> 1, sg & 1
        if sg < 20:
            for t in range(2):
                L.append(("ds_read_b128 %s, v%d offset:%d" % (vr(a_reg(t, sg)), 5 + ks, (gs % 5) * 4096 + t * 2048), ("A", sg)))
        for c in range(NTP[sg // 20]):
            for hh in range(2):
                if sg < 20:
                    txt = "ds_read_b64_tr_b16 %s, v2 offset:%d" % (vr(b_reg(sg, c) + hh * 2, 2), (gs % 6) * BSLOT + ks * 3072 + hh * 1536 + c * 32)
                else:
                    txt = "ds_read_b64_tr_b16 %s, v%d offset:%d" % (vr(b_reg(sg, c) + hh * 2, 2), 3 + c, (gs % 6) * BSLOT + ks * 2048 + hh * 1024)
                L.append((txt, ("B", sg, c)))
        return L

    def barrier(n):
        for f in (fA, fB):
            if f.has_sp(n):
                f.flush_to_sp(n)
        while dmaq and (dmaq[0][0] <= n or n >= SP4):
            dmaq.pop(0)[1]()
        if PROF2:
            stamp(a, 8 + 3 * n, 19, lg, vm)
        vm.wait(("S", 29 if n >= SP4 else n))
        if PROF2:
            stamp(a, 9 + 3 * n, 19, lg, vm)
        if "nobar" not in ABL:
            a("s_barrier")
        if PROF2:
            stamp(a, 10 + 3 * n, 19, lg, vm)
        for f in (fA, fB):
            if f.has_sp(n):
                f.drop_sp(n)

    def seg_cs(f, p):
        if p == 0:
            f.group(["v_and_b32 v18, 15, v1", "s_lshl_b32 s60, s50, 2", "s_add_u32 s60, s60, s59", "v_lshl_add_u32 v18, v18, 4, s60",
                     "s_nop 7", "s_nop 1"])
            for c in range(3):
                f.lds("ds_write_b32 v18, v%d offset:%d" % (V_CS + 4 * c, T_CS + (st * 3 + c) * 256), "CSA")
        else:
            f.group(["s_nop 7", "s_nop 3", "v_lshl_add_u32 v18, v1, 2, s101"])
            f.lds("ds_write_b32 v18, v%d offset:%d" % (V_CS, (p - 1) * 1024), "CSA")

    def seg_epi(f, p):
        kind = "Q" if (p == 2 and st == 0) else "H"
        acc = ACC[p]
        AB = [6, 8]
        CSR, B1R = [80, 32], [84, 36]
        if kind == "H":
            f("v_and_b32 v13, 15, v1")
            f("v_lshl_add_u32 v13, v13, 3, s44")
            for t in range(2):
                f.lds("ds_read_b64 v[%d:%d], v13 offset:%d" % (AB[t], AB[t] + 1, 256 + t * 128), "E")
        else:
            f("v_and_b32 v13, 15, v1")
            f("v_lshl_add_u32 v13, v13, 2, s44")
            for t in range(2):
                f.lds("ds_read_b32 v%d, v13 offset:%d" % (AB[t], t * 64), "E")
                f.lds("ds_read_b32 v%d, v13 offset:%d" % (AB[t] + 1, 128 + t * 64), "E")
        for c in range(2):
            tid = [0, 6 + st * 2 + c, 10 + st * 2 + c][p]
            f.lds("ds_read_b128 %s, v5 offset:%d" % (vr(CSR[c]), T_CS + tid * 256), ("E", c))
            if kind == "H":
                col = (0 if st == 0 else (32 if p == 1 else 64)) + c * 16
                f.lds("ds_read_b128 %s, v5 offset:%d" % (vr(B1R[c]), T_B1 + col * 4), ("E", c))
        for c in range(2):
            f.lgwait(("E", c))
            for t in range(2):
                b = acc[c * 2 + t]
                al, be = AB[t], AB[t] + 1
                for r in range(4):
                    tmp = 16 + (r & 1)
                    if kind == "H":
                        f("v_fma_f32 v%d, -v%d, v%d, v%d" % (tmp, be, CSR[c] + r, B1R[c] + r))
                        f("v_fma_f32 v%d, v%d, v%d, v%d" % (b + r, b + r, al, tmp))
                    else:
                        f("v_fmaak_f32 v%d, v%d, v%d, %s" % (tmp, be, CSR[c] + r, NEPS6))
                        f("v_fma_f32 v%d, v%d, v%d, -v%d" % (b + r, b + r, al, tmp))
                for h in range(2):
                    (gelu2 if kind == "H" else phi2)(f, b + 2 * h, b + 2 * h + 1, 12 + 2 * h, 13 + 2 * h)
                d = acc[t] + 2 * c
                f("v_cvt_pk_bf16_f32 v%d, v%d, v%d" % (d, b, b + 1))
                f("v_cvt_pk_bf16_f32 v%d, v%d, v%d" % (d + 1, b + 2, b + 3))
                if c == 1:
                    if kind == "H":
                        j = 0 if st == 0 else p
                        pre = ["s_add_u32 s60, s56, %d" % (t * 68 * 1024 + j * 1024)]
                    else:
                        pre = ["s_add_u32 s60, s57, %d" % (t * 68 * 1024)]
                    f.vmem("buffer_store_dwordx4 %s, v0, s[32:35], s60 offen" % vr(acc[t]), "ST", pre)

    def seg_kv(f):
        acc = ACC[0]
        seg_cs(f, 0)
        f("v_add_u32 v13, s43, v0")
        if st == 0:
            for t in range(2):
                f.lds("ds_write_b128 v13, %s offset:%d" % (vr(acc[4 + t]), R_RAW + t * 1024), "RW")
        f.lds("ds_write_b128 v13, %s offset:%d" % (vr(V_GR), R_RAW + 2048 + st * 1024), "RW")
        f("""
        v_and_b32 v16, 15, v1
        v_lshl_add_u32 v12, v16, 4, s59
        v_bfe_u32 v17, v1, 4, 1
        v_lshlrev_b32 v17, 10, v17
        v_bfe_u32 v18, v1, 2, 2
        v_lshl_add_u32 v17, v18, 8, v17
        v_and_b32 v18, 3, v1
        v_lshl_add_u32 v17, v18, 2, v17
        v_add_u32 v14, s43, v17
        v_lshl_add_u32 v15, v16, 4, v14
        v_lshrrev_b32 v5, 4, v1
        v_lshl_add_u32 v5, v5, 4, s59
        """)
        if st == 1:
            f("""
            v_cmp_le_u32 s[84:85], 8, v16
            v_lshrrev_b32 v17, 4, v1
            v_lshlrev_b32 v9, 6, v17
            v_bfe_u32 v17, v1, 2, 1
            v_lshl_add_u32 v9, v17, 8, v9
            v_lshl_add_u32 v9, v18, 1, v9
            """)
            f.group(["s_and_b32 s60, s48, 1", "s_lshl_b32 s60, s60, 9", "s_bfe_u32 s61, s48, 0x10001", "s_lshl_b32 s61, s61, 3",
                     "s_add_u32 s60, s60, s61", "v_add_u32 v9, s60, v9"])
            f("v_mov_b32 v17, 0x%x" % OOB)
            f("v_cndmask_b32 v9, v17, v9, s[84:85]")
        f.lgwait("RW")
        f.sp(SP1)
        f.lds("ds_read_b32 v32, v14 offset:%d" % (R_RAW + 128), "SR")
        f.lds("ds_read_b32 v33, v15 offset:%d" % (R_RAW + 2048), "SR")
        CQ = [28, 36, 12]
        for c in range(3):
            f.lds("ds_read_b128 %s, v12 offset:%d" % (vr(CQ[c]), T_CS + (st * 3 + c) * 256), "CR")
        if st == 1:
            seg_rp_load(f)
        f.lgwait("CR")
        for c in range(3):
            f("v_add_f32 v%d, v%d, v%d" % (CQ[c], CQ[c], CQ[c] + 1))
            f("v_add_f32 v%d, v%d, v%d" % (CQ[c] + 2, CQ[c] + 2, CQ[c] + 3))
        for c in range(3):
            f("v_add_f32 v%d, v%d, v%d" % (6 + c, CQ[c], CQ[c] + 2))
        f("""
        v_and_b32 v16, 31, v1
        v_lshl_add_u32 v14, v16, 2, s44
        v_lshl_add_u32 v15, v16, 3, s44
        v_lshrrev_b32 v16, 4, v1
        v_lshl_add_u32 v16, v16, 4, s44
        """)
        stats_chain(f, 32, 33, 34, 35, 36, 37, 38, 39)
        f.lds("ds_write_b32 v14, v38", "SW")
        f.lds("ds_write_b32 v14, v36 offset:128", "SW")
        f.lds("ds_write_b64 v15, v[34:35] offset:256", "SW")
        f.lgwait("SW")
        for t in range(2):
            f.lds("ds_read_b128 v[32:35], v16 offset:%d" % (t * 64), ("AB", t))
            f.lds("ds_read_b128 v[36:39], v16 offset:%d" % (128 + t * 64), ("AB", t))
            f.lgwait(("AB", t))
            for c in range(3):
                b = acc[c * 2 + t]
                for r in range(4):
                    tmp = 17 + (r & 1)
                    if st == 0:
                        f("v_fmaak_f32 v%d, v%d, v%d, %s" % (tmp, 36 + r, 6 + c, NEPS6))
                    else:
                        f("v_mul_f32 v%d, v%d, v%d" % (tmp, 36 + r, 6 + c))
                    f("v_fma_f32 v%d, v%d, v%d, -v%d" % (b + r, b + r, 32 + r, tmp))
                if st == 0:
                    for h in range(2):
                        phi2(f, b + 2 * h, b + 2 * h + 1, 12 + 2 * h, 13 + 2 * h)
                elif c == 2:
                    for h in range(2):
                        phi2(f, b + 2 * h, b + 2 * h + 1, 12, 13, 14, 15, eps_in=False)
                        f("v_cvt_pk_bf16_f32 v%d, v14, v15" % (17 + h))
                    for h in range(2):
                        pre = ["s_add_u32 s60, s58, %d" % (t * 68 * 1024)] if h == 0 else []
                        f.vmem("buffer_store_short v%d, v9, s[32:35], s60 offen offset:%d" % (17 + h, h * 32), "ST", pre)
                        f.vmem("buffer_store_short_d16_hi v%d, v9, s[32:35], s60 offen offset:%d" % (17 + h, h * 32 + 16), "ST")
                d = acc[c * 2] + 2 * t
                f("v_cvt_pk_bf16_f32 v%d, v%d, v%d" % (d, b, b + 1))
                f("v_cvt_pk_bf16_f32 v%d, v%d, v%d" % (d + 1, b + 2, b + 3))
                if st == 1 and c == 2:
                    f("v_cndmask_b32 v%d, v%d, v%d, s[84:85]" % (d, d, V_ONES))
                    f("v_cndmask_b32 v%d, v%d, v%d, s[84:85]" % (d + 1, d + 1, V_ONES))
        f("v_add_u32 v13, s43, v0")
        for c in range(3):
            f.lds("ds_write_b128 v13, %s offset:%d" % (vr(acc[c * 2]), R_KVF + (st * 3 + c) * 1024), "FW")
        f("v_add_u32 v12, s86, v0")
        f("v_add_u32 v14, s87, v0")
        f.lgwait("FW")
        f.sp(SP2)
        KF = [64, 68, 72, 76]
        VF = [80, 84, 32, 36]
        for rg in range(4):
            f.lds("ds_read_b128 %s, v12 offset:%d" % (vr(KF[rg]), rg * AREG), ("J", rg))
            f.lds("ds_read_b128 %s, v14 offset:%d" % (vr(VF[rg]), rg * AREG), ("J", rg))
        for rg in range(4):
            f.lgwait(("J", rg))
            f("v_mfma_f32_16x16x32_bf16 v[12:15], %s, %s, %s" % (vr(KF[rg]), vr(VF[rg]), "0" if rg == 0 else "v[12:15]"))
        f.group(["s_nop 7", "s_nop 3"])
        f.vmem("buffer_store_dwordx4 v[12:15], v0, s[92:95], s42 offen sc1", "SL")
        if st == 1:
            seg_rp_store(f)
        f.vmwait("SL")
        f.sp(SP3)
        f.after(41)
        if st == 0:
            f("v_mov_b32 v97, 1")
            f("v_add_u32 v96, s40, v1")
            f("v_cmp_eq_u32 vcc, 0, v96")
            f("v_mov_b32 v96, 0x%x" % OOB)
            f("v_mov_b32 v98, s41")
            f("v_cndmask_b32 v96, v96, v98, vcc")
            f.vmem("buffer_atomic_add v97, v96, s[36:39], 0 offen sc0 sc1", "AT")
            f("v_lshl_add_u32 v96, v1, 2, s43")
            f.after(2 * SP4 - 3)
            f.vmwait("AT")
            f.lds("ds_write_b32 v96, v97 offset:%d" % R_FLAG, "FL")
            f.lgwait("FL")
        f.sp(SP4)
        f("v_mov_b32 v96, %d" % (K1_AR + R_FLAG))
        f.lds("ds_read_b32 v97, v96", "FR")
        f.lgwait("FR")
        g = ["s_nop 0", "v_readfirstlane_b32 s41, v97", "s_nop 3", "s_cmp_lg_u32 s41, 15", "s_cbranch_scc1 K1_%s_NOFO" % N]
        for rb in range(16):
            d = a_reg(rb >> 3, rb & 7)
            g.append("s_add_u32 s62, s77, %d" % (rb * 8192))
            g.append("buffer_load_dwordx4 %s, v0, s[92:95], s62 offen sc1" % vr(d))
        g.append("K1_%s_NOFO:" % N)
        f.group(g)

    def seg_rp_load(f):
        f("""
        v_lshrrev_b32 v16, 1, v1
        v_mul_u32_u24 v17, 1280, v16
        v_and_b32 v18, 1, v1
        v_lshl_add_u32 v17, v18, 4, v17
        """)
        for j in range(3):
            pre = ["s_lshl_b32 s60, s2, 2",
                   "s_add_u32 s60, s60, s50",
                   "s_add_u32 s60, s60, %d" % (1024 if j == 1 else 0),
                   "s_mul_i32 s61, s60, 1639",
                   "s_lshr_b32 s61, s61, 16",
                   "s_mul_i32 s62, s61, 40",
                   "s_sub_u32 s62, s60, s62",
                   "s_mul_i32 s63, s62, 205",
                   "s_lshr_b32 s63, s63, 10",
                   "s_mul_i32 s45, s63, %d" % (68 * 5 - 5),
                   "s_add_u32 s45, s45, s62",
                   "s_mul_i32 s63, s61, 5",
                   "s_add_u32 s45, s45, s63",
                   "s_add_u32 s45, s45, %d" % (240 if j == 2 else 0),
                   "s_lshl_b32 s45, s45, 10",
                   "s_cmp_lt_u32 s60, %d" % (800 if j == 2 else 1920),
                   "s_cselect_b32 s%d, s45, 0x%x" % (96 + j, OOB),
                   "s_lshl_b32 s62, s62, 5"]
            f.group(pre)
            if j < 2:
                f.vmem("buffer_load_dwordx4 v17, s[64:67], s62 offen lds", "RP",
                       ["s_mul_i32 s61, s61, %d" % (32 * 1280), "s_add_u32 s62, s62, s61", "s_add_u32 m0, s43, %d" % (R_RP + j * 1024), "s_nop 0"])
            else:
                f.group(["s_mul_i32 s45, s61, 40",
                         "s_mul_i32 s60, s61, 160",
                         "s_sub_u32 s60, s60, %d" % (16 * 160 - 32),
                         "s_cmp_lt_u32 s61, 16",
                         "s_cselect_b32 s63, 8, 40",
                         "s_cselect_b32 s61, s45, s60",
                         "s_mul_i32 s61, s61, 1280",
                         "s_add_u32 s62, s62, s61"])
                f("""
                v_lshrrev_b32 v17, 3, v16
                v_mul_u32_u24 v17, s63, v17
                v_and_b32 v16, 7, v16
                v_add_u32 v17, v17, v16
                v_mul_u32_u24 v17, 1280, v17
                v_lshl_add_u32 v17, v18, 4, v17
                """)
                f.vmem("buffer_load_dwordx4 v17, s[88:91], s62 offen lds", "RP", ["s_add_u32 m0, s43, %d" % (R_RP + j * 1024), "s_nop 0"])

    def seg_rp_store(f):
        f("""
        v_lshrrev_b32 v16, 2, v1
        v_lshlrev_b32 v16, 5, v16
        v_and_b32 v17, 3, v1
        v_lshl_add_u32 v16, v17, 3, v16
        v_add_u32 v16, s43, v16
        """)
        f.vmwait("RP")
        for j in range(3):
            for hh in range(2):
                f.lds("ds_read_b64_tr_b16 %s, v16 offset:%d" % (vr(64 + j * 4 + hh * 2, 2), R_RP + j * 1024 + hh * 512), ("RT", j))
        for j in range(3):
            f.lgwait(("RT", j))
            f.vmem("buffer_store_dwordx4 %s, v0, s[68:71], s%d offen" % (vr(64 + j * 4), 96 + j), "RS")

    for gs in range(2):
        for _, fn in dma(gs):
            fn()
    yield
    for gs in range(2, 4):
        dmaq += dma(gs)
    if st == 0:
        fA("""
        v_lshl_add_u32 v13, s50, 6, v1
        v_lshlrev_b32 v14, 1, v13
        s_mul_i32 s60, s48, 192
        """)
        fA.vmem("buffer_load_ushort v15, v14, s[96:99], s60 offen", "B1")
        fA("""
        v_min_u32 v13, 127, v13
        v_lshl_add_u32 v14, v13, 2, s59
        """)
        fA.after(8)
        fA.vmwait("B1")
        fA("v_lshlrev_b32 v15, 16, v15")
        fA.lds("ds_write_b32 v14, v15 offset:%d" % T_B1, "B1W")
    a("s_waitcnt lgkmcnt(0)")
    barrier(0)
    stamp(a, 1, 19, lg, vm)
    dmaq += dma(4)
    for txt, tag in reads(0):
        a(txt)
        lg.add(tag)
    for sg in range(60):
        p, s = sg // 20, sg % 20
        NT = NTP[p]
        fA.cur = fB.cur = sg
        if p == 0:
            lg.wait(("A", sg))
        if (sg & 1) and sg < 59:
            n = (sg + 1) // 2
            barrier(n)
            dmaq += dma(n + 4)
        dsq = reads(sg + 1) if sg < 59 and "nords" not in ABL else []
        ml = []
        for c in range(NT):
            for t in range(2):
                ml.append((c, t))
        if p == 0:
            ml.append(("G", st))
        nds = (len(dsq) + len(ml) - 1) // len(ml)
        for i, (c, t) in enumerate(ml):
            A_ = vr(a_reg(t, s))
            if c == "G":
                a("v_mfma_f32_16x16x32_bf16 %s, %s, %s, %s" % (vr(V_GR), A_, A_, "0" if s == 0 else vr(V_GR)))
            else:
                if t == 0:
                    lg.wait(("B", sg, c))
                d = vr(ACC[p][c * 2 + t])
                B_ = vr(b_reg(sg, c))
                if p == 0:
                    a("v_mfma_f32_16x16x32_bf16 %s, %s, %s, %s" % (d, A_, B_, "0" if s == 0 else d))
                else:
                    a("v_mfma_f32_16x16x32_bf16 %s, %s, %s, %s" % (d, B_, A_, "0" if s == 0 else d))
            k = (len(dsq) + (len(ml) - i) - 1) // (len(ml) - i)
            for _ in range(k):
                if dsq:
                    txt, tag = dsq.pop(0)
                    a(txt)
                    lg.add(tag)
            if dmaq:
                dmaq.pop(0)[1]()
            nf = 2 if p == 0 else (NF1 if p == 1 else NF2)
            n0 = len(fB.F)
            fB.pop(nf)
            used = n0 - len(fB.F)
            fA.pop(max(nf - used, 2 if p == 2 else 0))
        assert not dsq
        lbl = "K1_%s_CS%d" % (N, sg)
        if "nocs" in ABL:
            pass
        elif "csfake" in ABL:
            for c in range(NT if p == 0 else 1):
                d = vr(V_CS + 4 * c)
                if s % (4 if p == 0 else 2) == 0:
                    a("v_mfma_f32_16x16x32_bf16 %s, %s, %s, %s" % (d, vr(V_ONES), vr(b_reg(sg, c)), "0" if s == 0 else d))
        elif p == 0:
            a("s_cmp_lg_u32 s50, %d" % (s & 3))
            a("s_cbranch_scc1 %s" % lbl)
            for c in range(NT):
                d = vr(V_CS + 4 * c)
                a("v_mfma_f32_16x16x32_bf16 %s, %s, %s, %s" % (d, vr(V_ONES), vr(b_reg(sg, c)), "0" if s < 4 else d))
        else:
            d = vr(V_CS)
            a("s_cmp_eq_u32 s100, 0")
            a("s_cbranch_scc1 %s" % lbl)
            a("s_cmp_eq_u32 s100, 2")
            a("s_cbranch_scc1 %s_1" % lbl)
            a("v_mfma_f32_16x16x32_bf16 %s, %s, %s, %s" % (d, vr(V_ONES), vr(b_reg(sg, 0)), "0" if s == 0 else d))
            a("s_branch %s" % lbl)
            a.label(lbl + "_1")
            a("v_mfma_f32_16x16x32_bf16 %s, %s, %s, %s" % (d, vr(V_ONES), vr(b_reg(sg, 1)), "0" if s == 0 else d))
        a.label(lbl)
        if s == 0 and p > 0:
            assert not any(isinstance(it, tuple) and it[0] == "lds" and it[2] == "CSA" for it in fA.F + fB.F)
        if s == 19:
            stamp(a, 2 + p, 19, lg, vm)
            if p == 0:
                fA.flush()
                seg_kv(fA)
            elif p == 1:
                assert not any(isinstance(it, tuple) and it[0] in ("lds",) and it[2] != "FL" and it[2] != "FR" for it in fA.F), [it for it in fA.F if isinstance(it, tuple)][:5]
                seg_cs(fB, 1)
                fB.lgwait("CSA")
                fB.sp(21)
                seg_epi(fB, 1)
    fA.cur = fB.cur = 60
    fC = Fill(a, vm, lg)
    seg_cs(fC, 2)
    fC.flush()
    fA.flush()
    fB.flush()
    lg.wait("CSA")
    a("s_barrier")
    seg_epi(fC, 2)
    fC.flush()
    stamp(a, 5, 19, lg, vm)
    a("s_cmp_lg_u32 s41, 15")
    a("s_cbranch_scc1 K1_END")
    a("s_branch K1_FOLD_%d" % st)
    return_vm[st] = vm


return_vm = {}


def gen_fold(a, st):
    vm = return_vm[st]
    a.label("K1_FOLD_%d" % st)
    a("""
    v_and_b32 v2, 15, v1
    v_lshrrev_b32 v3, 4, v1
    s_lshl_b32 s60, s82, 4
    v_lshl_add_u32 v4, v3, 2, s60
    s_lshl_b32 s60, s83, 4
    v_add_u32 v5, s60, v2
    v_cmp_le_u32 vcc, 20, v4
    v_cmp_le_u32 s[60:61], 20, v5
    s_xnor_b64 s[84:85], vcc, s[60:61]
    v_cmp_gt_u32 vcc, 40, v4
    s_and_b64 s[84:85], s[84:85], vcc
    v_cmp_gt_u32 s[86:87], 40, v5
    s_and_b64 s[84:85], s[84:85], s[86:87]
    s_and_b32 s62, s48, 1
    s_lshl_b32 s63, s62, 3
    s_cmp_eq_u32 s83, 2
    s_cselect_b32 s63, s63, 0
    v_xor_b32 v6, s63, v2
    s_lshl_b32 s63, s62, 1
    s_lshl_b32 s60, s83, 10
    s_lshl_b32 s61, s82, 3
    s_add_u32 s60, s60, s61
    s_lshl_b32 s61, s83, 9
    s_add_u32 s61, s61, 2560
    s_cmp_eq_u32 s82, 2
    s_cselect_b32 s63, s63, 0
    s_cselect_b32 s45, 3, 4
    s_cselect_b32 s60, s61, s60
    v_xor_b32 v7, s63, v3
    v_lshl_add_u32 v6, v7, 4, v6
    v_lshlrev_b32 v6, s45, v6
    s_lshl_b32 s61, s48, 12
    s_add_u32 s60, s60, s61
    s_lshl_b32 s63, s62, 12
    s_add_u32 s61, s82, s83
    s_cmp_eq_u32 s61, 4
    s_cselect_b32 s61, s63, 0
    s_cselect_b64 s[86:87], s[86:87], -1
    s_sub_u32 s60, s60, s61
    v_mov_b32 v8, 0x%x
    v_cndmask_b32 v6, v8, v6, s[86:87]
    """ % OOB)
    a("""
    s_lshl_b32 s61, s48, 6
    s_lshl_b32 s63, s82, 3
    s_add_u32 s61, s61, s63
    s_lshr_b32 s63, s48, 2
    s_lshl_b32 s63, s63, 6
    s_add_u32 s63, s63, 1024
    s_lshl_b32 s45, s62, 5
    s_add_u32 s63, s63, s45
    s_bfe_u32 s45, s48, 0x10001
    s_lshl_b32 s45, s45, 3
    s_add_u32 s63, s63, s45
    s_cmp_eq_u32 s82, 2
    s_cselect_b32 s61, s63, s61
    s_add_u32 s61, s61, %d
    v_lshl_add_u32 v7, v3, 4, s61
    v_cmp_eq_u32 s[86:87], 40, v5
    s_and_b64 s[86:87], s[86:87], vcc
    v_cndmask_b32 v7, v8, v7, s[86:87]
    """ % KV_Z)
    srd(a, 24, 16, SZ_KV, WS_KV)
    a("s_waitcnt vmcnt(0)")
    R = [a_reg(rb >> 3, rb & 7) for rb in range(16)]
    for stp in (8, 4, 2, 1):
        for rb in range(stp):
            for e in range(4):
                a("v_add_f32 v%d, v%d, v%d" % (R[rb] + e, R[rb] + e, R[rb + stp] + e))
    a("""
    v_cvt_pk_bf16_f32 v10, v96, v97
    v_cvt_pk_bf16_f32 v11, v98, v99
    v_cndmask_b32 v12, 0, v10, s[84:85]
    v_cndmask_b32 v13, 0, v11, s[84:85]
    buffer_store_dwordx2 v[12:13], v6, s[24:27], s60 offen
    buffer_store_dwordx2 v[10:11], v7, s[24:27], 0 offen
    """)
    stamp(a, 6, 19)
    a("s_branch K1_END")


def gen_k1(a):
    a.raw(".globl k1_kernel")
    a.raw(".p2align 8")
    a.raw(".type k1_kernel,@function")
    a.label("k1_kernel")
    a("""
    s_cmp_ge_u32 s2, 256
    s_cbranch_scc1 K1_END
    s_load_dwordx4 s[4:7], s[0:1], 0
    s_load_dwordx2 s[8:9], s[0:1], 16
    s_load_dwordx4 s[12:15], s[0:1], 32
    s_load_dwordx2 s[18:19], s[0:1], 48
    s_load_dwordx4 s[64:67], s[0:1], 72
    v_and_b32 v1, 63, v0
    v_lshrrev_b32 v13, 6, v0
    s_nop 0
    v_readfirstlane_b32 s40, v13
    v_lshlrev_b32 v0, 4, v1
    """)
    a("""
    s_and_b32 s60, s2, 3
    s_lshl_b32 s48, s60, 2
    s_bfe_u32 s60, s2, 0x20003
    s_add_u32 s48, s48, s60
    s_bfe_u32 s60, s2, 0x10002
    s_lshl_b32 s49, s60, 3
    s_lshr_b32 s60, s2, 5
    s_add_u32 s49, s49, s60
    s_bfe_u32 s61, s2, 0x20003
    s_lshl_b32 s61, s61, 1
    s_add_u32 s61, s61, s60
    s_mul_i32 s61, s61, 5
    s_lshr_b32 s3, s61, 2
    s_sub_u32 s61, s3, 10
    s_cmp_ge_u32 s3, 10
    s_cselect_b32 s3, s61, s3
    s_and_b32 s50, s40, 3
    s_lshr_b32 s51, s40, 2
    s_lshl_b32 s60, s49, 7
    s_lshl_b32 s61, s40, 4
    s_add_u32 s60, s60, s61
    v_lshrrev_b32 v13, 3, v1
    v_and_b32 v14, 7, v1
    v_xor_b32 v15, v14, v13
    v_add_u32 v13, s60, v13
    v_mul_u32_u24 v7, 1280, v13
    v_lshl_add_u32 v7, v15, 4, v7
    s_lshr_b32 s60, s40, 1
    s_mul_i32 s47, s60, %d
    s_and_b32 s60, s40, 1
    s_lshl_b32 s60, s60, 11
    s_add_u32 s47, s47, s60
    s_add_u32 s47, s47, %d
    """ % (AREG, K1_AR))
    a("""
    s_cmp_ge_u32 s40, 6
    s_cselect_b32 s61, 6, 0
    s_cselect_b32 s62, 1, 0
    s_sub_u32 s61, s40, s61
    s_lshl_b32 s46, s61, 10
    s_mul_i32 s63, s62, %d
    s_add_u32 s46, s46, s63
    s_lshl_b32 s52, s50, 10
    s_add_u32 s52, s52, %d
    s_mul_i32 s45, s48, 80
    s_mul_i32 s60, s62, 1280
    s_add_u32 s60, s60, s45
    s_add_u32 s60, s60, 1280
    s_add_u32 s63, s45, 2560
    s_sub_u32 s58, s45, 16
    """ % (BSTR, BSTR + 2048))

    def bvoff(dst, sj, jadd, scol, mask):
        a("""
        v_lshl_add_u32 v13, %s, 6, v1
        v_add_u32 v13, %d, v13
        v_mul_u32_u24 v14, 10923, v13
        v_lshrrev_b32 v14, 16, v14
        v_mul_u32_u24 v15, 6, v14
        v_sub_u32 v15, v13, v15
        v_cmp_eq_u32 vcc, 5, v15
        v_mov_b32 v16, %s
        v_mov_b32 v17, s58
        v_cndmask_b32 v16, v16, v17, vcc
        v_lshl_add_u32 v15, v15, 4, v16
        """ % (sj, jadd, scol))
        perm(a, dst, 14, 16)
        a("v_mul_u32_u24 v%d, 3840, v%d" % (dst, dst))
        a("v_add_u32 v%d, v%d, v15" % (dst, dst))
        if mask:
            a("s_not_b64 s[54:55], vcc")
            a("s_cmp_eq_u32 s62, 1")
            a("s_cselect_b64 s[54:55], -1, s[54:55]")
    bvoff(8, "s61", 0, "s60", True)
    bvoff(9, "s50", 128, "s63", False)
    a("s_waitcnt lgkmcnt(0)")
    srd(a, 20, 4, SZ_X)
    srd(a, 24, 6, SZ_WQKV)
    a("""
    s_mov_b64 s[10:11], s[64:65]
    s_mov_b64 s[16:17], s[66:67]
    s_cmp_eq_u32 s51, 1
    s_cbranch_scc1 K1_V_PRO
    """)
    gens = [gen_stream(a, 0), gen_stream(a, 1)]
    next(gens[0])
    a("s_branch K1_SETUP")
    a.label("K1_V_PRO")
    next(gens[1])
    a.label("K1_SETUP")
    a.prof_base = 0
    stamp_init(a)
    stamp(a, 0, 19)
    srd(a, 28, 12, SZ_W1)
    srd(a, 32, 16, SZ_AP, WS_AP)
    srd(a, 36, 10, 256)
    srd(a, 64, 18, SZ_W2)
    srd(a, 68, 16, SZ_PB, WS_PB)
    srd(a, 88, 8, SZ_WO)
    srd(a, 92, 16, SZ_SLAB, WS_SLAB)
    jobs = [(0, 0), (0, 1), (1, 0), (1, 1), (1, 2), (2, 1), (2, 2), (0, 2)]
    jt = sum((ja | (jb << 2)) << (4 * w) for w, (ja, jb) in enumerate(jobs))
    a("""
    s_mov_b32 s59, %d
    s_mul_i32 s43, s50, %d
    s_add_u32 s43, s43, %d
    s_lshl_b32 s44, s40, 9
    s_add_u32 s44, s44, %d
    s_lshl_b32 s41, s48, 4
    s_add_u32 s42, s41, s49
    s_lshl_b32 s42, s42, 3
    s_add_u32 s42, s42, s40
    s_lshl_b32 s42, s42, 10
    s_lshl_b32 s63, s48, 7
    s_add_u32 s63, s63, s40
    s_lshl_b32 s63, s63, 10
    s_lshl_b32 s60, s40, 2
    s_lshr_b32 s60, 0x%x, s60
    s_and_b32 s82, s60, 3
    s_bfe_u32 s83, s60, 0x20002
    s_lshl_b32 s86, s82, 10
    s_add_u32 s86, s86, %d
    s_lshl_b32 s87, s83, 10
    s_add_u32 s87, s87, %d
    s_lshl_b32 s60, s49, 3
    s_lshl_b32 s61, s50, 1
    s_add_u32 s60, s60, s61
    s_mul_i32 s60, s60, %d
    s_mul_i32 s61, s48, 3072
    s_add_u32 s56, s60, s61
    s_lshl_b32 s61, s48, 10
    s_add_u32 s57, s60, s61
    s_add_u32 s57, s57, %d
    s_lshr_b32 s61, s48, 2
    s_lshl_b32 s61, s61, 10
    s_add_u32 s58, s60, s61
    s_add_u32 s58, s58, %d
    s_mul_i32 s53, s51, %d
    s_lshl_b32 s60, s50, 10
    s_add_u32 s53, s53, s60
    """ % (K1_TAB, AREG, K1_AR, K1_TAB + T_ST, jt, K1_AR + R_KVF, K1_AR + R_KVF + 3072, 68 * 1024, 48 * 1024, 64 * 1024, BSTR))
    a("s_mov_b32 s77, s63")
    a("""
    s_mul_i32 s60, s51, %d
    v_lshrrev_b32 v13, 2, v1
    v_and_b32 v14, 3, v1
    v_mul_u32_u24 v2, 96, v13
    v_lshl_add_u32 v2, v14, 3, v2
    v_add_u32 v2, s60, v2
    v_lshlrev_b32 v3, 6, v13
    v_lshl_add_u32 v3, v14, 3, v3
    v_bfe_u32 v15, v13, 2, 1
    v_lshl_add_u32 v3, v15, 5, v3
    v_add_u32 v3, s60, v3
    v_xor_b32 v4, 32, v3
    v_lshrrev_b32 v16, 4, v1
    v_and_b32 v17, 7, v1
    v_xor_b32 v16, v16, v17
    v_and_b32 v17, 15, v1
    v_lshlrev_b32 v5, 7, v17
    v_lshl_add_u32 v5, v16, 4, v5
    v_add_u32 v5, s43, v5
    v_xor_b32 v6, 64, v5
    v_lshlrev_b32 v15, 1, v15
    v_xor_b32 v14, v15, v14
    v_lshlrev_b32 v14, 4, v14
    v_lshl_add_u32 v13, s50, 4, v13
    """ % BSTR)
    perm(a, 16, 13, 17)
    a("""
    s_mul_i32 s60, s48, 192
    s_lshl_b32 s61, s51, 6
    s_add_u32 s60, s60, s61
    v_mul_u32_u24 v10, 3072, v16
    v_add3_u32 v10, v10, v14, s60
    s_mul_i32 s60, s48, 80
    v_mul_u32_u24 v11, 3840, v16
    v_add3_u32 v11, v11, v14, s60
    v_mov_b32 v20, 0x3f803f80
    v_mov_b32 v21, 0x3f803f80
    v_mov_b32 v22, 0x3f803f80
    v_mov_b32 v23, 0x3f803f80
    s_and_b32 s60, s50, 1
    s_add_u32 s100, s60, 1
    s_lshl_b32 s61, s51, 1
    s_add_u32 s60, s60, s61
    s_add_u32 s60, s60, 6
    s_lshl_b32 s60, s60, 8
    s_lshr_b32 s61, s50, 1
    s_cmp_eq_u32 s61, s51
    s_cselect_b32 s100, s100, 0
    s_cselect_b32 s60, s60, 0
    s_add_u32 s101, s60, s59
    s_cmp_ge_u32 s40, 6
    s_cselect_b32 s60, 6, 0
    s_sub_u32 s60, s40, s60
    s_mul_i32 s60, s60, %d
    v_mul_u32_u24 v16, 96, v1
    v_add_u32 v16, s60, v16
    ds_write_b128 v16, v[20:23] offset:80
    s_cmp_eq_u32 s51, 1
    s_cbranch_scc1 K1_V
    """ % BSLOT)
    srd(a, 96, 14, SZ_B1)
    for _ in gens[0]:
        pass
    a.label("K1_V")
    for _ in gens[1]:
        pass
    gen_fold(a, 0)
    gen_fold(a, 1)
    a.label("K1_END")
    a("s_endpgm")

K2_REG = 20480
K2_LDS = 8 * K2_REG
K2_PRIO = int(os.environ.get("K2_PRIO", "0"))
K2_NF = int(os.environ.get("K2_NF", "4"))
XR, BR = 16, 24


def k2_epi_addr(f):
    for j in range(2):
        if j == 0:
            f("v_lshrrev_b32 v11, 4, v0")
        else:
            f("v_mov_b32 v11, s40")
            f("v_add_u32 v11, 32, v11")
        f("""
        v_mul_u32_u24 v12, 205, v11
        v_lshrrev_b32 v12, 11, v12
        v_mul_u32_u24 v13, 10, v12
        v_sub_u32 v13, v11, v13
        v_lshlrev_b32 v%d, 4, v13
        v_and_b32 v14, 15, v1
        v_mul_u32_u24 v15, 5120, v12
        v_lshl_add_u32 v15, v13, 9, v15
        v_lshl_add_u32 v%d, v14, 4, v15
        v_lshl_add_u32 v14, v12, 4, v14
        v_add_u32 v14, s41, v14
        v_mul_u32_u24 v14, 1280, v14
        v_add_u32 v%d, v14, v%d
        """ % (9 + j, 7 + j, 5 + j, 9 + j))


def k2_xloads(a, vm):
    L = []
    for j in range(2):
        def fx(j=j):
            a("buffer_load_dwordx4 %s, v%d, s[48:51], s42 offen" % (vr(XR + j * 4), 5 + j))
            vm.add("X")

        def fb(j=j):
            a("buffer_load_dwordx4 %s, v%d, s[52:55], s42 offen" % (vr(BR + j * 4), 9 + j))
            vm.add("X")
        L += [fx, fb]
    return L


def k2_h(a):
    vm = Q(a, "vmcnt", 63)
    NS = 4
    if K2_PRIO < 0:
        a("s_setprio %d" % -K2_PRIO)

    def frag(slot, i):
        return vr(112 + slot * 36 + i * 4)

    pend = []

    def add_step(n):
        slot = n % NS
        for kind, i in [("A", 0)] + [("B", c) for c in range(5)] + [("A", m) for m in (1, 2, 3)]:
            if kind == "A":
                def fn(i=i):
                    a("s_add_u32 s60, s44, %d" % (i * 68 * 1024 + n * 1024))
                    a("buffer_load_dwordx4 %s, v2, s[20:23], s60 offen" % frag(slot, i))
            else:
                def fn(i=i):
                    if i == 0 or i == 4:
                        a("s_add_u32 s61, s45, %d" % (n * 5120 + i * 1024))
                    a("buffer_load_dwordx4 %s, v2, s[24:27], s61 offen offset:%d" % (frag(slot, 4 + i), (i & 3) * 1024))
            pend.append(((kind, n, i), n - NS, fn))

    for n in range(12):
        add_step(n)
    done = [-1]

    def issue(k):
        while k > 0 and pend and pend[0][1] <= done[0]:
            tag, _, fn = pend.pop(0)
            fn()
            vm.add(tag)
            k -= 1

    issue(100)
    k2_epi_addr(a)
    xl = k2_xloads(a, vm)
    for n in range(12):
        slot = n % NS
        if n == 1:
            stamp(a, 1, 15)
        for m in range(4):
            for c in range(5):
                d = vr(32 + (m * 5 + c) * 4)
                if c == 0:
                    vm.wait(("A", n, m))
                if m == 0:
                    vm.wait(("B", n, c))
                a("v_mfma_f32_16x16x32_bf16 %s, %s, %s, %s" % (d, frag(slot, 4 + c), frag(slot, m), "0" if n == 0 else d))
                issue(1)
                if n == 9 and m == 2 and xl:
                    xl.pop(0)()
        done[0] = n
    assert not pend and not xl
    a("s_nop 7")
    a("s_nop 1")
    stamp(a, 4, 15)
    a("v_add_u32 v11, s46, v2")
    for i in range(20):
        a("ds_write_b128 v11, %s offset:%d" % (vr(32 + i * 4), i * 1024))


def k2_att(a):
    vm = Q(a, "vmcnt", 63)
    lg = Q(a, "lgkmcnt", 15)
    f = Fill(a, vm, lg)
    PQ = lambda m, s: 32 + (m * 5 + s) * 4
    KF = lambda s, k: 112 + (s * 3 + k) * 4
    G2 = lambda grp, half: 160 + grp * 6 + half * 2
    WOB = [178, 214]
    ZM = lambda s: 198 + 4 * s
    ZC = lambda half: 214 + half * 2
    DB = [[220 + 4 * i for i in range(6)], [16, 20, 24, 28, 244, 248]]
    ACCT = [112 + 4 * i for i in range(16)] + [198 + 4 * i for i in range(4)]
    if K2_PRIO > 0:
        a("s_setprio %d" % K2_PRIO)
    for s in range(4):
        a("buffer_load_dwordx4 %s, v4, s[36:39], s62 offen offset:%d" % (vr(ZM(s)), s * 64))
        vm.add("Z")
    a("buffer_load_dwordx4 v[252:255], v4, s[36:39], s63 offen")
    vm.add("Z")

    def pq_loads(m):
        a("s_add_u32 s60, s43, %d" % (m * 68 * 1024))
        for s in range(4):
            a("buffer_load_dwordx4 %s, v2, s[20:23], s60 offen offset:%d" % (vr(PQ(m, s)), s * 1024))
            vm.add(("PQ", m))
        a("s_add_u32 s60, s44, %d" % (m * 68 * 1024))
        a("buffer_load_dwordx4 %s, v2, s[20:23], s60 offen" % vr(PQ(m, 4)))
        vm.add(("PQ", m))

    def kv_loads(p):
        for s in (2 * p, 2 * p + 1):
            a("s_add_u32 s60, s47, %d" % (s * 4096))
            for k in range(3):
                a("buffer_load_dwordx4 %s, v2, s[36:39], s60 offen offset:%d" % (vr(KF(s, k)), k * 1024))
                vm.add(("KV", p))
            a("buffer_load_dwordx2 %s, v3, s[36:39], s60 offen offset:3072" % vr(G2(s & 1, p) + 2 * p, 2))
            vm.add(("KV", p))
            if s == 2 * p:
                a("buffer_load_dwordx2 %s, v3, s[36:39], s60 offen offset:3584" % vr(G2(2, p) + 2 * p, 2))
                vm.add(("KV", p))

    pq_loads(0)
    kv_loads(0)
    kv_loads(1)
    for m in (1, 2, 3):
        pq_loads(m)
    for c in range(5):
        if c == 0 or c == 4:
            a("s_add_u32 s61, s45, %d" % (c * 1024))
        a("buffer_load_dwordx4 %s, v2, s[24:27], s61 offen offset:%d" % (vr(WOB[0] + c * 4), (c & 3) * 1024))
        vm.add(("WO", 0))
    dma = []
    for s in range(1, 5):
        for c in range(5):
            def fd(s=s, c=c):
                a("s_add_u32 m0, s46, %d" % ((s - 1) * 5120 + c * 1024))
                if s < 4:
                    a("s_add_u32 s61, s45, %d" % (s * 5120 + c * 1024))
                else:
                    a("s_add_u32 s61, s28, %d" % (c * 1024))
                a("buffer_load_dwordx4 v2, s[24:27], s61 offen lds")
                vm.add(("WO", s))
            dma.append(fd)
    while dma and len(vm.q) < 60:
        dma.pop(0)()
    a("""
    v_and_b32 v11, 3, v1
    v_lshrrev_b32 v12, 4, v1
    v_min_u32 v13, 1, v12
    v_cmp_eq_u32 s[64:65], 0, v11
    v_cmp_eq_u32 s[66:67], v13, v11
    v_cmp_eq_u32 s[68:69], 2, v11
    v_add_u32 v13, 2, v13
    v_cmp_eq_u32 s[70:71], v13, v11
    v_or_b32 v13, 1, v12
    v_cmp_eq_u32 s[82:83], v13, v11
    v_cmp_eq_u32 s[84:85], 0, v12
    v_cmp_gt_u32 s[86:87], 2, v12
    """)
    for b in (162, 168, 174, 216):
        a("v_mov_b32 v%d, 0" % b)
        a("v_mov_b32 v%d, 0" % (b + 1))
    k2_epi_addr(a)
    a("v_add_u32 v4, s46, v2")
    vm.wait("Z")
    for s in range(4):
        for h in range(2):
            ms = 64 + 4 * (s & 1) + 2 * h
            for d in range(2):
                r = ZM(s) + 2 * h + d
                a("v_cndmask_b32 v%d, 0, v%d, s[%d:%d]" % (r, r, ms, ms + 1))
    for h in range(2):
        for d in range(2):
            a("v_cndmask_b32 v%d, 0, v%d, s[82:83]" % (214 + 4 * h + d, 252 + 2 * h + d))

    def post(m, p):
        D = DB[p]
        dn = D[5]
        f.group(["s_nop 1"])
        for r in range(4):
            f("v_add_f32 v%d, %s, v%d" % (dn + r, EPS6, dn + r))
        for r in range(4):
            f("v_rcp_f32 v%d, v%d" % (dn + r, dn + r))
        f("v_cndmask_b32 v11, v%d, v%d, s[84:85]" % (dn + 1, dn))
        f("v_cndmask_b32 v12, v%d, v%d, s[84:85]" % (dn + 3, dn + 2))
        f("v_cndmask_b32 v13, v%d, v%d, s[86:87]" % (dn + 3, dn + 1))
        sc = [dn, 11, dn + 2, 12, 13]
        dst = [PQ(m, 2 * p), PQ(m, 2 * p) + 2, PQ(m, 2 * p + 1), PQ(m, 2 * p + 1) + 2, PQ(m, 4) + 2 * p]
        for T in range(5):
            if T == 4:
                f.after(("ck", m))
            for r in range(4):
                f("v_mul_f32 v%d, v%d, v%d" % (D[T] + r, D[T] + r, sc[T]))
            f("v_cvt_pk_bf16_f32 v%d, v%d, v%d" % (dst[T], D[T], D[T] + 1))
            f("v_cvt_pk_bf16_f32 v%d, v%d, v%d" % (dst[T] + 1, D[T] + 2, D[T] + 3))

    f.cur = ("a", 0)
    for m in range(4):
        for p in range(2):
            D = DB[p]
            u0, u1 = 2 * p, 2 * p + 1
            ck = vr(PQ(m, 4))
            ml = [(D[5], ZC(p), PQ(m, 4), 1),
                  (D[1], G2(0, p), PQ(m, 4), 1),
                  (D[3], G2(1, p), PQ(m, 4), 1),
                  (D[4], G2(2, p), PQ(m, 4), 1),
                  (D[5], ZM(u0), PQ(m, u0), 0),
                  (D[0], KF(u0, 0), PQ(m, u0), 1),
                  (D[2], KF(u1, 0), PQ(m, u1), 1),
                  (D[5], ZM(u1), PQ(m, u1), 0),
                  (D[1], KF(u0, 1), PQ(m, u0), 0),
                  (D[3], KF(u1, 1), PQ(m, u1), 0),
                  (D[4], KF(u0, 2), PQ(m, u0), 0),
                  (D[4], KF(u1, 2), PQ(m, u1), 0)]
            vm.wait(("PQ", m))
            if m == 0:
                if p == 0:
                    stamp(a, 1, 15)
            for i, (d, A_, B_, first) in enumerate(ml):
                if i == 1:
                    vm.wait(("KV", p))
                a("v_mfma_f32_16x16x32_bf16 %s, %s, %s, %s" % (vr(d), vr(A_), vr(B_), "0" if first else vr(d)))
                if p == 1 and i == 3:
                    f.cur = ("ck", m)
                if dma and len(vm.q) < 60:
                    dma.pop(0)()
                f.pop(K2_NF)
            f.flush()
            post(m, p)
    assert not dma
    stamp(a, 2, 15)
    xl = k2_xloads(a, vm)
    for s in range(5):
        B0 = WOB[s & 1]
        rd = []
        if s < 4:
            for c in range(5):
                rd.append(("ds_read_b128 %s, v4 offset:%d" % (vr(WOB[(s + 1) & 1] + c * 4), s * 5120 + c * 1024), ("W", s + 1, c)))
        if s == 0:
            vm.wait(("WO", 0))
        if s == 1:
            f.flush()
            a("s_nop 1")
        for m in range(4):
            for c in range(5):
                d = vr(ACCT[m * 5 + c])
                if m == 0 and s > 0:
                    lg.wait(("W", s, c))
                a("v_mfma_f32_16x16x32_bf16 %s, %s, %s, %s" % (d, vr(B0 + c * 4), vr(PQ(m, s)), "0" if s == 0 else d))
                if m >= 1 and rd:
                    if len(rd) == 5:
                        vm.wait(("WO", s + 1))
                    txt, tag = rd.pop(0)
                    a(txt)
                    lg.add(tag)
                if s == 2 and m == 3 and xl:
                    xl.pop(0)()
                f.pop(K2_NF)
    assert not xl
    a("s_nop 7")
    a("s_nop 1")
    stamp(a, 4, 15)
    for i in range(20):
        a("ds_write_b128 v4, %s offset:%d" % (vr(ACCT[i]), i * 1024))
    if K2_PRIO > 0:
        a("s_setprio 0")


def gen_k2(a):
    a.raw(".globl k2_kernel")
    a.raw(".p2align 8")
    a.raw(".type k2_kernel,@function")
    a.label("k2_kernel")
    a("""
    s_cmp_ge_u32 s2, 256
    s_cbranch_scc1 K2_END
    s_load_dwordx2 s[16:17], s[0:1], 80
    s_load_dwordx2 s[4:5], s[0:1], 0
    s_load_dwordx2 s[8:9], s[0:1], 56
    s_load_dwordx2 s[10:11], s[0:1], 64
    v_and_b32 v1, 63, v0
    v_lshrrev_b32 v13, 6, v0
    s_nop 0
    v_readfirstlane_b32 s40, v13
    v_lshlrev_b32 v2, 4, v1
    v_lshlrev_b32 v3, 3, v1
    v_and_b32 v4, 48, v1
    s_and_b32 s41, s2, 7
    s_lshl_b32 s41, s41, 2
    s_bfe_u32 s42, s2, 0x20003
    s_add_u32 s41, s41, s42
    s_mul_i32 s44, s41, %d
    s_lshl_b32 s41, s41, 6
    s_lshr_b32 s43, s2, 5
    s_mul_i32 s42, s43, 160
    s_mul_i32 s45, s43, %d
    s_mul_i32 s46, s40, %d
    s_and_b32 s60, s40, 3
    s_cmp_ge_u32 s40, 4
    s_cbranch_scc1 K2_HSET
    s_lshl_b32 s61, s60, 12
    s_add_u32 s43, s44, s61
    s_add_u32 s43, s43, %d
    s_lshl_b32 s61, s60, 10
    s_add_u32 s44, s44, s61
    s_add_u32 s44, s44, %d
    s_mul_i32 s61, s60, 5120
    s_add_u32 s28, s45, s61
    s_add_u32 s28, s28, %d
    s_mul_i32 s61, s60, 20480
    s_add_u32 s45, s45, s61
    s_add_u32 s45, s45, %d
    s_lshl_b32 s47, s60, 14
    s_lshl_b32 s62, s60, 8
    s_add_u32 s62, s62, %d
    s_lshl_b32 s63, s60, 6
    s_add_u32 s63, s63, %d
    s_branch K2_SET
    """ % (4 * 68 * 1024, 68 * 5120, K2_REG, 48 * 1024, 64 * 1024, 64 * 5120, 48 * 5120, KV_Z, KV_Z + 1024))
    a.label("K2_HSET")
    a("""
    s_mul_i32 s61, s60, 12288
    s_add_u32 s44, s44, s61
    s_mul_i32 s61, s60, %d
    s_add_u32 s45, s45, s61
    s_mov_b32 s43, 0
    s_mov_b32 s47, 0
    s_mov_b32 s28, 0
    s_mov_b32 s62, 0
    s_mov_b32 s63, 0
    """ % (12 * 5120))
    a.label("K2_SET")
    a("s_waitcnt lgkmcnt(0)")
    srd(a, 20, 16, SZ_AP, WS_AP)
    srd(a, 24, 16, SZ_PB, WS_PB)
    srd(a, 36, 16, SZ_KV, WS_KV)
    srd(a, 48, 4, SZ_X)
    srd(a, 52, 8, SZ_B2)
    srd(a, 56, 10, SZ_OUT)
    a.prof_base = 0x100000
    stamp_init(a)
    stamp(a, 0, 15)
    a("s_cmp_ge_u32 s40, 4")
    a("s_cbranch_scc1 K2_H")
    k2_att(a)
    a("s_branch K2_RED")
    a.label("K2_H")
    k2_h(a)
    a.label("K2_RED")
    a("""
    v_add_u32 v11, %d, v7
    v_add_u32 v12, %d, v7
    v_add_u32 v13, %d, v8
    v_add_u32 v14, %d, v8
    s_waitcnt vmcnt(0) lgkmcnt(0)
    s_barrier
    """ % (3 * K2_REG, 6 * K2_REG, 3 * K2_REG, 6 * K2_REG))
    lg = Q(a, "lgkmcnt", 15)
    R = lambda j, w: 32 + (j * 8 + w) * 8
    AD = [[7, 11, 12], [8, 13, 14]]
    for j in range(2):
        if j == 1:
            a("s_mov_b64 exec, 0xffff")
        for w in range(8):
            for h in range(2):
                a("ds_read_b128 %s, v%d offset:%d" % (vr(R(j, w) + h * 4), AD[j][w // 3], (w % 3) * K2_REG + h * 256))
                lg.add((j, w))
    for j in (1, 0):
        T = 160 + j * 16
        for d in range(4):
            a("v_lshlrev_b32 v%d, 16, v%d" % (T + 2 * d, XR + j * 4 + d))
            a("v_and_b32 v%d, 0xffff0000, v%d" % (T + 1 + 2 * d, XR + j * 4 + d))
            a("v_lshlrev_b32 v%d, 16, v%d" % (T + 8 + 2 * d, BR + j * 4 + d))
            a("v_and_b32 v%d, 0xffff0000, v%d" % (T + 9 + 2 * d, BR + j * 4 + d))
        for e in range(8):
            a("v_add_f32 v%d, v%d, v%d" % (T + e, T + e, T + 8 + e))
        if j == 1:
            a("s_mov_b64 exec, -1")
    for j in range(2):
        T = 160 + j * 16
        if j == 1:
            a("s_mov_b64 exec, 0xffff")
        for w in range(0, 8, 2):
            lg.wait((j, w + 1))
            for e in range(8):
                a("v_add_f32 v%d, v%d, v%d" % (R(j, w) + e, R(j, w) + e, R(j, w + 1) + e))
            for e in range(8):
                a("v_add_f32 v%d, v%d, v%d" % (T + e, T + e, R(j, w) + e))
        for d in range(4):
            a("v_cvt_pk_bf16_f32 v%d, v%d, v%d" % (T + 8 + d, T + 2 * d, T + 1 + 2 * d))
        a("buffer_store_dwordx4 %s, v%d, s[56:59], s42 offen" % (vr(T + 8), 5 + j))
    a("s_mov_b64 exec, -1")
    stamp(a, 5, 15)
    a.label("K2_END")
    a("s_endpgm")


def kd(name, vgpr, accum, sgpr=102):
    return """
.amdhsa_kernel %s
  .amdhsa_next_free_vgpr %d
  .amdhsa_next_free_sgpr %d
  .amdhsa_accum_offset %d
  .amdhsa_group_segment_fixed_size 0
  .amdhsa_kernarg_size 88
  .amdhsa_user_sgpr_count 2
  .amdhsa_user_sgpr_kernarg_segment_ptr 1
  .amdhsa_system_sgpr_workgroup_id_x 1
.end_amdhsa_kernel
""" % (name, vgpr, sgpr, accum)


def main():
    global PROF, PROF2
    if len(sys.argv) > 2 and sys.argv[2].startswith("prof"):
        PROF = True
        PROF2 = sys.argv[2] == "prof2"
    a = Asm()
    a.raw("; @launch kernel=k1_kernel grid=(256,1,1) block=(512,1,1) lds=%d" % K1_LDS)
    a.raw("; @launch kernel=k2_kernel grid=(256,1,1) block=(512,1,1) lds=%d" % K2_LDS)
    a.raw('.amdgcn_target "amdgcn-amd-amdhsa--gfx950"')
    a.raw(".text")
    gen_k1(a)
    gen_k2(a)
    a.raw('.section .rodata,"a"')
    a.raw(".p2align 6")
    a.raw(kd("k1_kernel", 256, 256))
    a.raw(".p2align 6")
    a.raw(kd("k2_kernel", 256, 256))
    out = sys.argv[1] if len(sys.argv) > 1 else "cdna_kernels/%s.s" % NAME
    open(out, "w").write(a.text())


if __name__ == "__main__":
    main()
```

```python
import sys, os

NAME = "parallel_sum__linear_attn_block__mixer_channel_mlp__prompt"
ABL = os.environ.get("ABL", "").split(",")

WS_AP = 0
SZ_AP = 128 * 68 * 1024
WS_PB = 0x900000
SZ_PB = 8 * 68 * 5120
WS_KV = 0xC00000
KV_Z = 65536
SZ_KV = 65536 + 1280
WS_SLAB = 0xD00000
SZ_SLAB = 16 * 16 * 8192
WS_PROF = 0x1000000

SZ_X = 2048 * 640 * 2
SZ_WQKV = 640 * 1920 * 2
SZ_WO = 640 * 640 * 2
SZ_W1 = 640 * 1536 * 2
SZ_B1 = 1536 * 2
SZ_W2 = 1536 * 640 * 2
SZ_B2 = 640 * 2
SZ_OUT = 2048 * 640 * 2
OOB = 0x7ffffff0
PROF = False
PROF2 = False


class Asm:
    def __init__(self):
        self.lines = []
        self.prof_base = 0

    def __call__(self, s):
        for ln in s.strip("\n").split("\n"):
            ln = ln.strip()
            if ln:
                self.lines.append("    " + ln)

    def label(self, l):
        self.lines.append(l + ":")

    def raw(self, s):
        self.lines.append(s)

    def text(self):
        return "\n".join(self.lines) + "\n"


class Q:
    def __init__(self, a, name, cap):
        self.a, self.name, self.cap, self.q = a, name, cap, []

    def add(self, tag):
        self.q.append(tag)

    def wait(self, tag):
        idx = [i for i, t in enumerate(self.q) if t == tag]
        if not idx:
            return
        n = len(self.q) - 1 - idx[-1]
        self.a("s_waitcnt %s(%d)" % (self.name, min(n, self.cap)))
        self.q = self.q[idx[-1] + 1:]

    def drain(self):
        self.a("s_waitcnt %s(0)" % self.name)
        self.q = []


class Fill:
    def __init__(self, a, vm, lg):
        self.a, self.vm, self.lg, self.F = a, vm, lg, []

    def __call__(self, txt):
        for ln in txt.strip("\n").split("\n"):
            ln = ln.strip()
            if ln:
                self.F.append(ln)

    def group(self, lst):
        self.F.append(list(lst))

    def lds(self, txt, tag):
        self.F.append(("lds", txt, tag))

    def vmem(self, txt, tag, pre=()):
        self.F.append(("vmem", txt, tag, list(pre)))

    def lgwait(self, tag):
        self.F.append(("lgwait", tag))

    def vmwait(self, tag):
        self.F.append(("vmwait", tag))

    def call(self, fn):
        self.F.append(("call", fn))

    def sp(self, n):
        self.F.append(("sp", n))

    def after(self, step):
        self.F.append(("after", step))

    cur = 0
    drop = False

    def pop(self, k):
        while k > 0 and self.F:
            it = self.F[0]
            if isinstance(it, tuple) and it[0] == "sp":
                return
            if isinstance(it, tuple) and it[0] == "after":
                if self.cur < it[1]:
                    return
                self.F.pop(0)
                continue
            self.F.pop(0)
            if self.drop:
                pass
            elif isinstance(it, str):
                self.a(it)
            elif isinstance(it, list):
                for x in it:
                    self.a(x)
            elif it[0] == "vmwait":
                self.vm.wait(it[1])
            elif it[0] == "lgwait":
                self.lg.wait(it[1])
            elif it[0] == "lds":
                self.a(it[1])
                self.lg.add(it[2])
            elif it[0] == "vmem":
                for x in it[3]:
                    self.a(x)
                self.a(it[1])
                self.vm.add(it[2])
                for x in (it[4] if len(it) > 4 else ()):
                    self.a(x)
            elif it[0] == "call":
                it[1]()
            k -= 1

    def has_sp(self, n):
        return any(isinstance(it, tuple) and it[0] == "sp" and it[1] == n for it in self.F)

    def flush_to_sp(self, n):
        cnt = 0
        while True:
            it = self.F[0]
            if isinstance(it, tuple) and it[0] == "sp":
                assert it[1] == n, (it, n)
                return cnt
            if isinstance(it, tuple) and it[0] == "after":
                assert self.cur >= it[1], (it, self.cur)
            self.pop(1)
            cnt += 1

    def drop_sp(self, n):
        assert self.F[0] == ("sp", n)
        self.F.pop(0)

    def flush(self):
        while self.F:
            it = self.F[0]
            assert not (isinstance(it, tuple) and it[0] == "sp"), it
            if isinstance(it, tuple) and it[0] == "after":
                assert self.cur >= it[1]
            self.pop(1)


def vr(b, n=4):
    return "v[%d:%d]" % (b, b + n - 1)


def ar(b, n=4):
    return "a[%d:%d]" % (b, b + n - 1)


def srd(a, d, base, size, add=0):
    if add:
        a("s_add_u32 s%d, s%d, 0x%x" % (d, base, add))
        a("s_addc_u32 s%d, s%d, 0" % (d + 1, base + 1))
    else:
        a("s_mov_b32 s%d, s%d" % (d, base))
        a("s_mov_b32 s%d, s%d" % (d + 1, base + 1))
    a("s_mov_b32 s%d, 0x%x" % (d + 2, size))
    a("s_mov_b32 s%d, 0x00020000" % (d + 3))


def stamp_init(a, wsbase=16):
    if not PROF:
        return
    srd(a, 72, wsbase, 0x100000, WS_PROF + a.prof_base)
    a("s_lshl_b32 s76, s2, 3")
    a("s_add_u32 s76, s76, s40")
    a("s_lshl_b32 s76, s76, 9")


def stamp(a, i, vt, lg=None, vm=None):
    if not PROF:
        return
    a("s_memrealtime s[78:79]")
    a("s_waitcnt lgkmcnt(0)")
    if lg is not None:
        lg.q = []
    a("v_mov_b32 v%d, s78" % vt)
    a("s_mov_b64 s[80:81], exec")
    a("s_mov_b64 exec, 1")
    a("buffer_store_dword v%d, off, s[72:75], s76 offset:%d" % (vt, i * 4))
    if vm is not None:
        vm.add("P")
    a("s_mov_b64 exec, s[80:81]")
    a("s_nop 1")


def rnd(o, x, t):
    o("v_cvt_pk_bf16_f32 v%d, v%d, v%d" % (t, x, x))
    o("v_lshlrev_b32 v%d, 16, v%d" % (x, t))


def perm(a, dst, rho, t):
    a("""
    v_and_b32 v%d, 0xffffffe3, v%d
    v_bfe_u32 v%d, v%d, 4, 1
    v_lshl_or_b32 v%d, v%d, 2, v%d
    v_bfe_u32 v%d, v%d, 2, 2
    v_lshl_or_b32 v%d, v%d, 3, v%d
    """ % (dst, rho, t, rho, dst, t, dst, t, rho, dst, t, dst))

VA = 96
VB = 40
V_ONES = 20
V_CS = 24
V_GR = 36
ACC = [[64 + 4 * i for i in range(6)], [88, 92, 56, 60], [64, 68, 72, 76]]
NTP = [3, 2, 2]
BSLOT = 6144
BSTR = 6 * BSLOT
K1_AR = 2 * BSTR
AREG = 5 * 4096
K1_TAB = K1_AR + 4 * AREG
T_CS = 0
T_B1 = 3584
T_ST = 4096
K1_LDS = 163840
R_RAW = 0
R_KVF = 4096
R_FLAG = 10240
R_RP = 12288
BAR2 = int(os.environ.get("BAR2", "0"))
SP1 = int(os.environ.get("SP1", "12" if BAR2 else "11"))
SP2 = int(os.environ.get("SP2", "14"))
SP5 = 22 if BAR2 else 21
SP3 = int(os.environ.get("SP3", "20"))
SP4 = int(os.environ.get("SP4", "26"))
FG = int(os.environ.get("FG", "4"))
BARS = [n for n in range(30) if (n <= 10 or not BAR2 or n % 2 == 0) and n <= SP4]


def nslot(gs):
    return (gs - 4) % 9


def issue_at(g):
    n = g - 4 if g <= 14 else max(g - 7, {15: 10, 16: 11, 17: 11, 18: 12}.get(g, 0))
    while n not in BARS:
        n += 1
    return n

NF1 = int(os.environ.get("NF1", "6"))
NF2 = int(os.environ.get("NF2", "4"))
ROT = int(os.environ.get("ROT", "0"))
L2E = "0x3fb8aa3b"
EPS6 = "0x358637bd"
NEPS6 = "0xb58637bd"


def a_reg(t, s):
    return VA + (t * 20 + s) * 4


def b_reg(sg, c):
    return VB + (sg & 1) * (12 if sg < 20 else 8) + c * 4


def stats_chain(f, s, q, h0, h1, m, v, r, t):
    f("v_mul_f32 v%d, 0x3acccccd, v%d" % (s, s))
    f("v_mul_f32 v%d, 0x3acccccd, v%d" % (q, q))
    f("v_fma_f32 v%d, -v%d, v%d, v%d" % (q, s, s, q))
    f("v_max_f32 v%d, 0, v%d" % (q, q))
    f("v_cvt_pk_bf16_f32 v%d, v%d, v%d" % (t, s, q))
    f("v_lshlrev_b32 v%d, 16, v%d" % (m, t))
    f("v_and_b32 v%d, 0xffff0000, v%d" % (v, t))
    f("v_add_f32 v%d, 0x3727c5ac, v%d" % (v, v))
    rnd(f, v, t)
    f.group(["v_sqrt_f32 v%d, v%d" % (v, v), "s_nop 0"])
    rnd(f, v, t)
    f.group(["v_rcp_f32 v%d, v%d" % (r, v), "s_nop 0"])
    f("v_sub_f32 v%d, v%d, v%d" % (h0, s, m))
    f("v_mul_f32 v%d, v%d, v%d" % (h0, h0, r))
    f("v_mul_f32 v%d, v%d, v%d" % (h1, q, r))
    f("v_mul_f32 v%d, v%d, v%d" % (h1, h1, r))
    f("v_cvt_pk_bf16_f32 v%d, v%d, v%d" % (t, h0, h1))
    f("v_lshlrev_b32 v%d, 16, v%d" % (h0, t))
    f("v_and_b32 v%d, 0xffff0000, v%d" % (h1, t))
    f("v_add_f32 v%d, 0x3727c5ac, v%d" % (h1, h1))
    rnd(f, h1, t)
    f.group(["v_sqrt_f32 v%d, v%d" % (h1, h1), "s_nop 0"])
    rnd(f, h1, t)
    f.group(["v_rcp_f32 v%d, v%d" % (v, h1), "s_nop 0"])
    f("v_mul_f32 v%d, v%d, v%d" % (m, m, r))
    f("v_add_f32 v%d, v%d, v%d" % (h1, m, h0))
    f("v_mul_f32 v%d, v%d, v%d" % (h1, h1, v))
    f("v_mul_f32 v%d, v%d, v%d" % (h0, r, v))


def gelu2(o, lo, hi, e0, e1):
    o("v_fmaak_f32 v%d, v%d, v%d, 0x41b2e92f" % (e0, lo, lo))
    o("v_fmaak_f32 v%d, v%d, v%d, 0x41b2e92f" % (e1, hi, hi))
    o("v_mul_f32 v%d, v%d, v%d" % (e0, e0, lo))
    o("v_mul_f32 v%d, v%d, v%d" % (e1, e1, hi))
    o("v_mul_f32 v%d, 0xbdd2d3e8, v%d" % (e0, e0))
    o("v_mul_f32 v%d, 0xbdd2d3e8, v%d" % (e1, e1))
    o("v_exp_f32 v%d, v%d" % (e0, e0))
    o("v_exp_f32 v%d, v%d" % (e1, e1))
    o("v_add_f32 v%d, 1.0, v%d" % (e0, e0))
    o("v_add_f32 v%d, 1.0, v%d" % (e1, e1))
    o("v_rcp_f32 v%d, v%d" % (e0, e0))
    o("v_rcp_f32 v%d, v%d" % (e1, e1))
    o("v_mul_f32 v%d, v%d, v%d" % (lo, lo, e0))
    o("v_mul_f32 v%d, v%d, v%d" % (hi, hi, e1))


def phi2(o, lo, hi, e0, e1, dlo=None, dhi=None, eps_in=True):
    dlo = lo if dlo is None else dlo
    dhi = hi if dhi is None else dhi
    o("v_mul_f32 v%d, %s, v%d" % (e0, L2E, lo))
    o("v_mul_f32 v%d, %s, v%d" % (e1, L2E, hi))
    o("v_exp_f32_e64 v%d, v%d clamp" % (e0, e0))
    o("v_exp_f32_e64 v%d, v%d clamp" % (e1, e1))
    o("v_max_f32 v%d, %s, v%d" % (dlo, EPS6 if eps_in else "0", lo))
    o("v_max_f32 v%d, %s, v%d" % (dhi, EPS6 if eps_in else "0", hi))
    o("v_add_f32 v%d, v%d, v%d" % (dlo, dlo, e0))
    o("v_add_f32 v%d, v%d, v%d" % (dhi, dhi, e1))
    if not eps_in:
        o("v_add_f32 v%d, %s, v%d" % (dlo, EPS6, dlo))
        o("v_add_f32 v%d, %s, v%d" % (dhi, EPS6, dhi))


def gen_stream(a, st):
    N = "KV"[st]
    vm = Q(a, "vmcnt", 63)
    lg = Q(a, "lgkmcnt", 15)
    fA = Fill(a, vm, lg)
    fB = Fill(a, vm, lg)
    dmaq = []
    ool = []
    fA.drop = fB.drop = "nofill" in ABL

    def dma(gs):
        out = []
        if gs >= 30 or ("nodma" in ABL and gs > 4):
            return out
        def kupd():
            if gs > 0 and ROT:
                a("s_add_u32 s3, s3, 1")
                a("s_cmp_eq_u32 s3, 10")
                a("s_cselect_b32 s3, 0, s3")

        def soff(stride, add=0):
            if ROT:
                a("s_mul_i32 s45, s3, %d" % stride)
                if add:
                    a("s_add_u32 s45, s45, %d" % add)
            else:
                a("s_mov_b32 s45, %d" % ((gs % 10) * stride + add))
        if gs < 10:
            for q in range(2):
                def fa(q=q):
                    if q == 0:
                        kupd()
                    a("s_add_u32 m0, s47, %d" % ((gs % 5) * 4096 + q * 1024))
                    if q == 0:
                        soff(128)
                    else:
                        a("s_add_u32 s45, s45, %d" % (8 * 1280))
                    if "noA" in ABL:
                        return
                    a("buffer_load_dwordx4 v7, s[20:23], s45 offen lds")
                    vm.add(("S", gs))
                out.append((gs, fa))

            def fm():
                a("s_add_u32 m0, s46, %d" % ((gs % 6) * BSLOT))
                soff(64 * 3840)
                if "noB" in ABL:
                    return
                a("s_mov_b64 exec, s[54:55]")
                a("buffer_load_dwordx4 v8, s[24:27], s45 offen lds")
                a("s_mov_b64 exec, -1")
                vm.add(("S", gs))
            out.append((gs, fm))
            if (gs & 1) == st and "noB" not in ABL:
                def fx():
                    a("s_add_u32 m0, s52, %d" % ((gs % 6) * BSLOT))
                    a("s_nop 0")
                    a("buffer_load_dwordx4 v9, s[24:27], s45 offen lds")
                    vm.add(("S", gs))
                out.append((gs, fx))
        else:
            def fb():
                kupd()
                a("s_add_u32 m0, s53, %d" % (nslot(gs) * 4096 - (64 if gs >= 20 and st == 1 else 0)))
                if gs >= 20 and st == 0:
                    soff(64 * 3840)
                    a("buffer_load_dwordx4 v11, s[24:27], s45 offen lds")
                else:
                    soff(64 * 3072)
                    a("buffer_load_dwordx4 v10, s[28:31], s45 offen%s lds" % (" offset:64" if gs >= 20 else ""))
                vm.add(("S", gs))
            out.append((gs, fb))
        return out

    def reads(sg):
        L = []
        gs, ks = sg >> 1, sg & 1
        if sg < 20:
            for t in range(2):
                L.append(("ds_read_b128 %s, v%d offset:%d" % (vr(a_reg(t, sg)), 5 + ks, (gs % 5) * 4096 + t * 2048), ("A", sg)))
        for c in range(NTP[sg // 20]):
            for hh in range(2):
                if sg < 20:
                    txt = "ds_read_b64_tr_b16 %s, v%d offset:%d" % (vr(b_reg(sg, c) + hh * 2, 2), [2, 88][ks], (gs % 6) * BSLOT + hh * 1536 + c * 32)
                else:
                    txt = "ds_read_b64_tr_b16 %s, v%d offset:%d" % (vr(b_reg(sg, c) + hh * 2, 2), [[3, 4], [2, 31]][ks][c], nslot(gs) * 4096 + hh * 1024)
                L.append((txt, ("B", sg, c)))
        return L

    def barrier(n):
        for f in (fA, fB):
            if f.has_sp(n):
                f.flush_to_sp(n)
        last = n if n < SP4 else 29
        while last + 1 < 30 and last + 1 not in BARS:
            last += 1
        while dmaq and dmaq[0][0] <= last:
            dmaq.pop(0)[1]()
        if PROF2:
            stamp(a, 8 + 3 * n, 19, lg, vm)
        vm.wait(("S", last))
        if PROF2:
            stamp(a, 9 + 3 * n, 19, lg, vm)
        if "nobar" not in ABL:
            a("s_barrier")
        if PROF2:
            stamp(a, 10 + 3 * n, 19, lg, vm)
        for f in (fA, fB):
            if f.has_sp(n):
                f.drop_sp(n)

    def seg_cs(f, p):
        if p == 0:
            f.group(["v_and_b32 v18, 15, v1", "s_lshl_b32 s60, s50, 2", "s_add_u32 s60, s60, s59", "v_lshl_add_u32 v18, v18, 4, s60",
                     "s_nop 7", "s_nop 1"])
            for c in range(3):
                f.lds("ds_write_b32 v18, v%d offset:%d" % (V_CS + 4 * c, T_CS + (st * 3 + c) * 256), "CSA")
        else:
            f.group(["v_and_b32 v18, 15, v1", "v_lshl_add_u32 v18, v18, 2, s101"])
            f.lds("ds_write_b32 v18, v%d offset:%d" % (V_CS, (p - 1) * 512), "CSA")

    def seg_epi(f, p):
        kind = "Q" if (p == 2 and st == 0) else "H"
        acc = ACC[p]
        AB = [6, 8]
        CSR, B1R = [80, 32], [84, 36]
        if kind == "H":
            f("v_and_b32 v13, 15, v1")
            f("v_lshl_add_u32 v13, v13, 3, s44")
            for t in range(2):
                f.lds("ds_read_b64 v[%d:%d], v13 offset:%d" % (AB[t], AB[t] + 1, 256 + t * 128), "E")
        else:
            f("v_and_b32 v13, 15, v1")
            f("v_lshl_add_u32 v13, v13, 2, s44")
            for t in range(2):
                f.lds("ds_read_b32 v%d, v13 offset:%d" % (AB[t], t * 64), "E")
                f.lds("ds_read_b32 v%d, v13 offset:%d" % (AB[t] + 1, 128 + t * 64), "E")
        f("v_xor_b32 v17, 64, v5")
        cso = T_CS + 1536 + (p - 1) * 512 + st * 256
        colb = (0 if st == 0 else (32 if p == 1 else 64))
        f.lds("ds_read_b128 %s, v5 offset:%d" % (vr(CSR[0]), cso), "E")
        f.lds("ds_read_b128 %s, v17 offset:%d" % (vr(CSR[1]), cso), "E")
        f.lds("ds_read_b128 %s, v17 offset:%d" % (vr(B1R[1]), cso + 128), "E")
        f.lds("ds_read_b128 v[12:15], v5 offset:%d" % (cso + 128), "E")
        if kind == "H":
            f.lds("ds_read_b128 %s, v5 offset:%d" % (vr(B1R[0]), T_B1 + colb * 4), ("E", 0))
        f.lgwait("E")
        for r in range(4):
            f("v_add_f32 v%d, v%d, v%d" % (CSR[1] + r, CSR[1] + r, B1R[1] + r))
        if kind == "H":
            f.lds("ds_read_b128 %s, v17 offset:%d" % (vr(B1R[1]), T_B1 + colb * 4), ("E", 1))
        for r in range(4):
            f("v_add_f32 v%d, v%d, v%d" % (CSR[0] + r, CSR[0] + r, 12 + r))
        for c in range(2):
            f.lgwait(("E", c))
            for t in range(2):
                b = acc[c * 2 + t]
                al, be = AB[t], AB[t] + 1
                for r in range(4):
                    tmp = 16 + (r & 1)
                    if kind == "H":
                        f("v_fma_f32 v%d, -v%d, v%d, v%d" % (tmp, be, CSR[c] + r, B1R[c] + r))
                        f("v_fma_f32 v%d, v%d, v%d, v%d" % (b + r, b + r, al, tmp))
                    else:
                        f("v_fmaak_f32 v%d, v%d, v%d, %s" % (tmp, be, CSR[c] + r, NEPS6))
                        f("v_fma_f32 v%d, v%d, v%d, -v%d" % (b + r, b + r, al, tmp))
                for h in range(2):
                    (gelu2 if kind == "H" else phi2)(f, b + 2 * h, b + 2 * h + 1, 12 + 2 * h, 13 + 2 * h)
                d = acc[t] + 2 * c
                f("v_cvt_pk_bf16_f32 v%d, v%d, v%d" % (d, b, b + 1))
                f("v_cvt_pk_bf16_f32 v%d, v%d, v%d" % (d + 1, b + 2, b + 3))
                if c == 1:
                    if kind == "H":
                        j = 0 if st == 0 else p
                        pre = ["s_add_u32 s60, s56, %d" % (t * 68 * 1024 + j * 1024)]
                    else:
                        pre = ["s_add_u32 s60, s57, %d" % (t * 68 * 1024)]
                    f.group(["s_mov_b64 exec, s[8:9]", "v_swap_b32 v%d, v%d" % (acc[t], acc[t] + 2),
                             "v_swap_b32 v%d, v%d" % (acc[t] + 1, acc[t] + 3), "s_mov_b64 exec, -1"])
                    f.vmem("buffer_store_dwordx4 %s, v0, s[32:35], s60 offen" % vr(acc[t]), "ST", pre)

    def seg_kv(f):
        acc = ACC[0]
        seg_cs(f, 0)
        f("v_add_u32 v13, s43, v0")
        if st == 0:
            for t in range(2):
                f.lds("ds_write_b128 v13, %s offset:%d" % (vr(acc[4 + t]), R_RAW + t * 1024), "RW")
        f.lds("ds_write_b128 v13, %s offset:%d" % (vr(V_GR), R_RAW + 2048 + st * 1024), "RW")
        f("""
        v_and_b32 v16, 15, v1
        v_lshl_add_u32 v12, v16, 4, s59
        v_bfe_u32 v17, v1, 4, 1
        v_lshlrev_b32 v17, 10, v17
        v_bfe_u32 v18, v1, 2, 2
        v_lshl_add_u32 v17, v18, 8, v17
        v_and_b32 v18, 3, v1
        v_lshl_add_u32 v17, v18, 2, v17
        v_add_u32 v14, s43, v17
        v_lshl_add_u32 v15, v16, 4, v14
        v_lshrrev_b32 v5, 4, v1
        v_lshl_add_u32 v5, v5, 4, s7
        """)
        if st == 1:
            f("""
            v_cmp_le_u32 s[84:85], 8, v16
            v_lshrrev_b32 v17, 4, v1
            v_lshlrev_b32 v9, 6, v17
            v_bfe_u32 v17, v1, 2, 1
            v_lshl_add_u32 v9, v17, 8, v9
            v_lshl_add_u32 v9, v18, 1, v9
            """)
            f.group(["s_and_b32 s60, s48, 1", "s_lshl_b32 s60, s60, 9", "s_bfe_u32 s61, s48, 0x10001", "s_lshl_b32 s61, s61, 3",
                     "s_add_u32 s60, s60, s61", "v_add_u32 v9, s60, v9"])
            f("v_mov_b32 v17, 0x%x" % OOB)
            f("v_cndmask_b32 v9, v17, v9, s[84:85]")
        f.lgwait("RW")
        f.sp(SP1)
        f.lds("ds_read_b32 v32, v14 offset:%d" % (R_RAW + 128), "SR")
        f.lds("ds_read_b32 v33, v15 offset:%d" % (R_RAW + 2048), "SR")
        CQ = [(28, 34), (36, 38), (12, 14)]
        f.lds("ds_read_b64 v[28:29], v12 offset:%d" % (T_CS + st * 3 * 256), "CR")
        f.lds("ds_read_b64 v[34:35], v12 offset:%d" % (T_CS + st * 3 * 256 + 8), "CR")
        for c in range(1, 3):
            f.lds("ds_read_b128 %s, v12 offset:%d" % (vr(CQ[c][0]), T_CS + (st * 3 + c) * 256), "CR")
        if st == 1:
            seg_rp_load(f)
        f.lgwait("CR")
        for c in range(3):
            f("v_add_f32 v%d, v%d, v%d" % (CQ[c][0], CQ[c][0], CQ[c][0] + 1))
            f("v_add_f32 v%d, v%d, v%d" % (CQ[c][1], CQ[c][1], CQ[c][1] + 1))
        for c in range(3):
            f("v_add_f32 v%d, v%d, v%d" % (6 + c, CQ[c][0], CQ[c][1]))
        f("""
        v_and_b32 v16, 31, v1
        v_lshl_add_u32 v14, v16, 2, s44
        v_lshl_add_u32 v15, v16, 3, s44
        v_lshrrev_b32 v16, 4, v1
        v_lshl_add_u32 v16, v16, 4, s44
        """)
        stats_chain(f, 32, 33, 34, 35, 36, 37, 38, 39)
        f.lds("ds_write_b32 v14, v38", "SW")
        f.lds("ds_write_b32 v14, v36 offset:128", "SW")
        f.lds("ds_write_b64 v15, v[34:35] offset:256", "SW")
        f.lgwait("SW")
        for t in range(2):
            f.lds("ds_read_b128 v[32:35], v16 offset:%d" % (t * 64), ("AB", t))
            f.lds("ds_read_b128 v[36:39], v16 offset:%d" % (128 + t * 64), ("AB", t))
            f.lgwait(("AB", t))
            for c in range(3):
                b = acc[c * 2 + t]
                for r in range(4):
                    tmp = 17 + (r & 1)
                    if st == 0:
                        f("v_fmaak_f32 v%d, v%d, v%d, %s" % (tmp, 36 + r, 6 + c, NEPS6))
                    else:
                        f("v_mul_f32 v%d, v%d, v%d" % (tmp, 36 + r, 6 + c))
                    f("v_fma_f32 v%d, v%d, v%d, -v%d" % (b + r, b + r, 32 + r, tmp))
                if st == 0:
                    for h in range(2):
                        phi2(f, b + 2 * h, b + 2 * h + 1, 12 + 2 * h, 13 + 2 * h)
                elif c == 2:
                    for h in range(2):
                        phi2(f, b + 2 * h, b + 2 * h + 1, 12, 13, 14, 15, eps_in=False)
                        f("v_cvt_pk_bf16_f32 v%d, v14, v15" % (17 + h))
                    for h in range(2):
                        pre = ["s_add_u32 s60, s58, %d" % (t * 68 * 1024)] if h == 0 else []
                        f.vmem("buffer_store_short v%d, v9, s[32:35], s60 offen offset:%d" % (17 + h, h * 32), "ST", pre)
                        f.vmem("buffer_store_short_d16_hi v%d, v9, s[32:35], s60 offen offset:%d" % (17 + h, h * 32 + 16), "ST")
                d = acc[c * 2] + 2 * t
                f("v_cvt_pk_bf16_f32 v%d, v%d, v%d" % (d, b, b + 1))
                f("v_cvt_pk_bf16_f32 v%d, v%d, v%d" % (d + 1, b + 2, b + 3))
                if st == 1 and c == 2:
                    f("v_cndmask_b32 v%d, v%d, v%d, s[84:85]" % (d, d, V_ONES))
                    f("v_cndmask_b32 v%d, v%d, v%d, s[84:85]" % (d + 1, d + 1, V_ONES))
        f("v_add_u32 v13, s43, v0")
        for c in range(3):
            f.lds("ds_write_b128 v13, %s offset:%d" % (vr(acc[c * 2]), R_KVF + (st * 3 + c) * 1024), "FW")
        f("v_add_u32 v12, s86, v0")
        f("v_add_u32 v14, s87, v0")
        f.lgwait("FW")
        f.sp(SP2)
        KF = [64, 68, 72, 76]
        VF = [80, 84, 32, 36]
        for rg in range(4):
            f.lds("ds_read_b128 %s, v12 offset:%d" % (vr(KF[rg]), rg * AREG), ("J", rg))
            f.lds("ds_read_b128 %s, v14 offset:%d" % (vr(VF[rg]), rg * AREG), ("J", rg))
        for rg in range(4):
            f.lgwait(("J", rg))
            f("v_mfma_f32_16x16x32_bf16 v[12:15], %s, %s, %s" % (vr(KF[rg]), vr(VF[rg]), "0" if rg == 0 else "v[12:15]"))
        f.group(["s_nop 7", "s_nop 3"])
        f.vmem("buffer_store_dwordx4 v[12:15], v0, s[92:95], s42 offen sc1", "SL")
        if st == 1:
            seg_rp_store(f)
        if st == 0:
            f("v_mov_b32 v28, 1")
            f("v_mov_b32 v29, s43")
        f.after(2 * SP3 - 2)
        f.vmwait("SL")
        f.sp(SP3)
        if st == 0:
            f.vmem("buffer_atomic_add v28, off, s[36:39], s12 sc0 sc1", "AT", ["s_mov_b64 exec, 1"])
            f.F[-1] = f.F[-1] + (["s_mov_b64 exec, -1"],)
            f.after(2 * SP4 - 3)
            f.vmwait("AT")
            f.group(["s_mov_b64 exec, 1"])
            f.F[-1] = ("lds", "s_mov_b64 exec, 1\nds_write_b32 v29, v28 offset:%d\ns_mov_b64 exec, -1" % R_FLAG, "FL")
            f.lgwait("FL")
        f.sp(SP4)
        f("v_mov_b32 v29, %d" % (K1_AR + R_FLAG))
        f.lds("ds_read_b32 v28, v29", "FR")
        f.lgwait("FR")
        f.group(["s_nop 0", "v_readfirstlane_b32 s41, v28", "s_nop 3"])
        for j in range(16 // FG):
            f.after(max(41 + (FG * (j + 1) - 1) // 2, 2 * SP4 + j))

            def fl(j=j):
                assert not dmaq and issued[0] == 29 and not any(isinstance(t, tuple) and t[0] == "S" for t in vm.q)
                a("s_cmp_eq_u32 s41, 15")
                a("s_cbranch_scc1 K1_%s_FL%d" % (N, j))
                a.label("K1_%s_FR%d" % (N, j))
                o = ["K1_%s_FL%d:" % (N, j)]
                for rb in range(FG * j, FG * (j + 1)):
                    if rb % 4 == 0 or rb == FG * j:
                        o.append("s_add_u32 s62, s77, %d" % ((rb >> 2) * 4096))
                    o.append("buffer_load_dwordx4 %s, v0, s[92:95], s62 offen offset:%d sc1" % (vr(a_reg(rb & 1, rb >> 1)), (rb & 3) * 1024))
                o.append("s_branch K1_%s_FR%d" % (N, j))
                ool.extend(o)
            f.call(fl)

    def seg_rp_load(f):
        f("""
        v_lshrrev_b32 v16, 1, v1
        v_mul_u32_u24 v17, 1280, v16
        v_and_b32 v18, 1, v1
        v_lshl_add_u32 v17, v18, 4, v17
        """)
        for j in range(3):
            pre = ["s_lshl_b32 s60, s2, 2",
                   "s_add_u32 s60, s60, s50",
                   "s_add_u32 s60, s60, %d" % (1024 if j == 1 else 0),
                   "s_mul_i32 s61, s60, 1639",
                   "s_lshr_b32 s61, s61, 16",
                   "s_mul_i32 s62, s61, 40",
                   "s_sub_u32 s62, s60, s62",
                   "s_mul_i32 s63, s62, 205",
                   "s_lshr_b32 s63, s63, 10",
                   "s_mul_i32 s45, s63, %d" % (68 * 5 - 5),
                   "s_add_u32 s45, s45, s62",
                   "s_mul_i32 s63, s61, 5",
                   "s_add_u32 s45, s45, s63",
                   "s_add_u32 s45, s45, %d" % (240 if j == 2 else 0),
                   "s_lshl_b32 s45, s45, 10",
                   "s_cmp_lt_u32 s60, %d" % (800 if j == 2 else 1920),
                   "s_cselect_b32 s%d, s45, 0x%x" % (96 + j, OOB),
                   "s_lshl_b32 s62, s62, 5"]
            f.group(pre)
            if j < 2:
                f.vmem("buffer_load_dwordx4 v17, s[64:67], s62 offen lds", "RP",
                       ["s_mul_i32 s61, s61, %d" % (32 * 1280), "s_add_u32 s62, s62, s61", "s_add_u32 m0, s43, %d" % (R_RP + j * 1024), "s_nop 0"])
            else:
                f.group(["s_mul_i32 s45, s61, 40",
                         "s_mul_i32 s60, s61, 160",
                         "s_sub_u32 s60, s60, %d" % (16 * 160 - 32),
                         "s_cmp_lt_u32 s61, 16",
                         "s_cselect_b32 s63, 8, 40",
                         "s_cselect_b32 s61, s45, s60",
                         "s_mul_i32 s61, s61, 1280",
                         "s_add_u32 s62, s62, s61"])
                f("""
                v_lshrrev_b32 v17, 3, v16
                v_mul_u32_u24 v17, s63, v17
                v_and_b32 v16, 7, v16
                v_add_u32 v17, v17, v16
                v_mul_u32_u24 v17, 1280, v17
                v_lshl_add_u32 v17, v18, 4, v17
                """)
                f.vmem("buffer_load_dwordx4 v17, s[88:91], s62 offen lds", "RP", ["s_add_u32 m0, s43, %d" % (R_RP + j * 1024), "s_nop 0"])

    def seg_rp_store(f):
        f("""
        v_lshrrev_b32 v16, 2, v1
        v_lshlrev_b32 v16, 5, v16
        v_and_b32 v17, 3, v1
        v_lshl_add_u32 v16, v17, 3, v16
        v_add_u32 v16, s43, v16
        """)
        f.vmwait("RP")
        for j in range(3):
            for hh in range(2):
                f.lds("ds_read_b64_tr_b16 %s, v16 offset:%d" % (vr(64 + j * 4 + hh * 2, 2), R_RP + j * 1024 + hh * 512), ("RT", j))
        for j in range(3):
            f.lgwait(("RT", j))
            f.vmem("buffer_store_dwordx4 %s, v0, s[68:71], s%d offen" % (vr(64 + j * 4), 96 + j), "RS")

    for _w in range(int(os.environ.get("WARM", "1")) if "warm" in ABL else 0):
        for gs in range(10):
            for _, fn in dma(gs):
                fn()
        a("s_waitcnt vmcnt(0)")
        a("s_barrier")
        vm.q = []
    for gs in range(2):
        for _, fn in dma(gs):
            fn()
    yield
    issued = [3]
    for gs in range(2, 4):
        dmaq += dma(gs)

    def issue(n):
        while issued[0] < 29 and issue_at(issued[0] + 1) <= n:
            issued[0] += 1
            dmaq.extend(dma(issued[0]))
    if st == 0:
        fA("""
        v_lshl_add_u32 v13, s50, 6, v1
        v_lshlrev_b32 v14, 1, v13
        s_mul_i32 s60, s48, 192
        """)
        fA.vmem("buffer_load_ushort v15, v14, s[96:99], s60 offen", "B1")
        fA("""
        v_min_u32 v13, 127, v13
        v_lshl_add_u32 v14, v13, 2, s59
        """)
        fA.after(8)
        fA.vmwait("B1")
        fA("v_lshlrev_b32 v15, 16, v15")
        fA.lds("ds_write_b32 v14, v15 offset:%d" % T_B1, "B1W")
    a("s_waitcnt lgkmcnt(0)")
    barrier(0)
    stamp(a, 1, 19, lg, vm)
    issue(0)
    for txt, tag in reads(0):
        a(txt)
        lg.add(tag)
    for sg in range(60):
        p, s = sg // 20, sg % 20
        NT = NTP[p]
        fA.cur = fB.cur = sg
        if p == 0:
            lg.wait(("A", sg))
        if (sg & 1) and sg < 59 and (sg + 1) // 2 in BARS:
            n = (sg + 1) // 2
            barrier(n)
            issue(n)
        if sg == 19:
            a("v_add_u32 v2, s14, v3")
            a("v_add_u32 v31, s14, v4")
        dsq = reads(sg + 1) if sg < 59 and "nords" not in ABL else []
        ml = []
        for c in range(NT):
            for t in range(2):
                ml.append((c, t))
        if p == 0:
            ml.append(("G", st))
        nds = (len(dsq) + len(ml) - 1) // len(ml)
        for i, (c, t) in enumerate(ml):
            A_ = vr(a_reg(t, s))
            if c == "G":
                a("v_mfma_f32_16x16x32_bf16 %s, %s, %s, %s" % (vr(V_GR), A_, A_, "0" if s == 0 else vr(V_GR)))
            else:
                if t == 0:
                    lg.wait(("B", sg, c))
                d = vr(ACC[p][c * 2 + t])
                B_ = vr(b_reg(sg, c))
                if p == 0:
                    a("v_mfma_f32_16x16x32_bf16 %s, %s, %s, %s" % (d, A_, B_, "0" if s == 0 else d))
                else:
                    a("v_mfma_f32_16x16x32_bf16 %s, %s, %s, %s" % (d, B_, A_, "0" if s == 0 else d))
            k = (len(dsq) + (len(ml) - i) - 1) // (len(ml) - i)
            for _ in range(k):
                if dsq:
                    txt, tag = dsq.pop(0)
                    a(txt)
                    lg.add(tag)
            if dmaq:
                dmaq.pop(0)[1]()
            nf = 2 if p == 0 else (NF1 if p == 1 else NF2)
            n0 = len(fB.F)
            fB.pop(nf)
            used = n0 - len(fB.F)
            fA.pop(max(nf - used, 2 if p == 2 else 0))
        assert not dsq
        lbl = "K1_%s_CS%d" % (N, sg)
        if "nocs" in ABL:
            pass
        elif "csfake" in ABL:
            for c in range(NT if p == 0 else 1):
                d = vr(V_CS + 4 * c)
                if s % (4 if p == 0 else 2) == 0:
                    a("v_mfma_f32_16x16x32_bf16 %s, %s, %s, %s" % (d, vr(V_ONES), vr(b_reg(sg, c)), "0" if s == 0 else d))
        elif s & 1:
            pass
        elif p == 0:
            a("s_cmp_lg_u32 s15, %d" % (s & 2))
            a("s_cbranch_scc1 %s" % lbl)
            for c in range(NT):
                d = vr(V_CS + 4 * c)
                a("v_mfma_f32_16x16x32_bf16 %s, %s, %s, %s" % (d, vr(V_ONES), vr(b_reg(sg, c)), "0" if s < 4 else d))
            a.label(lbl)
        else:
            d = vr(V_CS)
            a("v_mfma_f32_16x16x32_bf16 %s, %s, %s, %s" % (d, vr(V_ONES), vr(b_reg(sg, 0)), "0" if s == 0 else d))
        if s == 0 and p > 0:
            assert not any(isinstance(it, tuple) and it[0] == "lds" and it[2] == "CSA" for it in fA.F + fB.F)
        if s == 19:
            stamp(a, 2 + p, 19, lg, vm)
            if p == 0:
                fA.flush()
                seg_kv(fA)
            elif p == 1:
                assert not any(isinstance(it, tuple) and ((it[0] == "lds" and it[2] not in ("FL", "FR")) or (it[0] == "vmem" and it[2] != "AT")) for it in fA.F), [it for it in fA.F if isinstance(it, tuple)][:5]
                seg_cs(fB, 1)
                fB.lgwait("CSA")
                fB.sp(SP5)
                seg_epi(fB, 1)
    fA.cur = fB.cur = 60
    fC = Fill(a, vm, lg)
    seg_cs(fC, 2)
    fC.flush()
    fA.flush()
    fB.flush()
    lg.wait("CSA")
    a("s_barrier")
    seg_epi(fC, 2)
    fC.flush()
    stamp(a, 5, 19, lg, vm)
    a("s_cmp_lg_u32 s41, 15")
    a("s_cbranch_scc1 K1_END")
    a("s_branch K1_FOLD_%d" % st)
    for x in ool:
        if x.endswith(":"):
            a.label(x[:-1])
        else:
            a(x)
    return_vm[st] = vm


return_vm = {}


def gen_fold(a, st):
    vm = return_vm[st]
    a.label("K1_FOLD_%d" % st)
    a("""
    v_and_b32 v2, 15, v1
    v_lshrrev_b32 v3, 4, v1
    s_lshl_b32 s60, s82, 4
    v_lshl_add_u32 v4, v3, 2, s60
    s_lshl_b32 s60, s83, 4
    v_add_u32 v5, s60, v2
    v_cmp_le_u32 vcc, 20, v4
    v_cmp_le_u32 s[60:61], 20, v5
    s_xnor_b64 s[84:85], vcc, s[60:61]
    v_cmp_gt_u32 vcc, 40, v4
    s_and_b64 s[84:85], s[84:85], vcc
    v_cmp_gt_u32 s[86:87], 40, v5
    s_and_b64 s[84:85], s[84:85], s[86:87]
    s_and_b32 s62, s48, 1
    s_lshl_b32 s63, s62, 3
    s_cmp_eq_u32 s83, 2
    s_cselect_b32 s63, s63, 0
    v_xor_b32 v6, s63, v2
    s_lshl_b32 s63, s62, 1
    s_lshl_b32 s60, s83, 10
    s_lshl_b32 s61, s82, 3
    s_add_u32 s60, s60, s61
    s_lshl_b32 s61, s83, 9
    s_add_u32 s61, s61, 2560
    s_cmp_eq_u32 s82, 2
    s_cselect_b32 s63, s63, 0
    s_cselect_b32 s45, 3, 4
    s_cselect_b32 s60, s61, s60
    v_xor_b32 v7, s63, v3
    v_lshl_add_u32 v6, v7, 4, v6
    v_lshlrev_b32 v6, s45, v6
    s_lshl_b32 s61, s48, 12
    s_add_u32 s60, s60, s61
    s_lshl_b32 s63, s62, 12
    s_add_u32 s61, s82, s83
    s_cmp_eq_u32 s61, 4
    s_cselect_b32 s61, s63, 0
    s_cselect_b64 s[86:87], s[86:87], -1
    s_sub_u32 s60, s60, s61
    v_mov_b32 v8, 0x%x
    v_cndmask_b32 v6, v8, v6, s[86:87]
    """ % OOB)
    a("""
    s_lshl_b32 s61, s48, 6
    s_lshl_b32 s63, s82, 3
    s_add_u32 s61, s61, s63
    s_lshr_b32 s63, s48, 2
    s_lshl_b32 s63, s63, 6
    s_add_u32 s63, s63, 1024
    s_lshl_b32 s45, s62, 5
    s_add_u32 s63, s63, s45
    s_bfe_u32 s45, s48, 0x10001
    s_lshl_b32 s45, s45, 3
    s_add_u32 s63, s63, s45
    s_cmp_eq_u32 s82, 2
    s_cselect_b32 s61, s63, s61
    s_add_u32 s61, s61, %d
    v_lshl_add_u32 v7, v3, 4, s61
    v_cmp_eq_u32 s[86:87], 40, v5
    s_and_b64 s[86:87], s[86:87], vcc
    v_cndmask_b32 v7, v8, v7, s[86:87]
    """ % KV_Z)
    srd(a, 24, 16, SZ_KV, WS_KV)
    a("s_waitcnt vmcnt(0)")
    R = [a_reg(rb & 1, rb >> 1) for rb in range(16)]
    for stp in (8, 4, 2, 1):
        for rb in range(stp):
            for e in range(4):
                a("v_add_f32 v%d, v%d, v%d" % (R[rb] + e, R[rb] + e, R[rb + stp] + e))
    a("""
    v_cvt_pk_bf16_f32 v10, v96, v97
    v_cvt_pk_bf16_f32 v11, v98, v99
    v_cndmask_b32 v12, 0, v10, s[84:85]
    v_cndmask_b32 v13, 0, v11, s[84:85]
    buffer_store_dwordx2 v[12:13], v6, s[24:27], s60 offen
    buffer_store_dwordx2 v[10:11], v7, s[24:27], 0 offen
    """)
    stamp(a, 6, 19)
    a("s_branch K1_END")


def gen_k1(a):
    a.raw(".globl k1_kernel")
    a.raw(".p2align 8")
    a.raw(".type k1_kernel,@function")
    a.label("k1_kernel")
    a("""
    s_cmp_ge_u32 s2, 256
    s_cbranch_scc1 K1_END
    s_load_dwordx4 s[4:7], s[0:1], 0
    s_load_dwordx2 s[8:9], s[0:1], 16
    s_load_dwordx4 s[12:15], s[0:1], 32
    s_load_dwordx2 s[18:19], s[0:1], 48
    s_load_dwordx4 s[64:67], s[0:1], 72
    """)
    if PROF:
        a("s_memrealtime s[84:85]")
    a("""
    v_and_b32 v1, 63, v0
    v_lshrrev_b32 v13, 6, v0
    s_nop 0
    v_readfirstlane_b32 s40, v13
    v_lshlrev_b32 v0, 4, v1
    """)
    a("""
    s_and_b32 s60, s2, 3
    s_lshl_b32 s48, s60, 2
    s_bfe_u32 s60, s2, 0x20003
    s_add_u32 s48, s48, s60
    s_bfe_u32 s60, s2, 0x10002
    s_lshl_b32 s49, s60, 3
    s_lshr_b32 s60, s2, 5
    s_add_u32 s49, s49, s60
    s_bfe_u32 s61, s2, 0x20003
    s_lshl_b32 s61, s61, 1
    s_add_u32 s61, s61, s60
    s_mul_i32 s61, s61, 5
    s_lshr_b32 s3, s61, 2
    s_sub_u32 s61, s3, 10
    s_cmp_ge_u32 s3, 10
    s_cselect_b32 s3, s61, s3
    s_and_b32 s50, s40, 3
    s_lshr_b32 s51, s40, 2
    s_lshl_b32 s60, s49, 7
    s_lshl_b32 s61, s40, 4
    s_add_u32 s60, s60, s61
    v_lshrrev_b32 v13, 3, v1
    v_and_b32 v14, 7, v1
    v_xor_b32 v15, v14, v13
    v_add_u32 v13, s60, v13
    v_mul_u32_u24 v7, 1280, v13
    v_lshl_add_u32 v7, v15, 4, v7
    s_lshr_b32 s60, s40, 1
    s_mul_i32 s47, s60, %d
    s_and_b32 s60, s40, 1
    s_lshl_b32 s60, s60, 11
    s_add_u32 s47, s47, s60
    s_add_u32 s47, s47, %d
    """ % (AREG, K1_AR))
    a("""
    s_cmp_ge_u32 s40, 6
    s_cselect_b32 s61, 6, 0
    s_cselect_b32 s62, 1, 0
    s_sub_u32 s61, s40, s61
    s_lshl_b32 s46, s61, 10
    s_mul_i32 s63, s62, %d
    s_add_u32 s46, s46, s63
    s_lshl_b32 s52, s50, 10
    s_add_u32 s52, s52, %d
    s_mul_i32 s45, s48, 80
    s_mul_i32 s60, s62, 1280
    s_add_u32 s60, s60, s45
    s_add_u32 s60, s60, 1280
    s_add_u32 s63, s45, 2560
    s_sub_u32 s58, s45, 16
    """ % (BSTR, BSTR + 2048))

    def bvoff(dst, sj, jadd, scol, mask):
        a("""
        v_lshl_add_u32 v13, %s, 6, v1
        v_add_u32 v13, %d, v13
        v_mul_u32_u24 v14, 10923, v13
        v_lshrrev_b32 v14, 16, v14
        v_mul_u32_u24 v15, 6, v14
        v_sub_u32 v15, v13, v15
        v_cmp_eq_u32 vcc, 5, v15
        v_mov_b32 v16, %s
        v_mov_b32 v17, s58
        v_cndmask_b32 v16, v16, v17, vcc
        v_lshl_add_u32 v15, v15, 4, v16
        """ % (sj, jadd, scol))
        perm(a, dst, 14, 16)
        a("v_mul_u32_u24 v%d, 3840, v%d" % (dst, dst))
        a("v_add_u32 v%d, v%d, v15" % (dst, dst))
        if mask:
            a("s_not_b64 s[54:55], vcc")
            a("s_cmp_eq_u32 s62, 1")
            a("s_cselect_b64 s[54:55], -1, s[54:55]")
    bvoff(8, "s61", 0, "s60", True)
    bvoff(9, "s50", 128, "s63", False)
    a("s_waitcnt lgkmcnt(0)")
    srd(a, 20, 4, SZ_X)
    srd(a, 24, 6, SZ_WQKV)
    a("""
    s_mov_b64 s[10:11], s[64:65]
    s_mov_b64 s[16:17], s[66:67]
    s_cmp_eq_u32 s51, 1
    s_cbranch_scc1 K1_V_PRO
    """)
    gens = [gen_stream(a, 0), gen_stream(a, 1)]
    next(gens[0])
    a("s_branch K1_SETUP")
    a.label("K1_V_PRO")
    next(gens[1])
    a.label("K1_SETUP")
    a.prof_base = 0
    stamp_init(a)
    stamp(a, 0, 19)
    if PROF:
        a("v_mov_b32 v19, s84")
        a("s_mov_b64 exec, 1")
        a("buffer_store_dword v19, off, s[72:75], s76 offset:28")
        a("s_mov_b64 exec, -1")
    srd(a, 28, 12, SZ_W1)
    srd(a, 32, 16, SZ_AP, WS_AP)
    srd(a, 36, 10, 256)
    srd(a, 64, 18, SZ_W2)
    srd(a, 68, 16, SZ_PB, WS_PB)
    srd(a, 88, 8, SZ_WO)
    srd(a, 92, 16, SZ_SLAB, WS_SLAB)
    jobs = [(0, 0), (0, 1), (1, 0), (1, 1), (1, 2), (2, 1), (2, 2), (0, 2)]
    jt = sum((ja | (jb << 2)) << (4 * w) for w, (ja, jb) in enumerate(jobs))
    a("""
    s_mov_b32 s59, %d
    s_mul_i32 s43, s50, %d
    s_add_u32 s43, s43, %d
    s_lshl_b32 s44, s40, 9
    s_add_u32 s44, s44, %d
    s_lshl_b32 s63, s48, 3
    s_add_u32 s63, s63, s40
    s_lshl_b32 s63, s63, 14
    s_lshl_b32 s42, s49, 10
    s_add_u32 s42, s42, s63
    s_mov_b32 s41, 0
    s_lshl_b32 s60, s40, 2
    s_lshr_b32 s60, 0x%x, s60
    s_and_b32 s82, s60, 3
    s_bfe_u32 s83, s60, 0x20002
    s_lshl_b32 s86, s82, 10
    s_add_u32 s86, s86, %d
    s_lshl_b32 s87, s83, 10
    s_add_u32 s87, s87, %d
    s_lshl_b32 s60, s49, 3
    s_lshl_b32 s61, s50, 1
    s_add_u32 s60, s60, s61
    s_mul_i32 s60, s60, %d
    s_mul_i32 s61, s48, 3072
    s_add_u32 s56, s60, s61
    s_lshl_b32 s61, s48, 10
    s_add_u32 s57, s60, s61
    s_add_u32 s57, s57, %d
    s_lshr_b32 s61, s48, 2
    s_lshl_b32 s61, s61, 10
    s_add_u32 s58, s60, s61
    s_add_u32 s58, s58, %d
    s_mul_i32 s53, s51, %d
    s_lshl_b32 s60, s50, 10
    s_add_u32 s53, s53, s60
    """ % (K1_TAB, AREG, K1_AR, K1_TAB + T_ST, jt, K1_AR + R_KVF, K1_AR + R_KVF + 3072, 68 * 1024, 48 * 1024, 64 * 1024, BSTR))
    a("s_mov_b32 s77, s63")
    a("""
    s_mul_i32 s60, s51, %d
    v_lshrrev_b32 v13, 2, v1
    v_and_b32 v14, 3, v1
    v_mul_u32_u24 v2, 96, v13
    v_lshl_add_u32 v2, v14, 3, v2
    s_and_b32 s61, s50, 1
    s_mul_i32 s62, s61, 3072
    s_add_u32 s62, s62, s60
    s_xor_b32 s63, s61, 1
    s_mul_i32 s63, s63, 3072
    s_add_u32 s63, s63, s60
    v_add_u32 v88, s63, v2
    v_add_u32 v2, s62, v2
    v_lshlrev_b32 v3, 6, v13
    v_lshl_add_u32 v3, v14, 3, v3
    v_bfe_u32 v15, v13, 2, 1
    v_lshl_add_u32 v3, v15, 5, v3
    s_lshl_b32 s62, s61, 11
    s_add_u32 s62, s62, s60
    v_add_u32 v3, s62, v3
    s_lshr_b32 s62, s50, 1
    s_lshl_b32 s62, s62, 5
    v_xor_b32 v3, s62, v3
    v_xor_b32 v4, 32, v3
    v_lshrrev_b32 v16, 4, v1
    v_and_b32 v17, 7, v1
    v_xor_b32 v16, v16, v17
    v_and_b32 v17, 15, v1
    v_lshlrev_b32 v5, 7, v17
    v_lshl_add_u32 v5, v16, 4, v5
    v_add_u32 v5, s43, v5
    s_lshl_b32 s62, s61, 6
    v_xor_b32 v5, s62, v5
    v_xor_b32 v6, 64, v5
    v_lshlrev_b32 v15, 1, v15
    v_xor_b32 v14, v15, v14
    v_lshlrev_b32 v14, 4, v14
    v_lshl_add_u32 v13, s50, 4, v13
    """ % BSTR)
    perm(a, 16, 13, 17)
    a("""
    s_mul_i32 s60, s48, 192
    s_lshl_b32 s61, s51, 6
    s_add_u32 s60, s60, s61
    v_mul_u32_u24 v10, 3072, v16
    v_add3_u32 v10, v10, v14, s60
    s_mul_i32 s60, s48, 80
    v_mul_u32_u24 v11, 3840, v16
    v_add3_u32 v11, v11, v14, s60
    v_mov_b32 v20, 0x3f803f80
    v_mov_b32 v21, 0x3f803f80
    v_mov_b32 v22, 0x3f803f80
    v_mov_b32 v23, 0x3f803f80
    s_and_b32 s60, s50, 1
    s_lshr_b32 s61, s50, 1
    s_lshl_b32 s62, s61, 6
    s_add_u32 s7, s62, s59
    s_lshl_b32 s62, s60, 7
    s_add_u32 s101, s7, s62
    s_lshl_b32 s62, s51, 8
    s_add_u32 s101, s101, s62
    s_add_u32 s101, s101, %d
    s_cmp_eq_u32 s61, 1
    s_cselect_b64 s[8:9], -1, 0
    s_lshl_b32 s62, s60, 12
    s_sub_u32 s100, 2048, s62
    s_lshl_b32 s12, s48, 4
    s_cmp_eq_u32 s40, 0
    s_cselect_b32 s12, s12, 0x7ffffff0
    s_cmp_ge_u32 s40, 6
    s_cselect_b32 s60, 6, 0
    s_sub_u32 s60, s40, s60
    s_mul_i32 s60, s60, %d
    v_mul_u32_u24 v16, 96, v1
    v_add_u32 v16, s60, v16
    ds_write_b128 v16, v[20:23] offset:80
    """ % (T_CS + 1536, BSLOT))
    srd(a, 96, 14, SZ_B1)
    a("""
    s_mov_b32 s14, s100
    s_and_b32 s15, s50, 2
    s_cmp_eq_u32 s51, 1
    s_cbranch_scc1 K1_V
    """)
    for _ in gens[0]:
        pass
    a.label("K1_V")
    for _ in gens[1]:
        pass
    gen_fold(a, 0)
    gen_fold(a, 1)
    a.label("K1_END")
    a("s_endpgm")

K2_REG = 20480
K2_LDS = 8 * K2_REG
K2_PRIO = int(os.environ.get("K2_PRIO", "0"))
K2_NF = int(os.environ.get("K2_NF", "4"))
XR, BR = 16, 24


def k2_epi_addr(f):
    for j in range(2):
        if j == 0:
            f("v_lshrrev_b32 v11, 4, v0")
        else:
            f("v_mov_b32 v11, s40")
            f("v_add_u32 v11, 32, v11")
        f("""
        v_mul_u32_u24 v12, 205, v11
        v_lshrrev_b32 v12, 11, v12
        v_mul_u32_u24 v13, 10, v12
        v_sub_u32 v13, v11, v13
        v_lshlrev_b32 v%d, 4, v13
        v_and_b32 v14, 15, v1
        v_mul_u32_u24 v15, 5120, v12
        v_lshl_add_u32 v15, v13, 9, v15
        v_lshl_add_u32 v%d, v14, 4, v15
        v_lshl_add_u32 v14, v12, 4, v14
        v_add_u32 v14, s41, v14
        v_mul_u32_u24 v14, 1280, v14
        v_add_u32 v%d, v14, v%d
        """ % (9 + j, 7 + j, 5 + j, 9 + j))


def k2_xloads(a, vm):
    L = []
    for j in range(2):
        def fx(j=j):
            a("buffer_load_dwordx4 %s, v%d, s[48:51], s42 offen" % (vr(XR + j * 4), 5 + j))
            vm.add("X")

        def fb(j=j):
            a("buffer_load_dwordx4 %s, v%d, s[52:55], s42 offen" % (vr(BR + j * 4), 9 + j))
            vm.add("X")
        L += [fx, fb]
    return L


def k2_h(a):
    vm = Q(a, "vmcnt", 63)
    NS = 4
    if K2_PRIO < 0:
        a("s_setprio %d" % -K2_PRIO)

    def frag(slot, i):
        return vr(112 + slot * 36 + i * 4)

    pend = []

    def add_step(n):
        slot = n % NS
        for kind, i in [("A", 0)] + [("B", c) for c in range(5)] + [("A", m) for m in (1, 2, 3)]:
            if kind == "A":
                def fn(i=i):
                    a("s_add_u32 s60, s44, %d" % (i * 68 * 1024 + n * 1024))
                    a("buffer_load_dwordx4 %s, v2, s[20:23], s60 offen" % frag(slot, i))
            else:
                def fn(i=i):
                    if i == 0 or i == 4:
                        a("s_add_u32 s61, s45, %d" % (n * 5120 + i * 1024))
                    a("buffer_load_dwordx4 %s, v2, s[24:27], s61 offen offset:%d" % (frag(slot, 4 + i), (i & 3) * 1024))
            pend.append(((kind, n, i), n - NS, fn))

    for n in range(12):
        add_step(n)
    done = [-1]

    def issue(k):
        while k > 0 and pend and pend[0][1] <= done[0]:
            tag, _, fn = pend.pop(0)
            fn()
            vm.add(tag)
            k -= 1

    issue(100)
    k2_epi_addr(a)
    xl = k2_xloads(a, vm)
    for n in range(12):
        slot = n % NS
        if n == 1:
            stamp(a, 1, 15)
        for m in range(4):
            for c in range(5):
                d = vr(32 + (m * 5 + c) * 4)
                if c == 0:
                    vm.wait(("A", n, m))
                if m == 0:
                    vm.wait(("B", n, c))
                a("v_mfma_f32_16x16x32_bf16 %s, %s, %s, %s" % (d, frag(slot, 4 + c), frag(slot, m), "0" if n == 0 else d))
                issue(1)
                if n == 9 and m == 2 and xl:
                    xl.pop(0)()
        done[0] = n
    assert not pend and not xl
    a("s_nop 7")
    a("s_nop 1")
    stamp(a, 4, 15)
    a("v_add_u32 v11, s46, v2")
    for i in range(20):
        a("ds_write_b128 v11, %s offset:%d" % (vr(32 + i * 4), i * 1024))


def k2_att(a):
    vm = Q(a, "vmcnt", 63)
    lg = Q(a, "lgkmcnt", 15)
    f = Fill(a, vm, lg)
    PQ = lambda m, s: 32 + (m * 5 + s) * 4
    KF = lambda s, k: 112 + (s * 3 + k) * 4
    G2 = lambda grp, half: 160 + grp * 6 + half * 2
    WOB = [178, 214]
    ZM = lambda s: 198 + 4 * s
    ZC = lambda half: 214 + half * 2
    DB = [[220 + 4 * i for i in range(6)], [16, 20, 24, 28, 244, 248]]
    ACCT = [112 + 4 * i for i in range(16)] + [198 + 4 * i for i in range(4)]
    if K2_PRIO > 0:
        a("s_setprio %d" % K2_PRIO)
    for s in range(4):
        a("buffer_load_dwordx4 %s, v4, s[36:39], s62 offen offset:%d" % (vr(ZM(s)), s * 64))
        vm.add("Z")
    a("buffer_load_dwordx4 v[252:255], v4, s[36:39], s63 offen")
    vm.add("Z")

    def pq_loads(m):
        a("s_add_u32 s60, s43, %d" % (m * 68 * 1024))
        for s in range(4):
            a("buffer_load_dwordx4 %s, v2, s[20:23], s60 offen offset:%d" % (vr(PQ(m, s)), s * 1024))
            vm.add(("PQ", m))
        a("s_add_u32 s60, s44, %d" % (m * 68 * 1024))
        a("buffer_load_dwordx4 %s, v2, s[20:23], s60 offen" % vr(PQ(m, 4)))
        vm.add(("PQ", m))

    def kv_loads(p):
        for s in (2 * p, 2 * p + 1):
            a("s_add_u32 s60, s47, %d" % (s * 4096))
            for k in range(3):
                a("buffer_load_dwordx4 %s, v2, s[36:39], s60 offen offset:%d" % (vr(KF(s, k)), k * 1024))
                vm.add(("KV", p))
            a("buffer_load_dwordx2 %s, v3, s[36:39], s60 offen offset:3072" % vr(G2(s & 1, p) + 2 * p, 2))
            vm.add(("KV", p))
            if s == 2 * p:
                a("buffer_load_dwordx2 %s, v3, s[36:39], s60 offen offset:3584" % vr(G2(2, p) + 2 * p, 2))
                vm.add(("KV", p))

    pq_loads(0)
    kv_loads(0)
    kv_loads(1)
    for m in (1, 2, 3):
        pq_loads(m)
    for c in range(5):
        if c == 0 or c == 4:
            a("s_add_u32 s61, s45, %d" % (c * 1024))
        a("buffer_load_dwordx4 %s, v2, s[24:27], s61 offen offset:%d" % (vr(WOB[0] + c * 4), (c & 3) * 1024))
        vm.add(("WO", 0))
    dma = []
    for s in range(1, 5):
        for c in range(5):
            def fd(s=s, c=c):
                a("s_add_u32 m0, s46, %d" % ((s - 1) * 5120 + c * 1024))
                if s < 4:
                    a("s_add_u32 s61, s45, %d" % (s * 5120 + c * 1024))
                else:
                    a("s_add_u32 s61, s28, %d" % (c * 1024))
                a("buffer_load_dwordx4 v2, s[24:27], s61 offen lds")
                vm.add(("WO", s))
            dma.append(fd)
    while dma and len(vm.q) < 60:
        dma.pop(0)()
    a("""
    v_and_b32 v11, 3, v1
    v_lshrrev_b32 v12, 4, v1
    v_min_u32 v13, 1, v12
    v_cmp_eq_u32 s[64:65], 0, v11
    v_cmp_eq_u32 s[66:67], v13, v11
    v_cmp_eq_u32 s[68:69], 2, v11
    v_add_u32 v13, 2, v13
    v_cmp_eq_u32 s[70:71], v13, v11
    v_or_b32 v13, 1, v12
    v_cmp_eq_u32 s[82:83], v13, v11
    v_cmp_eq_u32 s[84:85], 0, v12
    v_cmp_gt_u32 s[86:87], 2, v12
    """)
    for b in (162, 168, 174, 216):
        a("v_mov_b32 v%d, 0" % b)
        a("v_mov_b32 v%d, 0" % (b + 1))
    k2_epi_addr(a)
    a("v_add_u32 v4, s46, v2")
    vm.wait("Z")
    for s in range(4):
        for h in range(2):
            ms = 64 + 4 * (s & 1) + 2 * h
            for d in range(2):
                r = ZM(s) + 2 * h + d
                a("v_cndmask_b32 v%d, 0, v%d, s[%d:%d]" % (r, r, ms, ms + 1))
    for h in range(2):
        for d in range(2):
            a("v_cndmask_b32 v%d, 0, v%d, s[82:83]" % (214 + 4 * h + d, 252 + 2 * h + d))

    def post(m, p):
        D = DB[p]
        dn = D[5]
        f.group(["s_nop 1"])
        for r in range(4):
            f("v_add_f32 v%d, %s, v%d" % (dn + r, EPS6, dn + r))
        for r in range(4):
            f("v_rcp_f32 v%d, v%d" % (dn + r, dn + r))
        f("v_cndmask_b32 v11, v%d, v%d, s[84:85]" % (dn + 1, dn))
        f("v_cndmask_b32 v12, v%d, v%d, s[84:85]" % (dn + 3, dn + 2))
        f("v_cndmask_b32 v13, v%d, v%d, s[86:87]" % (dn + 3, dn + 1))
        sc = [dn, 11, dn + 2, 12, 13]
        dst = [PQ(m, 2 * p), PQ(m, 2 * p) + 2, PQ(m, 2 * p + 1), PQ(m, 2 * p + 1) + 2, PQ(m, 4) + 2 * p]
        for T in range(5):
            if T == 4:
                f.after(("ck", m))
            for r in range(4):
                f("v_mul_f32 v%d, v%d, v%d" % (D[T] + r, D[T] + r, sc[T]))
            f("v_cvt_pk_bf16_f32 v%d, v%d, v%d" % (dst[T], D[T], D[T] + 1))
            f("v_cvt_pk_bf16_f32 v%d, v%d, v%d" % (dst[T] + 1, D[T] + 2, D[T] + 3))

    f.cur = ("a", 0)
    for m in range(4):
        for p in range(2):
            D = DB[p]
            u0, u1 = 2 * p, 2 * p + 1
            ck = vr(PQ(m, 4))
            ml = [(D[5], ZC(p), PQ(m, 4), 1),
                  (D[1], G2(0, p), PQ(m, 4), 1),
                  (D[3], G2(1, p), PQ(m, 4), 1),
                  (D[4], G2(2, p), PQ(m, 4), 1),
                  (D[5], ZM(u0), PQ(m, u0), 0),
                  (D[0], KF(u0, 0), PQ(m, u0), 1),
                  (D[2], KF(u1, 0), PQ(m, u1), 1),
                  (D[5], ZM(u1), PQ(m, u1), 0),
                  (D[1], KF(u0, 1), PQ(m, u0), 0),
                  (D[3], KF(u1, 1), PQ(m, u1), 0),
                  (D[4], KF(u0, 2), PQ(m, u0), 0),
                  (D[4], KF(u1, 2), PQ(m, u1), 0)]
            vm.wait(("PQ", m))
            if m == 0:
                if p == 0:
                    stamp(a, 1, 15)
            for i, (d, A_, B_, first) in enumerate(ml):
                if i == 1:
                    vm.wait(("KV", p))
                a("v_mfma_f32_16x16x32_bf16 %s, %s, %s, %s" % (vr(d), vr(A_), vr(B_), "0" if first else vr(d)))
                if p == 1 and i == 3:
                    f.cur = ("ck", m)
                if dma and len(vm.q) < 60:
                    dma.pop(0)()
                f.pop(K2_NF)
            f.flush()
            post(m, p)
    assert not dma
    stamp(a, 2, 15)
    xl = k2_xloads(a, vm)
    for s in range(5):
        B0 = WOB[s & 1]
        rd = []
        if s < 4:
            for c in range(5):
                rd.append(("ds_read_b128 %s, v4 offset:%d" % (vr(WOB[(s + 1) & 1] + c * 4), s * 5120 + c * 1024), ("W", s + 1, c)))
        if s == 0:
            vm.wait(("WO", 0))
        if s == 1:
            f.flush()
            a("s_nop 1")
        for m in range(4):
            for c in range(5):
                d = vr(ACCT[m * 5 + c])
                if m == 0 and s > 0:
                    lg.wait(("W", s, c))
                a("v_mfma_f32_16x16x32_bf16 %s, %s, %s, %s" % (d, vr(B0 + c * 4), vr(PQ(m, s)), "0" if s == 0 else d))
                if m >= 1 and rd:
                    if len(rd) == 5:
                        vm.wait(("WO", s + 1))
                    txt, tag = rd.pop(0)
                    a(txt)
                    lg.add(tag)
                if s == 2 and m == 3 and xl:
                    xl.pop(0)()
                f.pop(K2_NF)
    assert not xl
    a("s_nop 7")
    a("s_nop 1")
    stamp(a, 4, 15)
    for i in range(20):
        a("ds_write_b128 v4, %s offset:%d" % (vr(ACCT[i]), i * 1024))
    if K2_PRIO > 0:
        a("s_setprio 0")


def gen_k2(a):
    a.raw(".globl k2_kernel")
    a.raw(".p2align 8")
    a.raw(".type k2_kernel,@function")
    a.label("k2_kernel")
    a("""
    s_cmp_ge_u32 s2, 256
    s_cbranch_scc1 K2_END
    s_load_dwordx2 s[16:17], s[0:1], 80
    s_load_dwordx2 s[4:5], s[0:1], 0
    s_load_dwordx2 s[8:9], s[0:1], 56
    s_load_dwordx2 s[10:11], s[0:1], 64
    v_and_b32 v1, 63, v0
    v_lshrrev_b32 v13, 6, v0
    s_nop 0
    v_readfirstlane_b32 s40, v13
    v_lshlrev_b32 v2, 4, v1
    v_lshlrev_b32 v3, 3, v1
    v_and_b32 v4, 48, v1
    s_and_b32 s41, s2, 7
    s_lshl_b32 s41, s41, 2
    s_bfe_u32 s42, s2, 0x20003
    s_add_u32 s41, s41, s42
    s_mul_i32 s44, s41, %d
    s_lshl_b32 s41, s41, 6
    s_lshr_b32 s43, s2, 5
    s_mul_i32 s42, s43, 160
    s_mul_i32 s45, s43, %d
    s_mul_i32 s46, s40, %d
    s_and_b32 s60, s40, 3
    s_cmp_ge_u32 s40, 4
    s_cbranch_scc1 K2_HSET
    s_lshl_b32 s61, s60, 12
    s_add_u32 s43, s44, s61
    s_add_u32 s43, s43, %d
    s_lshl_b32 s61, s60, 10
    s_add_u32 s44, s44, s61
    s_add_u32 s44, s44, %d
    s_mul_i32 s61, s60, 5120
    s_add_u32 s28, s45, s61
    s_add_u32 s28, s28, %d
    s_mul_i32 s61, s60, 20480
    s_add_u32 s45, s45, s61
    s_add_u32 s45, s45, %d
    s_lshl_b32 s47, s60, 14
    s_lshl_b32 s62, s60, 8
    s_add_u32 s62, s62, %d
    s_lshl_b32 s63, s60, 6
    s_add_u32 s63, s63, %d
    s_branch K2_SET
    """ % (4 * 68 * 1024, 68 * 5120, K2_REG, 48 * 1024, 64 * 1024, 64 * 5120, 48 * 5120, KV_Z, KV_Z + 1024))
    a.label("K2_HSET")
    a("""
    s_mul_i32 s61, s60, 12288
    s_add_u32 s44, s44, s61
    s_mul_i32 s61, s60, %d
    s_add_u32 s45, s45, s61
    s_mov_b32 s43, 0
    s_mov_b32 s47, 0
    s_mov_b32 s28, 0
    s_mov_b32 s62, 0
    s_mov_b32 s63, 0
    """ % (12 * 5120))
    a.label("K2_SET")
    a("s_waitcnt lgkmcnt(0)")
    srd(a, 20, 16, SZ_AP, WS_AP)
    srd(a, 24, 16, SZ_PB, WS_PB)
    srd(a, 36, 16, SZ_KV, WS_KV)
    srd(a, 48, 4, SZ_X)
    srd(a, 52, 8, SZ_B2)
    srd(a, 56, 10, SZ_OUT)
    a.prof_base = 0x100000
    stamp_init(a)
    stamp(a, 0, 15)
    a("s_cmp_ge_u32 s40, 4")
    a("s_cbranch_scc1 K2_H")
    k2_att(a)
    a("s_branch K2_RED")
    a.label("K2_H")
    k2_h(a)
    a.label("K2_RED")
    a("""
    v_add_u32 v11, %d, v7
    v_add_u32 v12, %d, v7
    v_add_u32 v13, %d, v8
    v_add_u32 v14, %d, v8
    s_waitcnt vmcnt(0) lgkmcnt(0)
    s_barrier
    """ % (3 * K2_REG, 6 * K2_REG, 3 * K2_REG, 6 * K2_REG))
    lg = Q(a, "lgkmcnt", 15)
    R = lambda j, w: 32 + (j * 8 + w) * 8
    AD = [[7, 11, 12], [8, 13, 14]]
    for j in range(2):
        if j == 1:
            a("s_mov_b64 exec, 0xffff")
        for w in range(8):
            for h in range(2):
                a("ds_read_b128 %s, v%d offset:%d" % (vr(R(j, w) + h * 4), AD[j][w // 3], (w % 3) * K2_REG + h * 256))
                lg.add((j, w))
    for j in (1, 0):
        T = 160 + j * 16
        for d in range(4):
            a("v_lshlrev_b32 v%d, 16, v%d" % (T + 2 * d, XR + j * 4 + d))
            a("v_and_b32 v%d, 0xffff0000, v%d" % (T + 1 + 2 * d, XR + j * 4 + d))
            a("v_lshlrev_b32 v%d, 16, v%d" % (T + 8 + 2 * d, BR + j * 4 + d))
            a("v_and_b32 v%d, 0xffff0000, v%d" % (T + 9 + 2 * d, BR + j * 4 + d))
        for e in range(8):
            a("v_add_f32 v%d, v%d, v%d" % (T + e, T + e, T + 8 + e))
        if j == 1:
            a("s_mov_b64 exec, -1")
    for j in range(2):
        T = 160 + j * 16
        if j == 1:
            a("s_mov_b64 exec, 0xffff")
        for w in range(0, 8, 2):
            lg.wait((j, w + 1))
            for e in range(8):
                a("v_add_f32 v%d, v%d, v%d" % (R(j, w) + e, R(j, w) + e, R(j, w + 1) + e))
            for e in range(8):
                a("v_add_f32 v%d, v%d, v%d" % (T + e, T + e, R(j, w) + e))
        for d in range(4):
            a("v_cvt_pk_bf16_f32 v%d, v%d, v%d" % (T + 8 + d, T + 2 * d, T + 1 + 2 * d))
        a("buffer_store_dwordx4 %s, v%d, s[56:59], s42 offen" % (vr(T + 8), 5 + j))
    a("s_mov_b64 exec, -1")
    stamp(a, 5, 15)
    a.label("K2_END")
    a("s_endpgm")


def kd(name, vgpr, accum, sgpr=102):
    return """
.amdhsa_kernel %s
  .amdhsa_next_free_vgpr %d
  .amdhsa_next_free_sgpr %d
  .amdhsa_accum_offset %d
  .amdhsa_group_segment_fixed_size 0
  .amdhsa_kernarg_size 88
  .amdhsa_user_sgpr_count 2
  .amdhsa_user_sgpr_kernarg_segment_ptr 1
  .amdhsa_system_sgpr_workgroup_id_x 1
.end_amdhsa_kernel
""" % (name, vgpr, sgpr, accum)


def main():
    global PROF, PROF2
    if len(sys.argv) > 2 and sys.argv[2].startswith("prof"):
        PROF = True
        PROF2 = sys.argv[2] == "prof2"
    a = Asm()
    a.raw("; @launch kernel=k1_kernel grid=(256,1,1) block=(512,1,1) lds=%d" % K1_LDS)
    a.raw("; @launch kernel=k2_kernel grid=(256,1,1) block=(512,1,1) lds=%d" % K2_LDS)
    a.raw('.amdgcn_target "amdgcn-amd-amdhsa--gfx950"')
    a.raw(".text")
    gen_k1(a)
    gen_k2(a)
    a.raw('.section .rodata,"a"')
    a.raw(".p2align 6")
    a.raw(kd("k1_kernel", 256, 256))
    a.raw(".p2align 6")
    a.raw(kd("k2_kernel", 256, 256))
    out = sys.argv[1] if len(sys.argv) > 1 else "cdna_kernels/%s.s" % NAME
    open(out, "w").write(a.text())


if __name__ == "__main__":
    main()
```

```python
import sys, os

NAME = "parallel_sum__linear_attn_block__mixer_channel_mlp__prompt"
ABL = os.environ.get("ABL", "").split(",")

WS_AP = 0
SZ_AP = 128 * 68 * 1024
WS_PB = 0x900000
SZ_PB = 8 * 68 * 5120
WS_KV = 0xC00000
KV_Z = 65536
SZ_KV = 65536 + 1280
WS_SLAB = 0xD00000
SZ_SLAB = 16 * 16 * 8192
WS_PROF = 0x1000000

SZ_X = 2048 * 640 * 2
SZ_WQKV = 640 * 1920 * 2
SZ_WO = 640 * 640 * 2
SZ_W1 = 640 * 1536 * 2
SZ_B1 = 1536 * 2
SZ_W2 = 1536 * 640 * 2
SZ_B2 = 640 * 2
SZ_OUT = 2048 * 640 * 2
OOB = 0x7ffffff0
PROF = False
PROF2 = False


class Asm:
    def __init__(self):
        self.lines = []
        self.prof_base = 0

    def __call__(self, s):
        for ln in s.strip("\n").split("\n"):
            ln = ln.strip()
            if ln and not ("nomfma" in ABL and ln.startswith("v_mfma") and self.prof_base == 0):
                self.lines.append("    " + ln)

    def label(self, l):
        self.lines.append(l + ":")

    def raw(self, s):
        self.lines.append(s)

    def text(self):
        return "\n".join(self.lines) + "\n"


class Q:
    def __init__(self, a, name, cap):
        self.a, self.name, self.cap, self.q = a, name, cap, []

    def add(self, tag):
        self.q.append(tag)

    def wait(self, tag):
        idx = [i for i, t in enumerate(self.q) if t == tag]
        if not idx:
            return
        n = len(self.q) - 1 - idx[-1]
        self.a("s_waitcnt %s(%d)" % (self.name, min(n, self.cap)))
        self.q = self.q[idx[-1] + 1:]

    def drain(self):
        self.a("s_waitcnt %s(0)" % self.name)
        self.q = []


class Fill:
    def __init__(self, a, vm, lg):
        self.a, self.vm, self.lg, self.F = a, vm, lg, []

    def __call__(self, txt):
        for ln in txt.strip("\n").split("\n"):
            ln = ln.strip()
            if ln:
                self.F.append(ln)

    def group(self, lst):
        self.F.append(list(lst))

    def lds(self, txt, tag):
        self.F.append(("lds", txt, tag))

    def vmem(self, txt, tag, pre=()):
        self.F.append(("vmem", txt, tag, list(pre)))

    def lgwait(self, tag):
        self.F.append(("lgwait", tag))

    def vmwait(self, tag):
        self.F.append(("vmwait", tag))

    def call(self, fn):
        self.F.append(("call", fn))

    def sp(self, n):
        self.F.append(("sp", n))

    def after(self, step):
        self.F.append(("after", step))

    cur = 0
    drop = False

    def pop(self, k):
        while k > 0 and self.F:
            it = self.F[0]
            if isinstance(it, tuple) and it[0] == "sp":
                return
            if isinstance(it, tuple) and it[0] == "after":
                if self.cur < it[1]:
                    return
                self.F.pop(0)
                continue
            self.F.pop(0)
            if self.drop:
                pass
            elif isinstance(it, str):
                self.a(it)
            elif isinstance(it, list):
                for x in it:
                    self.a(x)
            elif it[0] == "vmwait":
                self.vm.wait(it[1])
            elif it[0] == "lgwait":
                self.lg.wait(it[1])
            elif it[0] == "lds":
                self.a(it[1])
                self.lg.add(it[2])
            elif it[0] == "vmem":
                for x in it[3]:
                    self.a(x)
                self.a(it[1])
                self.vm.add(it[2])
                for x in (it[4] if len(it) > 4 else ()):
                    self.a(x)
            elif it[0] == "call":
                it[1]()
            k -= 1

    def has_sp(self, n):
        return any(isinstance(it, tuple) and it[0] == "sp" and it[1] == n for it in self.F)

    def flush_to_sp(self, n):
        cnt = 0
        while True:
            it = self.F[0]
            if isinstance(it, tuple) and it[0] == "sp":
                assert it[1] == n, (it, n)
                return cnt
            if isinstance(it, tuple) and it[0] == "after":
                assert self.cur >= it[1], (it, self.cur)
            self.pop(1)
            cnt += 1

    def drop_sp(self, n):
        assert self.F[0] == ("sp", n)
        self.F.pop(0)

    def flush(self):
        while self.F:
            it = self.F[0]
            assert not (isinstance(it, tuple) and it[0] == "sp"), it
            if isinstance(it, tuple) and it[0] == "after":
                assert self.cur >= it[1]
            self.pop(1)


def vr(b, n=4):
    return "v[%d:%d]" % (b, b + n - 1)


def ar(b, n=4):
    return "a[%d:%d]" % (b, b + n - 1)


def srd(a, d, base, size, add=0):
    if add:
        a("s_add_u32 s%d, s%d, 0x%x" % (d, base, add))
        a("s_addc_u32 s%d, s%d, 0" % (d + 1, base + 1))
    else:
        a("s_mov_b32 s%d, s%d" % (d, base))
        a("s_mov_b32 s%d, s%d" % (d + 1, base + 1))
    a("s_mov_b32 s%d, 0x%x" % (d + 2, size))
    a("s_mov_b32 s%d, 0x00020000" % (d + 3))


def stamp_init(a, wsbase=16):
    if not PROF:
        return
    srd(a, 72, wsbase, 0x100000, WS_PROF + a.prof_base)
    a("s_lshl_b32 s76, s2, 3")
    a("s_add_u32 s76, s76, s40")
    a("s_lshl_b32 s76, s76, 9")


def stamp(a, i, vt, lg=None, vm=None):
    if not PROF:
        return
    a("s_memrealtime s[78:79]")
    if os.environ.get("CLK"):
        a("s_memtime s[80:81]")
        a("s_waitcnt lgkmcnt(0)")
        a("v_mov_b32 v%d, s80" % vt)
        a("s_mov_b64 s[80:81], exec")
        a("s_mov_b64 exec, 1")
        a("buffer_store_dword v%d, off, s[72:75], s76 offset:%d" % (vt, 256 + i * 4))
        if vm is not None:
            vm.add("P")
        a("s_mov_b64 exec, s[80:81]")
        a("s_nop 1")
    a("s_waitcnt lgkmcnt(0)")
    if lg is not None:
        lg.q = []
    a("v_mov_b32 v%d, s78" % vt)
    a("s_mov_b64 s[80:81], exec")
    a("s_mov_b64 exec, 1")
    a("buffer_store_dword v%d, off, s[72:75], s76 offset:%d" % (vt, i * 4))
    if vm is not None:
        vm.add("P")
    a("s_mov_b64 exec, s[80:81]")
    a("s_nop 1")


def rnd(o, x, t):
    o("v_cvt_pk_bf16_f32 v%d, v%d, v%d" % (t, x, x))
    o("v_lshlrev_b32 v%d, 16, v%d" % (x, t))


def perm(a, dst, rho, t):
    a("""
    v_and_b32 v%d, 0xffffffe3, v%d
    v_bfe_u32 v%d, v%d, 4, 1
    v_lshl_or_b32 v%d, v%d, 2, v%d
    v_bfe_u32 v%d, v%d, 2, 2
    v_lshl_or_b32 v%d, v%d, 3, v%d
    """ % (dst, rho, t, rho, dst, t, dst, t, rho, dst, t, dst))

VA = 96
VB = 40
V_ONES = 20
V_CS = 24
V_GR = 36
ACC = [[64 + 4 * i for i in range(6)], [88, 92, 56, 60], [64, 68, 72, 76]]
NTP = [3, 2, 2]
BSLOT = 6144
BSTR = 6 * BSLOT
K1_AR = 2 * BSTR
AREG = 5 * 4096
K1_TAB = K1_AR + 4 * AREG
T_CS = 0
T_B1 = 3584
T_ST = 4096
K1_LDS = 163840
R_RAW = 0
R_KVF = 4096
R_FLAG = 10240
R_RP = 12288
BAR2 = int(os.environ.get("BAR2", "1"))
SP1 = int(os.environ.get("SP1", "12" if BAR2 else "11"))
SP2 = int(os.environ.get("SP2", "14"))
SP5 = 22 if BAR2 else 21
SP3 = int(os.environ.get("SP3", "18"))
SP4 = int(os.environ.get("SP4", "24"))
FG = int(os.environ.get("FG", "4"))
BARS = [n for n in range(30) if (n <= 10 or not BAR2 or n % 2 == 0) and n <= SP4]


def nslot(gs):
    return (gs - 4) % 9


def issue_at(g):
    n = g - 4 if g <= 14 else max(g - 7, {15: 10, 16: 11, 17: 11, 18: 12}.get(g, 0))
    while n not in BARS:
        n += 1
    return n

NF1 = int(os.environ.get("NF1", "6"))
NF2 = int(os.environ.get("NF2", "4"))
ROT = int(os.environ.get("ROT", "0"))
L2E = "0x3fb8aa3b"
EPS6 = "0x358637bd"
NEPS6 = "0xb58637bd"


def a_reg(t, s):
    return VA + (t * 20 + s) * 4


def b_reg(sg, c):
    return VB + (sg & 1) * (12 if sg < 20 else 8) + c * 4


def stats_chain(f, s, q, h0, h1, m, v, r, t):
    f("v_mul_f32 v%d, 0x3acccccd, v%d" % (s, s))
    f("v_mul_f32 v%d, 0x3acccccd, v%d" % (q, q))
    f("v_fma_f32 v%d, -v%d, v%d, v%d" % (q, s, s, q))
    f("v_max_f32 v%d, 0, v%d" % (q, q))
    f("v_cvt_pk_bf16_f32 v%d, v%d, v%d" % (t, s, q))
    f("v_lshlrev_b32 v%d, 16, v%d" % (m, t))
    f("v_and_b32 v%d, 0xffff0000, v%d" % (v, t))
    f("v_add_f32 v%d, 0x3727c5ac, v%d" % (v, v))
    rnd(f, v, t)
    f.group(["v_sqrt_f32 v%d, v%d" % (v, v), "s_nop 0"])
    rnd(f, v, t)
    f.group(["v_rcp_f32 v%d, v%d" % (r, v), "s_nop 0"])
    f("v_sub_f32 v%d, v%d, v%d" % (h0, s, m))
    f("v_mul_f32 v%d, v%d, v%d" % (h0, h0, r))
    f("v_mul_f32 v%d, v%d, v%d" % (h1, q, r))
    f("v_mul_f32 v%d, v%d, v%d" % (h1, h1, r))
    f("v_cvt_pk_bf16_f32 v%d, v%d, v%d" % (t, h0, h1))
    f("v_lshlrev_b32 v%d, 16, v%d" % (h0, t))
    f("v_and_b32 v%d, 0xffff0000, v%d" % (h1, t))
    f("v_add_f32 v%d, 0x3727c5ac, v%d" % (h1, h1))
    rnd(f, h1, t)
    f.group(["v_sqrt_f32 v%d, v%d" % (h1, h1), "s_nop 0"])
    rnd(f, h1, t)
    f.group(["v_rcp_f32 v%d, v%d" % (v, h1), "s_nop 0"])
    f("v_mul_f32 v%d, v%d, v%d" % (m, m, r))
    f("v_add_f32 v%d, v%d, v%d" % (h1, m, h0))
    f("v_mul_f32 v%d, v%d, v%d" % (h1, h1, v))
    f("v_mul_f32 v%d, v%d, v%d" % (h0, r, v))


def gelu2(o, lo, hi, e0, e1):
    o("v_fmaak_f32 v%d, v%d, v%d, 0x41b2e92f" % (e0, lo, lo))
    o("v_fmaak_f32 v%d, v%d, v%d, 0x41b2e92f" % (e1, hi, hi))
    o("v_mul_f32 v%d, v%d, v%d" % (e0, e0, lo))
    o("v_mul_f32 v%d, v%d, v%d" % (e1, e1, hi))
    o("v_mul_f32 v%d, 0xbdd2d3e8, v%d" % (e0, e0))
    o("v_mul_f32 v%d, 0xbdd2d3e8, v%d" % (e1, e1))
    o("v_exp_f32 v%d, v%d" % (e0, e0))
    o("v_exp_f32 v%d, v%d" % (e1, e1))
    o("v_add_f32 v%d, 1.0, v%d" % (e0, e0))
    o("v_add_f32 v%d, 1.0, v%d" % (e1, e1))
    o("v_rcp_f32 v%d, v%d" % (e0, e0))
    o("v_rcp_f32 v%d, v%d" % (e1, e1))
    o("v_mul_f32 v%d, v%d, v%d" % (lo, lo, e0))
    o("v_mul_f32 v%d, v%d, v%d" % (hi, hi, e1))


def phi2(o, lo, hi, e0, e1, dlo=None, dhi=None, eps_in=True):
    dlo = lo if dlo is None else dlo
    dhi = hi if dhi is None else dhi
    o("v_mul_f32 v%d, %s, v%d" % (e0, L2E, lo))
    o("v_mul_f32 v%d, %s, v%d" % (e1, L2E, hi))
    o("v_exp_f32_e64 v%d, v%d clamp" % (e0, e0))
    o("v_exp_f32_e64 v%d, v%d clamp" % (e1, e1))
    o("v_max_f32 v%d, %s, v%d" % (dlo, EPS6 if eps_in else "0", lo))
    o("v_max_f32 v%d, %s, v%d" % (dhi, EPS6 if eps_in else "0", hi))
    o("v_add_f32 v%d, v%d, v%d" % (dlo, dlo, e0))
    o("v_add_f32 v%d, v%d, v%d" % (dhi, dhi, e1))
    if not eps_in:
        o("v_add_f32 v%d, %s, v%d" % (dlo, EPS6, dlo))
        o("v_add_f32 v%d, %s, v%d" % (dhi, EPS6, dhi))


def gen_stream(a, st):
    N = "KV"[st]
    vm = Q(a, "vmcnt", 63)
    lg = Q(a, "lgkmcnt", 15)
    fA = Fill(a, vm, lg)
    fB = Fill(a, vm, lg)
    dmaq = []
    ool = []
    fA.drop = fB.drop = "nofill" in ABL

    def dma(gs):
        out = []
        if gs >= 30 or ("nodma" in ABL and gs > 4):
            return out
        def kupd():
            if gs > 0 and ROT:
                a("s_add_u32 s3, s3, 1")
                a("s_cmp_eq_u32 s3, 10")
                a("s_cselect_b32 s3, 0, s3")

        def soff(stride, add=0):
            if ROT:
                a("s_mul_i32 s45, s3, %d" % stride)
                if add:
                    a("s_add_u32 s45, s45, %d" % add)
            else:
                a("s_mov_b32 s45, %d" % ((gs % 10) * stride + add))
        if gs < 10:
            for q in range(2):
                def fa(q=q):
                    if q == 0:
                        kupd()
                    a("s_add_u32 m0, s47, %d" % ((gs % 5) * 4096 + q * 1024))
                    if q == 0:
                        soff(128)
                    else:
                        a("s_add_u32 s45, s45, %d" % (8 * 1280))
                    if "noA" in ABL:
                        return
                    a("buffer_load_dwordx4 v7, s[20:23], s45 offen lds")
                    vm.add(("S", gs))
                out.append((gs, fa))

            def fm():
                a("s_add_u32 m0, s46, %d" % ((gs % 6) * BSLOT))
                soff(64 * 3840)
                if "noB" in ABL:
                    return
                a("s_mov_b64 exec, s[54:55]")
                a("buffer_load_dwordx4 v8, s[24:27], s45 offen lds")
                a("s_mov_b64 exec, -1")
                vm.add(("S", gs))
            out.append((gs, fm))
            if (gs & 1) == st and "noB" not in ABL:
                def fx():
                    a("s_add_u32 m0, s52, %d" % ((gs % 6) * BSLOT))
                    a("s_nop 0")
                    a("buffer_load_dwordx4 v9, s[24:27], s45 offen lds")
                    vm.add(("S", gs))
                out.append((gs, fx))
        else:
            def fb():
                kupd()
                a("s_add_u32 m0, s53, %d" % (nslot(gs) * 4096 - (64 if gs >= 20 and st == 1 else 0)))
                if gs >= 20 and st == 0:
                    soff(64 * 3840)
                    a("buffer_load_dwordx4 v11, s[24:27], s45 offen lds")
                else:
                    soff(64 * 3072)
                    a("buffer_load_dwordx4 v10, s[28:31], s45 offen%s lds" % (" offset:64" if gs >= 20 else ""))
                vm.add(("S", gs))
            out.append((gs, fb))
        return out

    def reads(sg):
        L = []
        gs, ks = sg >> 1, sg & 1
        if sg < 20:
            for t in range(2):
                L.append(("ds_read_b128 %s, v%d offset:%d" % (vr(a_reg(t, sg)), 5 + ks, (gs % 5) * 4096 + t * 2048), ("A", sg)))
        for c in range(NTP[sg // 20]):
            for hh in range(2):
                if sg < 20:
                    txt = "ds_read_b64_tr_b16 %s, v%d offset:%d" % (vr(b_reg(sg, c) + hh * 2, 2), [2, 88][ks], (gs % 6) * BSLOT + hh * 1536 + c * 32)
                else:
                    txt = "ds_read_b64_tr_b16 %s, v%d offset:%d" % (vr(b_reg(sg, c) + hh * 2, 2), [[3, 4], [2, 31]][ks][c], nslot(gs) * 4096 + hh * 1024)
                L.append((txt, ("B", sg, c)))
        return L

    def barrier(n):
        for f in (fA, fB):
            if f.has_sp(n):
                f.flush_to_sp(n)
        last = n if n < SP4 else 29
        while last + 1 < 30 and last + 1 not in BARS:
            last += 1
        while dmaq and dmaq[0][0] <= last:
            dmaq.pop(0)[1]()
        if PROF2:
            stamp(a, 8 + 3 * n, 19, lg, vm)
        vm.wait(("S", last))
        if PROF2:
            stamp(a, 9 + 3 * n, 19, lg, vm)
        if "nobar" not in ABL:
            a("s_barrier")
        if PROF2:
            stamp(a, 10 + 3 * n, 19, lg, vm)
        for f in (fA, fB):
            if f.has_sp(n):
                f.drop_sp(n)

    def seg_cs(f, p):
        if p == 0:
            f.group(["v_and_b32 v18, 15, v1", "s_lshl_b32 s60, s50, 2", "s_add_u32 s60, s60, s59", "v_lshl_add_u32 v18, v18, 4, s60",
                     "s_nop 7", "s_nop 1"])
            for c in range(3):
                f.lds("ds_write_b32 v18, v%d offset:%d" % (V_CS + 4 * c, T_CS + (st * 3 + c) * 256), "CSA")
        else:
            f.group(["v_and_b32 v18, 15, v1", "v_lshl_add_u32 v18, v18, 2, s101"])
            f.lds("ds_write_b32 v18, v%d offset:%d" % (V_CS, (p - 1) * 512), "CSA")

    def seg_epi(f, p):
        kind = "Q" if (p == 2 and st == 0) else "H"
        acc = ACC[p]
        AB = [6, 8]
        CSR, B1R = [80, 32], [84, 36]
        if kind == "H":
            f("v_and_b32 v13, 15, v1")
            f("v_lshl_add_u32 v13, v13, 3, s44")
            for t in range(2):
                f.lds("ds_read_b64 v[%d:%d], v13 offset:%d" % (AB[t], AB[t] + 1, 256 + t * 128), "E")
        else:
            f("v_and_b32 v13, 15, v1")
            f("v_lshl_add_u32 v13, v13, 2, s44")
            for t in range(2):
                f.lds("ds_read_b32 v%d, v13 offset:%d" % (AB[t], t * 64), "E")
                f.lds("ds_read_b32 v%d, v13 offset:%d" % (AB[t] + 1, 128 + t * 64), "E")
        f("v_xor_b32 v17, 64, v5")
        cso = T_CS + 1536 + (p - 1) * 512 + st * 256
        colb = (0 if st == 0 else (32 if p == 1 else 64))
        f.lds("ds_read_b128 %s, v5 offset:%d" % (vr(CSR[0]), cso), "E")
        f.lds("ds_read_b128 %s, v17 offset:%d" % (vr(CSR[1]), cso), "E")
        f.lds("ds_read_b128 %s, v17 offset:%d" % (vr(B1R[1]), cso + 128), "E")
        f.lds("ds_read_b128 v[12:15], v5 offset:%d" % (cso + 128), "E")
        if kind == "H":
            f.lds("ds_read_b128 %s, v5 offset:%d" % (vr(B1R[0]), T_B1 + colb * 4), ("E", 0))
        f.lgwait("E")
        for r in range(4):
            f("v_add_f32 v%d, v%d, v%d" % (CSR[1] + r, CSR[1] + r, B1R[1] + r))
        if kind == "H":
            f.lds("ds_read_b128 %s, v17 offset:%d" % (vr(B1R[1]), T_B1 + colb * 4), ("E", 1))
        for r in range(4):
            f("v_add_f32 v%d, v%d, v%d" % (CSR[0] + r, CSR[0] + r, 12 + r))
        for c in range(2):
            f.lgwait(("E", c))
            for t in range(2):
                b = acc[c * 2 + t]
                al, be = AB[t], AB[t] + 1
                for r in range(4):
                    tmp = 16 + (r & 1)
                    if kind == "H":
                        f("v_fma_f32 v%d, -v%d, v%d, v%d" % (tmp, be, CSR[c] + r, B1R[c] + r))
                        f("v_fma_f32 v%d, v%d, v%d, v%d" % (b + r, b + r, al, tmp))
                    else:
                        f("v_fmaak_f32 v%d, v%d, v%d, %s" % (tmp, be, CSR[c] + r, NEPS6))
                        f("v_fma_f32 v%d, v%d, v%d, -v%d" % (b + r, b + r, al, tmp))
                for h in range(2):
                    (gelu2 if kind == "H" else phi2)(f, b + 2 * h, b + 2 * h + 1, 12 + 2 * h, 13 + 2 * h)
                d = acc[t] + 2 * c
                f("v_cvt_pk_bf16_f32 v%d, v%d, v%d" % (d, b, b + 1))
                f("v_cvt_pk_bf16_f32 v%d, v%d, v%d" % (d + 1, b + 2, b + 3))
                if c == 1:
                    if kind == "H":
                        j = 0 if st == 0 else p
                        pre = ["s_add_u32 s60, s56, %d" % (t * 68 * 1024 + j * 1024)]
                    else:
                        pre = ["s_add_u32 s60, s57, %d" % (t * 68 * 1024)]
                    f.group(["s_mov_b64 exec, s[8:9]", "v_swap_b32 v%d, v%d" % (acc[t], acc[t] + 2),
                             "v_swap_b32 v%d, v%d" % (acc[t] + 1, acc[t] + 3), "s_mov_b64 exec, -1"])
                    f.vmem("buffer_store_dwordx4 %s, v0, s[32:35], s60 offen" % vr(acc[t]), "ST", pre)

    def seg_kv(f):
        acc = ACC[0]
        seg_cs(f, 0)
        f("v_add_u32 v13, s43, v0")
        if st == 0:
            for t in range(2):
                f.lds("ds_write_b128 v13, %s offset:%d" % (vr(acc[4 + t]), R_RAW + t * 1024), "RW")
        f.lds("ds_write_b128 v13, %s offset:%d" % (vr(V_GR), R_RAW + 2048 + st * 1024), "RW")
        f("""
        v_and_b32 v16, 15, v1
        v_lshl_add_u32 v12, v16, 4, s59
        v_bfe_u32 v17, v1, 4, 1
        v_lshlrev_b32 v17, 10, v17
        v_bfe_u32 v18, v1, 2, 2
        v_lshl_add_u32 v17, v18, 8, v17
        v_and_b32 v18, 3, v1
        v_lshl_add_u32 v17, v18, 2, v17
        v_add_u32 v14, s43, v17
        v_lshl_add_u32 v15, v16, 4, v14
        v_lshrrev_b32 v5, 4, v1
        v_lshl_add_u32 v5, v5, 4, s7
        """)
        if st == 1:
            f("""
            v_cmp_le_u32 s[84:85], 8, v16
            v_lshrrev_b32 v17, 4, v1
            v_lshlrev_b32 v9, 6, v17
            v_bfe_u32 v17, v1, 2, 1
            v_lshl_add_u32 v9, v17, 8, v9
            v_lshl_add_u32 v9, v18, 1, v9
            """)
            f.group(["s_and_b32 s60, s48, 1", "s_lshl_b32 s60, s60, 9", "s_bfe_u32 s61, s48, 0x10001", "s_lshl_b32 s61, s61, 3",
                     "s_add_u32 s60, s60, s61", "v_add_u32 v9, s60, v9"])
            f("v_mov_b32 v17, 0x%x" % OOB)
            f("v_cndmask_b32 v9, v17, v9, s[84:85]")
        f.lgwait("RW")
        f.sp(SP1)
        f.lds("ds_read_b32 v32, v14 offset:%d" % (R_RAW + 128), "SR")
        f.lds("ds_read_b32 v33, v15 offset:%d" % (R_RAW + 2048), "SR")
        CQ = [(28, 34), (36, 38), (12, 14)]
        f.lds("ds_read_b64 v[28:29], v12 offset:%d" % (T_CS + st * 3 * 256), "CR")
        f.lds("ds_read_b64 v[34:35], v12 offset:%d" % (T_CS + st * 3 * 256 + 8), "CR")
        for c in range(1, 3):
            f.lds("ds_read_b128 %s, v12 offset:%d" % (vr(CQ[c][0]), T_CS + (st * 3 + c) * 256), "CR")
        if st == 1:
            seg_rp_load(f)
        f.lgwait("CR")
        for c in range(3):
            f("v_add_f32 v%d, v%d, v%d" % (CQ[c][0], CQ[c][0], CQ[c][0] + 1))
            f("v_add_f32 v%d, v%d, v%d" % (CQ[c][1], CQ[c][1], CQ[c][1] + 1))
        for c in range(3):
            f("v_add_f32 v%d, v%d, v%d" % (6 + c, CQ[c][0], CQ[c][1]))
        f("""
        v_and_b32 v16, 31, v1
        v_lshl_add_u32 v14, v16, 2, s44
        v_lshl_add_u32 v15, v16, 3, s44
        v_lshrrev_b32 v16, 4, v1
        v_lshl_add_u32 v16, v16, 4, s44
        """)
        stats_chain(f, 32, 33, 34, 35, 36, 37, 38, 39)
        f.lds("ds_write_b32 v14, v38", "SW")
        f.lds("ds_write_b32 v14, v36 offset:128", "SW")
        f.lds("ds_write_b64 v15, v[34:35] offset:256", "SW")
        f.lgwait("SW")
        for t in range(2):
            f.lds("ds_read_b128 v[32:35], v16 offset:%d" % (t * 64), ("AB", t))
            f.lds("ds_read_b128 v[36:39], v16 offset:%d" % (128 + t * 64), ("AB", t))
            f.lgwait(("AB", t))
            for c in range(3):
                b = acc[c * 2 + t]
                for r in range(4):
                    tmp = 17 + (r & 1)
                    if st == 0:
                        f("v_fmaak_f32 v%d, v%d, v%d, %s" % (tmp, 36 + r, 6 + c, NEPS6))
                    else:
                        f("v_mul_f32 v%d, v%d, v%d" % (tmp, 36 + r, 6 + c))
                    f("v_fma_f32 v%d, v%d, v%d, -v%d" % (b + r, b + r, 32 + r, tmp))
                if st == 0:
                    for h in range(2):
                        phi2(f, b + 2 * h, b + 2 * h + 1, 12 + 2 * h, 13 + 2 * h)
                elif c == 2:
                    for h in range(2):
                        phi2(f, b + 2 * h, b + 2 * h + 1, 12, 13, 14, 15, eps_in=False)
                        f("v_cvt_pk_bf16_f32 v%d, v14, v15" % (17 + h))
                    for h in range(2):
                        pre = ["s_add_u32 s60, s58, %d" % (t * 68 * 1024)] if h == 0 else []
                        f.vmem("buffer_store_short v%d, v9, s[32:35], s60 offen offset:%d" % (17 + h, h * 32), "ST", pre)
                        f.vmem("buffer_store_short_d16_hi v%d, v9, s[32:35], s60 offen offset:%d" % (17 + h, h * 32 + 16), "ST")
                d = acc[c * 2] + 2 * t
                f("v_cvt_pk_bf16_f32 v%d, v%d, v%d" % (d, b, b + 1))
                f("v_cvt_pk_bf16_f32 v%d, v%d, v%d" % (d + 1, b + 2, b + 3))
                if st == 1 and c == 2:
                    f("v_cndmask_b32 v%d, v%d, v%d, s[84:85]" % (d, d, V_ONES))
                    f("v_cndmask_b32 v%d, v%d, v%d, s[84:85]" % (d + 1, d + 1, V_ONES))
        f("v_add_u32 v13, s43, v0")
        for c in range(3):
            f.lds("ds_write_b128 v13, %s offset:%d" % (vr(acc[c * 2]), R_KVF + (st * 3 + c) * 1024), "FW")
        f("v_add_u32 v12, s86, v0")
        f("v_add_u32 v14, s87, v0")
        f.lgwait("FW")
        f.sp(SP2)
        KF = [64, 68, 72, 76]
        VF = [80, 84, 32, 36]
        for rg in range(4):
            f.lds("ds_read_b128 %s, v12 offset:%d" % (vr(KF[rg]), rg * AREG), ("J", rg))
            f.lds("ds_read_b128 %s, v14 offset:%d" % (vr(VF[rg]), rg * AREG), ("J", rg))
        for rg in range(4):
            f.lgwait(("J", rg))
            f("v_mfma_f32_16x16x32_bf16 v[12:15], %s, %s, %s" % (vr(KF[rg]), vr(VF[rg]), "0" if rg == 0 else "v[12:15]"))
        f.group(["s_nop 7", "s_nop 3"])
        f.vmem("buffer_store_dwordx4 v[12:15], v0, s[92:95], s42 offen sc1", "SL")
        if st == 1:
            seg_rp_store(f)
        if st == 0:
            f("v_mov_b32 v28, 1")
            f("v_mov_b32 v29, s43")
        f.after(2 * SP3 - 2)
        f.vmwait("SL")
        f.sp(SP3)
        if st == 0:
            f.vmem("buffer_atomic_add v28, off, s[36:39], s12 sc0 sc1", "AT", ["s_mov_b64 exec, 1"])
            f.F[-1] = f.F[-1] + (["s_mov_b64 exec, -1"],)
            f.after(2 * SP4 - 3)
            f.vmwait("AT")
            f.group(["s_mov_b64 exec, 1"])
            f.F[-1] = ("lds", "s_mov_b64 exec, 1\nds_write_b32 v29, v28 offset:%d\ns_mov_b64 exec, -1" % R_FLAG, "FL")
            f.lgwait("FL")
        f.sp(SP4)
        f("v_mov_b32 v29, %d" % (K1_AR + R_FLAG))
        f.lds("ds_read_b32 v28, v29", "FR")
        f.lgwait("FR")
        f.group(["s_nop 0", "v_readfirstlane_b32 s41, v28", "s_nop 3"])
        for j in range(16 // FG):
            f.after(max(41 + (FG * (j + 1) - 1) // 2, 2 * SP4 + j))

            def fl(j=j):
                assert not dmaq and issued[0] == 29 and not any(isinstance(t, tuple) and t[0] == "S" for t in vm.q)
                a("s_cmp_eq_u32 s41, 15")
                a("s_cbranch_scc1 K1_%s_FL%d" % (N, j))
                a.label("K1_%s_FR%d" % (N, j))
                o = ["K1_%s_FL%d:" % (N, j)]
                for rb in range(FG * j, FG * (j + 1)):
                    if rb % 4 == 0 or rb == FG * j:
                        o.append("s_add_u32 s62, s77, %d" % ((rb >> 2) * 4096))
                    o.append("buffer_load_dwordx4 %s, v0, s[92:95], s62 offen offset:%d sc1" % (vr(a_reg(rb & 1, rb >> 1)), (rb & 3) * 1024))
                o.append("s_branch K1_%s_FR%d" % (N, j))
                ool.extend(o)
            f.call(fl)

    def seg_rp_load(f):
        f("""
        v_lshrrev_b32 v16, 1, v1
        v_mul_u32_u24 v17, 1280, v16
        v_and_b32 v18, 1, v1
        v_lshl_add_u32 v17, v18, 4, v17
        """)
        for j in range(3):
            pre = ["s_lshl_b32 s60, s2, 2",
                   "s_add_u32 s60, s60, s50",
                   "s_add_u32 s60, s60, %d" % (1024 if j == 1 else 0),
                   "s_mul_i32 s61, s60, 1639",
                   "s_lshr_b32 s61, s61, 16",
                   "s_mul_i32 s62, s61, 40",
                   "s_sub_u32 s62, s60, s62",
                   "s_mul_i32 s63, s62, 205",
                   "s_lshr_b32 s63, s63, 10",
                   "s_mul_i32 s45, s63, %d" % (68 * 5 - 5),
                   "s_add_u32 s45, s45, s62",
                   "s_mul_i32 s63, s61, 5",
                   "s_add_u32 s45, s45, s63",
                   "s_add_u32 s45, s45, %d" % (240 if j == 2 else 0),
                   "s_lshl_b32 s45, s45, 10",
                   "s_cmp_lt_u32 s60, %d" % (800 if j == 2 else 1920),
                   "s_cselect_b32 s%d, s45, 0x%x" % (96 + j, OOB),
                   "s_lshl_b32 s62, s62, 5"]
            f.group(pre)
            if j < 2:
                f.vmem("buffer_load_dwordx4 v17, s[64:67], s62 offen lds", "RP",
                       ["s_mul_i32 s61, s61, %d" % (32 * 1280), "s_add_u32 s62, s62, s61", "s_add_u32 m0, s43, %d" % (R_RP + j * 1024), "s_nop 0"])
            else:
                f.group(["s_mul_i32 s45, s61, 40",
                         "s_mul_i32 s60, s61, 160",
                         "s_sub_u32 s60, s60, %d" % (16 * 160 - 32),
                         "s_cmp_lt_u32 s61, 16",
                         "s_cselect_b32 s63, 8, 40",
                         "s_cselect_b32 s61, s45, s60",
                         "s_mul_i32 s61, s61, 1280",
                         "s_add_u32 s62, s62, s61"])
                f("""
                v_lshrrev_b32 v17, 3, v16
                v_mul_u32_u24 v17, s63, v17
                v_and_b32 v16, 7, v16
                v_add_u32 v17, v17, v16
                v_mul_u32_u24 v17, 1280, v17
                v_lshl_add_u32 v17, v18, 4, v17
                """)
                f.vmem("buffer_load_dwordx4 v17, s[88:91], s62 offen lds", "RP", ["s_add_u32 m0, s43, %d" % (R_RP + j * 1024), "s_nop 0"])

    def seg_rp_store(f):
        f("""
        v_lshrrev_b32 v16, 2, v1
        v_lshlrev_b32 v16, 5, v16
        v_and_b32 v17, 3, v1
        v_lshl_add_u32 v16, v17, 3, v16
        v_add_u32 v16, s43, v16
        """)
        f.vmwait("RP")
        for j in range(3):
            for hh in range(2):
                f.lds("ds_read_b64_tr_b16 %s, v16 offset:%d" % (vr(64 + j * 4 + hh * 2, 2), R_RP + j * 1024 + hh * 512), ("RT", j))
        for j in range(3):
            f.lgwait(("RT", j))
            f.vmem("buffer_store_dwordx4 %s, v0, s[68:71], s%d offen" % (vr(64 + j * 4), 96 + j), "RS")

    for _w in range(int(os.environ.get("WARM", "1")) if "warm" in ABL else 0):
        for gs in range(10):
            for _, fn in dma(gs):
                fn()
        a("s_waitcnt vmcnt(0)")
        a("s_barrier")
        vm.q = []
    for gs in range(2):
        for _, fn in dma(gs):
            fn()
    yield
    issued = [3]
    for gs in range(2, 4):
        dmaq += dma(gs)

    def issue(n):
        while issued[0] < 29 and issue_at(issued[0] + 1) <= n:
            issued[0] += 1
            dmaq.extend(dma(issued[0]))
    if st == 0:
        fA("""
        v_lshl_add_u32 v13, s50, 6, v1
        v_lshlrev_b32 v14, 1, v13
        s_mul_i32 s60, s48, 192
        """)
        fA.vmem("buffer_load_ushort v15, v14, s[96:99], s60 offen", "B1")
        fA("""
        v_min_u32 v13, 127, v13
        v_lshl_add_u32 v14, v13, 2, s59
        """)
        fA.after(8)
        fA.vmwait("B1")
        fA("v_lshlrev_b32 v15, 16, v15")
        fA.lds("ds_write_b32 v14, v15 offset:%d" % T_B1, "B1W")
    a("s_waitcnt lgkmcnt(0)")
    barrier(0)
    stamp(a, 1, 19, lg, vm)
    issue(0)
    for txt, tag in reads(0):
        a(txt)
        lg.add(tag)
    for sg in range(60):
        p, s = sg // 20, sg % 20
        NT = NTP[p]
        fA.cur = fB.cur = sg
        if p == 0:
            lg.wait(("A", sg))
        if (sg & 1) and sg < 59 and (sg + 1) // 2 in BARS:
            n = (sg + 1) // 2
            barrier(n)
            issue(n)
        if sg == 19:
            a("v_add_u32 v2, s14, v3")
            a("v_add_u32 v31, s14, v4")
        dsq = reads(sg + 1) if sg < 59 and "nords" not in ABL else []
        ml = []
        for c in range(NT):
            for t in range(2):
                ml.append((c, t))
        if p == 0:
            ml.append(("G", st))
        nds = (len(dsq) + len(ml) - 1) // len(ml)
        for i, (c, t) in enumerate(ml):
            A_ = vr(a_reg(t, s))
            if c == "G":
                a("v_mfma_f32_16x16x32_bf16 %s, %s, %s, %s" % (vr(V_GR), A_, A_, "0" if s == 0 else vr(V_GR)))
            else:
                if t == 0:
                    lg.wait(("B", sg, c))
                d = vr(ACC[p][c * 2 + t])
                B_ = vr(b_reg(sg, c))
                if p == 0:
                    a("v_mfma_f32_16x16x32_bf16 %s, %s, %s, %s" % (d, A_, B_, "0" if s == 0 else d))
                else:
                    a("v_mfma_f32_16x16x32_bf16 %s, %s, %s, %s" % (d, B_, A_, "0" if s == 0 else d))
            k = (len(dsq) + (len(ml) - i) - 1) // (len(ml) - i)
            for _ in range(k):
                if dsq:
                    txt, tag = dsq.pop(0)
                    a(txt)
                    lg.add(tag)
            if dmaq:
                dmaq.pop(0)[1]()
            nf = 2 if p == 0 else (NF1 if p == 1 else NF2)
            n0 = len(fB.F)
            fB.pop(nf)
            used = n0 - len(fB.F)
            fA.pop(max(nf - used, 2 if p == 2 else 0))
        assert not dsq
        lbl = "K1_%s_CS%d" % (N, sg)
        if "nocs" in ABL:
            pass
        elif "csfake" in ABL:
            for c in range(NT if p == 0 else 1):
                d = vr(V_CS + 4 * c)
                if s % (4 if p == 0 else 2) == 0:
                    a("v_mfma_f32_16x16x32_bf16 %s, %s, %s, %s" % (d, vr(V_ONES), vr(b_reg(sg, c)), "0" if s == 0 else d))
        elif s & 1:
            pass
        elif p == 0:
            a("s_cmp_lg_u32 s15, %d" % (s & 2))
            a("s_cbranch_scc1 %s" % lbl)
            for c in range(NT):
                d = vr(V_CS + 4 * c)
                a("v_mfma_f32_16x16x32_bf16 %s, %s, %s, %s" % (d, vr(V_ONES), vr(b_reg(sg, c)), "0" if s < 4 else d))
            a.label(lbl)
        else:
            d = vr(V_CS)
            a("v_mfma_f32_16x16x32_bf16 %s, %s, %s, %s" % (d, vr(V_ONES), vr(b_reg(sg, 0)), "0" if s == 0 else d))
        if s == 0 and p > 0:
            assert not any(isinstance(it, tuple) and it[0] == "lds" and it[2] == "CSA" for it in fA.F + fB.F)
        if s == 19:
            stamp(a, 2 + p, 19, lg, vm)
            if p == 0:
                fA.flush()
                seg_kv(fA)
            elif p == 1:
                assert not any(isinstance(it, tuple) and ((it[0] == "lds" and it[2] not in ("FL", "FR")) or (it[0] == "vmem" and it[2] != "AT")) for it in fA.F), [it for it in fA.F if isinstance(it, tuple)][:5]
                seg_cs(fB, 1)
                fB.lgwait("CSA")
                fB.sp(SP5)
                seg_epi(fB, 1)
    fA.cur = fB.cur = 60
    fC = Fill(a, vm, lg)
    seg_cs(fC, 2)
    fC.flush()
    fA.flush()
    fB.flush()
    lg.wait("CSA")
    a("s_barrier")
    seg_epi(fC, 2)
    fC.flush()
    stamp(a, 5, 19, lg, vm)
    a("s_cmp_lg_u32 s41, 15")
    a("s_cbranch_scc1 K1_END")
    a("s_branch K1_FOLD_%d" % st)
    for x in ool:
        if x.endswith(":"):
            a.label(x[:-1])
        else:
            a(x)
    return_vm[st] = vm


return_vm = {}


def gen_fold(a, st):
    vm = return_vm[st]
    a.label("K1_FOLD_%d" % st)
    a("""
    v_and_b32 v2, 15, v1
    v_lshrrev_b32 v3, 4, v1
    s_lshl_b32 s60, s82, 4
    v_lshl_add_u32 v4, v3, 2, s60
    s_lshl_b32 s60, s83, 4
    v_add_u32 v5, s60, v2
    v_cmp_le_u32 vcc, 20, v4
    v_cmp_le_u32 s[60:61], 20, v5
    s_xnor_b64 s[84:85], vcc, s[60:61]
    v_cmp_gt_u32 vcc, 40, v4
    s_and_b64 s[84:85], s[84:85], vcc
    v_cmp_gt_u32 s[86:87], 40, v5
    s_and_b64 s[84:85], s[84:85], s[86:87]
    s_and_b32 s62, s48, 1
    s_lshl_b32 s63, s62, 3
    s_cmp_eq_u32 s83, 2
    s_cselect_b32 s63, s63, 0
    v_xor_b32 v6, s63, v2
    s_lshl_b32 s63, s62, 1
    s_lshl_b32 s60, s83, 10
    s_lshl_b32 s61, s82, 3
    s_add_u32 s60, s60, s61
    s_lshl_b32 s61, s83, 9
    s_add_u32 s61, s61, 2560
    s_cmp_eq_u32 s82, 2
    s_cselect_b32 s63, s63, 0
    s_cselect_b32 s45, 3, 4
    s_cselect_b32 s60, s61, s60
    v_xor_b32 v7, s63, v3
    v_lshl_add_u32 v6, v7, 4, v6
    v_lshlrev_b32 v6, s45, v6
    s_lshl_b32 s61, s48, 12
    s_add_u32 s60, s60, s61
    s_lshl_b32 s63, s62, 12
    s_add_u32 s61, s82, s83
    s_cmp_eq_u32 s61, 4
    s_cselect_b32 s61, s63, 0
    s_cselect_b64 s[86:87], s[86:87], -1
    s_sub_u32 s60, s60, s61
    v_mov_b32 v8, 0x%x
    v_cndmask_b32 v6, v8, v6, s[86:87]
    """ % OOB)
    a("""
    s_lshl_b32 s61, s48, 6
    s_lshl_b32 s63, s82, 3
    s_add_u32 s61, s61, s63
    s_lshr_b32 s63, s48, 2
    s_lshl_b32 s63, s63, 6
    s_add_u32 s63, s63, 1024
    s_lshl_b32 s45, s62, 5
    s_add_u32 s63, s63, s45
    s_bfe_u32 s45, s48, 0x10001
    s_lshl_b32 s45, s45, 3
    s_add_u32 s63, s63, s45
    s_cmp_eq_u32 s82, 2
    s_cselect_b32 s61, s63, s61
    s_add_u32 s61, s61, %d
    v_lshl_add_u32 v7, v3, 4, s61
    v_cmp_eq_u32 s[86:87], 40, v5
    s_and_b64 s[86:87], s[86:87], vcc
    v_cndmask_b32 v7, v8, v7, s[86:87]
    """ % KV_Z)
    srd(a, 24, 16, SZ_KV, WS_KV)
    a("s_waitcnt vmcnt(0)")
    R = [a_reg(rb & 1, rb >> 1) for rb in range(16)]
    for stp in (8, 4, 2, 1):
        for rb in range(stp):
            for e in range(4):
                a("v_add_f32 v%d, v%d, v%d" % (R[rb] + e, R[rb] + e, R[rb + stp] + e))
    a("""
    v_cvt_pk_bf16_f32 v10, v96, v97
    v_cvt_pk_bf16_f32 v11, v98, v99
    v_cndmask_b32 v12, 0, v10, s[84:85]
    v_cndmask_b32 v13, 0, v11, s[84:85]
    buffer_store_dwordx2 v[12:13], v6, s[24:27], s60 offen
    buffer_store_dwordx2 v[10:11], v7, s[24:27], 0 offen
    """)
    stamp(a, 6, 19)
    a("s_branch K1_END")


def gen_k1(a):
    a.raw(".globl k1_kernel")
    a.raw(".p2align 8")
    a.raw(".type k1_kernel,@function")
    a.label("k1_kernel")
    a("""
    s_cmp_ge_u32 s2, 256
    s_cbranch_scc1 K1_END
    s_load_dwordx4 s[4:7], s[0:1], 0
    s_load_dwordx2 s[8:9], s[0:1], 16
    s_load_dwordx4 s[12:15], s[0:1], 32
    s_load_dwordx2 s[18:19], s[0:1], 48
    s_load_dwordx4 s[64:67], s[0:1], 72
    """)
    if PROF:
        a("s_memrealtime s[84:85]")
    a("""
    v_and_b32 v1, 63, v0
    v_lshrrev_b32 v13, 6, v0
    s_nop 0
    v_readfirstlane_b32 s40, v13
    v_lshlrev_b32 v0, 4, v1
    """)
    a("""
    s_and_b32 s60, s2, 3
    s_lshl_b32 s48, s60, 2
    s_bfe_u32 s60, s2, 0x20003
    s_add_u32 s48, s48, s60
    s_bfe_u32 s60, s2, 0x10002
    s_lshl_b32 s49, s60, 3
    s_lshr_b32 s60, s2, 5
    s_add_u32 s49, s49, s60
    s_bfe_u32 s61, s2, 0x20003
    s_lshl_b32 s61, s61, 1
    s_add_u32 s61, s61, s60
    s_mul_i32 s61, s61, 5
    s_lshr_b32 s3, s61, 2
    s_sub_u32 s61, s3, 10
    s_cmp_ge_u32 s3, 10
    s_cselect_b32 s3, s61, s3
    s_and_b32 s50, s40, 3
    s_lshr_b32 s51, s40, 2
    s_lshl_b32 s60, s49, 7
    s_lshl_b32 s61, s40, 4
    s_add_u32 s60, s60, s61
    v_lshrrev_b32 v13, 3, v1
    v_and_b32 v14, 7, v1
    v_xor_b32 v15, v14, v13
    v_add_u32 v13, s60, v13
    v_mul_u32_u24 v7, 1280, v13
    v_lshl_add_u32 v7, v15, 4, v7
    s_lshr_b32 s60, s40, 1
    s_mul_i32 s47, s60, %d
    s_and_b32 s60, s40, 1
    s_lshl_b32 s60, s60, 11
    s_add_u32 s47, s47, s60
    s_add_u32 s47, s47, %d
    """ % (AREG, K1_AR))
    a("""
    s_cmp_ge_u32 s40, 6
    s_cselect_b32 s61, 6, 0
    s_cselect_b32 s62, 1, 0
    s_sub_u32 s61, s40, s61
    s_lshl_b32 s46, s61, 10
    s_mul_i32 s63, s62, %d
    s_add_u32 s46, s46, s63
    s_lshl_b32 s52, s50, 10
    s_add_u32 s52, s52, %d
    s_mul_i32 s45, s48, 80
    s_mul_i32 s60, s62, 1280
    s_add_u32 s60, s60, s45
    s_add_u32 s60, s60, 1280
    s_add_u32 s63, s45, 2560
    s_sub_u32 s58, s45, 16
    """ % (BSTR, BSTR + 2048))

    def bvoff(dst, sj, jadd, scol, mask):
        a("""
        v_lshl_add_u32 v13, %s, 6, v1
        v_add_u32 v13, %d, v13
        v_mul_u32_u24 v14, 10923, v13
        v_lshrrev_b32 v14, 16, v14
        v_mul_u32_u24 v15, 6, v14
        v_sub_u32 v15, v13, v15
        v_cmp_eq_u32 vcc, 5, v15
        v_mov_b32 v16, %s
        v_mov_b32 v17, s58
        v_cndmask_b32 v16, v16, v17, vcc
        v_lshl_add_u32 v15, v15, 4, v16
        """ % (sj, jadd, scol))
        perm(a, dst, 14, 16)
        a("v_mul_u32_u24 v%d, 3840, v%d" % (dst, dst))
        a("v_add_u32 v%d, v%d, v15" % (dst, dst))
        if mask:
            a("s_not_b64 s[54:55], vcc")
            a("s_cmp_eq_u32 s62, 1")
            a("s_cselect_b64 s[54:55], -1, s[54:55]")
    bvoff(8, "s61", 0, "s60", True)
    bvoff(9, "s50", 128, "s63", False)
    a("s_waitcnt lgkmcnt(0)")
    srd(a, 20, 4, SZ_X)
    srd(a, 24, 6, SZ_WQKV)
    a("""
    s_mov_b64 s[10:11], s[64:65]
    s_mov_b64 s[16:17], s[66:67]
    s_cmp_eq_u32 s51, 1
    s_cbranch_scc1 K1_V_PRO
    """)
    gens = [gen_stream(a, 0), gen_stream(a, 1)]
    next(gens[0])
    a("s_branch K1_SETUP")
    a.label("K1_V_PRO")
    next(gens[1])
    a.label("K1_SETUP")
    a.prof_base = 0
    stamp_init(a)
    stamp(a, 0, 19)
    if PROF:
        a("v_mov_b32 v19, s84")
        a("s_mov_b64 exec, 1")
        a("buffer_store_dword v19, off, s[72:75], s76 offset:28")
        a("s_mov_b64 exec, -1")
    srd(a, 28, 12, SZ_W1)
    srd(a, 32, 16, SZ_AP, WS_AP)
    srd(a, 36, 10, 256)
    srd(a, 64, 18, SZ_W2)
    srd(a, 68, 16, SZ_PB, WS_PB)
    srd(a, 88, 8, SZ_WO)
    srd(a, 92, 16, SZ_SLAB, WS_SLAB)
    jobs = [(0, 0), (0, 1), (1, 0), (1, 1), (1, 2), (2, 1), (2, 2), (0, 2)]
    jt = sum((ja | (jb << 2)) << (4 * w) for w, (ja, jb) in enumerate(jobs))
    a("""
    s_mov_b32 s59, %d
    s_mul_i32 s43, s50, %d
    s_add_u32 s43, s43, %d
    s_lshl_b32 s44, s40, 9
    s_add_u32 s44, s44, %d
    s_lshl_b32 s63, s48, 3
    s_add_u32 s63, s63, s40
    s_lshl_b32 s63, s63, 14
    s_lshl_b32 s42, s49, 10
    s_add_u32 s42, s42, s63
    s_mov_b32 s41, 0
    s_lshl_b32 s60, s40, 2
    s_lshr_b32 s60, 0x%x, s60
    s_and_b32 s82, s60, 3
    s_bfe_u32 s83, s60, 0x20002
    s_lshl_b32 s86, s82, 10
    s_add_u32 s86, s86, %d
    s_lshl_b32 s87, s83, 10
    s_add_u32 s87, s87, %d
    s_lshl_b32 s60, s49, 3
    s_lshl_b32 s61, s50, 1
    s_add_u32 s60, s60, s61
    s_mul_i32 s60, s60, %d
    s_mul_i32 s61, s48, 3072
    s_add_u32 s56, s60, s61
    s_lshl_b32 s61, s48, 10
    s_add_u32 s57, s60, s61
    s_add_u32 s57, s57, %d
    s_lshr_b32 s61, s48, 2
    s_lshl_b32 s61, s61, 10
    s_add_u32 s58, s60, s61
    s_add_u32 s58, s58, %d
    s_mul_i32 s53, s51, %d
    s_lshl_b32 s60, s50, 10
    s_add_u32 s53, s53, s60
    """ % (K1_TAB, AREG, K1_AR, K1_TAB + T_ST, jt, K1_AR + R_KVF, K1_AR + R_KVF + 3072, 68 * 1024, 48 * 1024, 64 * 1024, BSTR))
    a("s_mov_b32 s77, s63")
    a("""
    s_mul_i32 s60, s51, %d
    v_lshrrev_b32 v13, 2, v1
    v_and_b32 v14, 3, v1
    v_mul_u32_u24 v2, 96, v13
    v_lshl_add_u32 v2, v14, 3, v2
    s_and_b32 s61, s50, 1
    s_mul_i32 s62, s61, 3072
    s_add_u32 s62, s62, s60
    s_xor_b32 s63, s61, 1
    s_mul_i32 s63, s63, 3072
    s_add_u32 s63, s63, s60
    v_add_u32 v88, s63, v2
    v_add_u32 v2, s62, v2
    v_lshlrev_b32 v3, 6, v13
    v_lshl_add_u32 v3, v14, 3, v3
    v_bfe_u32 v15, v13, 2, 1
    v_lshl_add_u32 v3, v15, 5, v3
    s_lshl_b32 s62, s61, 11
    s_add_u32 s62, s62, s60
    v_add_u32 v3, s62, v3
    s_lshr_b32 s62, s50, 1
    s_lshl_b32 s62, s62, 5
    v_xor_b32 v3, s62, v3
    v_xor_b32 v4, 32, v3
    v_lshrrev_b32 v16, 4, v1
    v_and_b32 v17, 7, v1
    v_xor_b32 v16, v16, v17
    v_and_b32 v17, 15, v1
    v_lshlrev_b32 v5, 7, v17
    v_lshl_add_u32 v5, v16, 4, v5
    v_add_u32 v5, s43, v5
    s_lshl_b32 s62, s61, 6
    v_xor_b32 v5, s62, v5
    v_xor_b32 v6, 64, v5
    v_lshlrev_b32 v15, 1, v15
    v_xor_b32 v14, v15, v14
    v_lshlrev_b32 v14, 4, v14
    v_lshl_add_u32 v13, s50, 4, v13
    """ % BSTR)
    perm(a, 16, 13, 17)
    a("""
    s_mul_i32 s60, s48, 192
    s_lshl_b32 s61, s51, 6
    s_add_u32 s60, s60, s61
    v_mul_u32_u24 v10, 3072, v16
    v_add3_u32 v10, v10, v14, s60
    s_mul_i32 s60, s48, 80
    v_mul_u32_u24 v11, 3840, v16
    v_add3_u32 v11, v11, v14, s60
    v_mov_b32 v20, 0x3f803f80
    v_mov_b32 v21, 0x3f803f80
    v_mov_b32 v22, 0x3f803f80
    v_mov_b32 v23, 0x3f803f80
    s_and_b32 s60, s50, 1
    s_lshr_b32 s61, s50, 1
    s_lshl_b32 s62, s61, 6
    s_add_u32 s7, s62, s59
    s_lshl_b32 s62, s60, 7
    s_add_u32 s101, s7, s62
    s_lshl_b32 s62, s51, 8
    s_add_u32 s101, s101, s62
    s_add_u32 s101, s101, %d
    s_cmp_eq_u32 s61, 1
    s_cselect_b64 s[8:9], -1, 0
    s_lshl_b32 s62, s60, 12
    s_sub_u32 s100, 2048, s62
    s_lshl_b32 s12, s48, 4
    s_cmp_eq_u32 s40, 0
    s_cselect_b32 s12, s12, 0x7ffffff0
    s_cmp_ge_u32 s40, 6
    s_cselect_b32 s60, 6, 0
    s_sub_u32 s60, s40, s60
    s_mul_i32 s60, s60, %d
    v_mul_u32_u24 v16, 96, v1
    v_add_u32 v16, s60, v16
    ds_write_b128 v16, v[20:23] offset:80
    """ % (T_CS + 1536, BSLOT))
    srd(a, 96, 14, SZ_B1)
    a("""
    s_mov_b32 s14, s100
    s_and_b32 s15, s50, 2
    s_cmp_eq_u32 s51, 1
    s_cbranch_scc1 K1_V
    """)
    for _ in gens[0]:
        pass
    a.label("K1_V")
    for _ in gens[1]:
        pass
    gen_fold(a, 0)
    gen_fold(a, 1)
    a.label("K1_END")
    a("s_endpgm")

K2_REG = 20480
K2_LDS = 8 * K2_REG
K2_PRIO = int(os.environ.get("K2_PRIO", "0"))
K2_PRIO2 = int(os.environ.get("K2_PRIO2", "0"))
K2_FINE = int(os.environ.get("K2_FINE", "0"))
K2_NF = int(os.environ.get("K2_NF", "4"))
K2_ROT = int(os.environ.get("K2_ROT", "0"))
K2_RA = int(os.environ.get("K2_RA", "3"))
K2_RB = int(os.environ.get("K2_RB", "3"))
XR, BR = 16, 24


def k2_epi_addr(f):
    for j in range(2):
        if j == 0:
            f("v_lshrrev_b32 v11, 4, v0")
        else:
            f("v_mov_b32 v11, s40")
            f("v_add_u32 v11, 32, v11")
        f("""
        v_mul_u32_u24 v12, 205, v11
        v_lshrrev_b32 v12, 11, v12
        v_mul_u32_u24 v13, 10, v12
        v_sub_u32 v13, v11, v13
        v_lshlrev_b32 v%d, 4, v13
        v_and_b32 v14, 15, v1
        v_mul_u32_u24 v15, 5120, v12
        v_lshl_add_u32 v15, v13, 9, v15
        v_lshl_add_u32 v%d, v14, 4, v15
        v_lshl_add_u32 v14, v12, 4, v14
        v_add_u32 v14, s41, v14
        v_mul_u32_u24 v14, 1280, v14
        v_add_u32 v%d, v14, v%d
        """ % (9 + j, 7 + j, 5 + j, 9 + j))


def k2_xloads(a, vm):
    L = []
    for j in range(2):
        def fx(j=j):
            a("buffer_load_dwordx4 %s, v%d, s[48:51], s42 offen" % (vr(XR + j * 4), 5 + j))
            vm.add("X")

        def fb(j=j):
            a("buffer_load_dwordx4 %s, v%d, s[52:55], s42 offen" % (vr(BR + j * 4), 9 + j))
            vm.add("X")
        L += [fx, fb]
    return L


def k2_h(a):
    vm = Q(a, "vmcnt", 63)
    NS = 4
    if K2_PRIO < 0:
        a("s_setprio %d" % -K2_PRIO)

    def frag(slot, i):
        return vr(112 + slot * 36 + i * 4)

    pend = []

    def add_step(n):
        slot = n % NS
        for kind, i in [("A", 0)] + [("B", c) for c in range(5)] + [("A", m) for m in (1, 2, 3)]:
            if kind == "A":
                def fn(i=i):
                    if K2_ROT:
                        if i == 0 and n > 0:
                            a("s_add_u32 s64, s64, 1024")
                            a("s_add_u32 s65, s65, 5120")
                            a("s_cmp_eq_u32 s64, s66")
                            a("s_cselect_b32 s64, s44, s64")
                            a("s_cselect_b32 s65, s45, s65")
                        if i == 0:
                            a("buffer_load_dwordx4 %s, v2, s[20:23], s64 offen" % frag(slot, i))
                            return
                        a("s_add_u32 s60, s64, %d" % (i * 68 * 1024))
                    else:
                        a("s_add_u32 s60, s44, %d" % (i * 68 * 1024 + n * 1024))
                    a("buffer_load_dwordx4 %s, v2, s[20:23], s60 offen" % frag(slot, i))
            else:
                def fn(i=i):
                    if K2_ROT:
                        if i == 4:
                            a("s_add_u32 s61, s65, 4096")
                        a("buffer_load_dwordx4 %s, v2, s[24:27], s%d offen offset:%d" % (frag(slot, 4 + i), 61 if i == 4 else 65, (i & 3) * 1024))
                        return
                    if i == 0 or i == 4:
                        a("s_add_u32 s61, s45, %d" % (n * 5120 + i * 1024))
                    a("buffer_load_dwordx4 %s, v2, s[24:27], s61 offen offset:%d" % (frag(slot, 4 + i), (i & 3) * 1024))
            pend.append(((kind, n, i), n - NS, fn))

    if K2_ROT:
        a("""
        s_bfe_u32 s60, s2, 0x20003
        s_mul_i32 s60, s60, %d
        s_lshr_b32 s61, s2, 5
        s_mul_i32 s61, s61, %d
        s_lshr_b32 s61, s61, 1
        s_add_u32 s60, s60, s61
        s_mul_i32 s61, s60, 43
        s_lshr_b32 s61, s61, 9
        s_mul_i32 s61, s61, 12
        s_sub_u32 s60, s60, s61
        s_lshl_b32 s64, s60, 10
        s_add_u32 s64, s64, s44
        s_mul_i32 s65, s60, 5120
        s_add_u32 s65, s65, s45
        s_add_u32 s66, s44, 12288
        """ % (K2_RA, K2_RB))
    for n in range(12):
        add_step(n)
    if K2_FINE:
        P2 = []
        for (kind, n, i), _, fn in pend:
            key = (n - NS) * 20 + (i * 5 + 4 if kind == "A" else 15 + i) if n >= NS else -1
            P2.append(((kind, n, i), key, fn))
        P2.sort(key=lambda t: (t[1] if t[1] >= 0 else -1))
        pend[:] = P2
    done = [-1]

    def issue(k):
        while k > 0 and pend and pend[0][1] <= done[0]:
            tag, _, fn = pend.pop(0)
            fn()
            vm.add(tag)
            k -= 1

    issue(100)
    if PROF2:
        stamp(a, 7, 15, None, vm)
    if K2_PRIO2:
        a("s_setprio %d" % K2_PRIO2)
    k2_epi_addr(a)
    xl = k2_xloads(a, vm)
    for n in range(12):
        slot = n % NS
        if n == 1:
            stamp(a, 1, 15, None, vm)
        if PROF2:
            stamp(a, 8 + n, 15, None, vm)
        for m in range(4):
            for c in range(5):
                d = vr(32 + (m * 5 + c) * 4)
                if c == 0:
                    vm.wait(("A", n, m))
                if m == 0:
                    vm.wait(("B", n, c))
                a("v_mfma_f32_16x16x32_bf16 %s, %s, %s, %s" % (d, frag(slot, 4 + c), frag(slot, m), "0" if n == 0 else d))
                if K2_FINE:
                    done[0] = n * 20 + m * 5 + c
                    issue(2)
                else:
                    issue(1)
                if n == 9 and m == 2 and xl:
                    xl.pop(0)()
        if not K2_FINE:
            done[0] = n
    assert not pend and not xl
    a("s_nop 7")
    a("s_nop 1")
    stamp(a, 4, 15)
    a("v_add_u32 v11, s46, v2")
    for i in range(20):
        a("ds_write_b128 v11, %s offset:%d" % (vr(32 + i * 4), i * 1024))


def k2_att(a):
    vm = Q(a, "vmcnt", 63)
    lg = Q(a, "lgkmcnt", 15)
    f = Fill(a, vm, lg)
    PQ = lambda m, s: 32 + (m * 5 + s) * 4
    KF = lambda s, k: 112 + (s * 3 + k) * 4
    G2 = lambda grp, half: 160 + grp * 6 + half * 2
    WOB = [178, 214]
    ZM = lambda s: 198 + 4 * s
    ZC = lambda half: 214 + half * 2
    DB = [[220 + 4 * i for i in range(6)], [16, 20, 24, 28, 244, 248]]
    ACCT = [112 + 4 * i for i in range(16)] + [198 + 4 * i for i in range(4)]
    if K2_PRIO > 0:
        a("s_setprio %d" % K2_PRIO)
    for s in range(4):
        a("buffer_load_dwordx4 %s, v4, s[36:39], s62 offen offset:%d" % (vr(ZM(s)), s * 64))
        vm.add("Z")
    a("buffer_load_dwordx4 v[252:255], v4, s[36:39], s63 offen")
    vm.add("Z")

    def pq_loads(m):
        a("s_add_u32 s60, s43, %d" % (m * 68 * 1024))
        for s in range(4):
            a("buffer_load_dwordx4 %s, v2, s[20:23], s60 offen offset:%d" % (vr(PQ(m, s)), s * 1024))
            vm.add(("PQ", m))
        a("s_add_u32 s60, s44, %d" % (m * 68 * 1024))
        a("buffer_load_dwordx4 %s, v2, s[20:23], s60 offen" % vr(PQ(m, 4)))
        vm.add(("PQ", m))

    def kv_loads(p):
        for s in (2 * p, 2 * p + 1):
            a("s_add_u32 s60, s47, %d" % (s * 4096))
            for k in range(3):
                a("buffer_load_dwordx4 %s, v2, s[36:39], s60 offen offset:%d" % (vr(KF(s, k)), k * 1024))
                vm.add(("KV", p))
            a("buffer_load_dwordx2 %s, v3, s[36:39], s60 offen offset:3072" % vr(G2(s & 1, p) + 2 * p, 2))
            vm.add(("KV", p))
            if s == 2 * p:
                a("buffer_load_dwordx2 %s, v3, s[36:39], s60 offen offset:3584" % vr(G2(2, p) + 2 * p, 2))
                vm.add(("KV", p))

    pq_loads(0)
    kv_loads(0)
    kv_loads(1)
    for m in (1, 2, 3):
        pq_loads(m)
    for c in range(5):
        if c == 0 or c == 4:
            a("s_add_u32 s61, s45, %d" % (c * 1024))
        a("buffer_load_dwordx4 %s, v2, s[24:27], s61 offen offset:%d" % (vr(WOB[0] + c * 4), (c & 3) * 1024))
        vm.add(("WO", 0))
    dma = []
    for s in range(1, 5):
        for c in range(5):
            def fd(s=s, c=c):
                a("s_add_u32 m0, s46, %d" % ((s - 1) * 5120 + c * 1024))
                if s < 4:
                    a("s_add_u32 s61, s45, %d" % (s * 5120 + c * 1024))
                else:
                    a("s_add_u32 s61, s28, %d" % (c * 1024))
                a("buffer_load_dwordx4 v2, s[24:27], s61 offen lds")
                vm.add(("WO", s))
            dma.append(fd)
    while dma and len(vm.q) < 60:
        dma.pop(0)()
    a("""
    v_and_b32 v11, 3, v1
    v_lshrrev_b32 v12, 4, v1
    v_min_u32 v13, 1, v12
    v_cmp_eq_u32 s[64:65], 0, v11
    v_cmp_eq_u32 s[66:67], v13, v11
    v_cmp_eq_u32 s[68:69], 2, v11
    v_add_u32 v13, 2, v13
    v_cmp_eq_u32 s[70:71], v13, v11
    v_or_b32 v13, 1, v12
    v_cmp_eq_u32 s[82:83], v13, v11
    v_cmp_eq_u32 s[84:85], 0, v12
    v_cmp_gt_u32 s[86:87], 2, v12
    """)
    for b in (162, 168, 174, 216):
        a("v_mov_b32 v%d, 0" % b)
        a("v_mov_b32 v%d, 0" % (b + 1))
    k2_epi_addr(a)
    a("v_add_u32 v4, s46, v2")
    vm.wait("Z")
    for s in range(4):
        for h in range(2):
            ms = 64 + 4 * (s & 1) + 2 * h
            for d in range(2):
                r = ZM(s) + 2 * h + d
                a("v_cndmask_b32 v%d, 0, v%d, s[%d:%d]" % (r, r, ms, ms + 1))
    for h in range(2):
        for d in range(2):
            a("v_cndmask_b32 v%d, 0, v%d, s[82:83]" % (214 + 4 * h + d, 252 + 2 * h + d))

    def post(m, p):
        D = DB[p]
        dn = D[5]
        f.group(["s_nop 1"])
        for r in range(4):
            f("v_add_f32 v%d, %s, v%d" % (dn + r, EPS6, dn + r))
        for r in range(4):
            f("v_rcp_f32 v%d, v%d" % (dn + r, dn + r))
        f("v_cndmask_b32 v11, v%d, v%d, s[84:85]" % (dn + 1, dn))
        f("v_cndmask_b32 v12, v%d, v%d, s[84:85]" % (dn + 3, dn + 2))
        f("v_cndmask_b32 v13, v%d, v%d, s[86:87]" % (dn + 3, dn + 1))
        sc = [dn, 11, dn + 2, 12, 13]
        dst = [PQ(m, 2 * p), PQ(m, 2 * p) + 2, PQ(m, 2 * p + 1), PQ(m, 2 * p + 1) + 2, PQ(m, 4) + 2 * p]
        for T in range(5):
            if T == 4:
                f.after(("ck", m))
            for r in range(4):
                f("v_mul_f32 v%d, v%d, v%d" % (D[T] + r, D[T] + r, sc[T]))
            f("v_cvt_pk_bf16_f32 v%d, v%d, v%d" % (dst[T], D[T], D[T] + 1))
            f("v_cvt_pk_bf16_f32 v%d, v%d, v%d" % (dst[T] + 1, D[T] + 2, D[T] + 3))

    f.cur = ("a", 0)
    for m in range(4):
        for p in range(2):
            D = DB[p]
            u0, u1 = 2 * p, 2 * p + 1
            ck = vr(PQ(m, 4))
            ml = [(D[5], ZC(p), PQ(m, 4), 1),
                  (D[1], G2(0, p), PQ(m, 4), 1),
                  (D[3], G2(1, p), PQ(m, 4), 1),
                  (D[4], G2(2, p), PQ(m, 4), 1),
                  (D[5], ZM(u0), PQ(m, u0), 0),
                  (D[0], KF(u0, 0), PQ(m, u0), 1),
                  (D[2], KF(u1, 0), PQ(m, u1), 1),
                  (D[5], ZM(u1), PQ(m, u1), 0),
                  (D[1], KF(u0, 1), PQ(m, u0), 0),
                  (D[3], KF(u1, 1), PQ(m, u1), 0),
                  (D[4], KF(u0, 2), PQ(m, u0), 0),
                  (D[4], KF(u1, 2), PQ(m, u1), 0)]
            vm.wait(("PQ", m))
            if m == 0:
                if p == 0:
                    stamp(a, 1, 15)
            for i, (d, A_, B_, first) in enumerate(ml):
                if i == 1:
                    vm.wait(("KV", p))
                a("v_mfma_f32_16x16x32_bf16 %s, %s, %s, %s" % (vr(d), vr(A_), vr(B_), "0" if first else vr(d)))
                if p == 1 and i == 3:
                    f.cur = ("ck", m)
                if dma and len(vm.q) < 60:
                    dma.pop(0)()
                f.pop(K2_NF)
            f.flush()
            post(m, p)
    assert not dma
    stamp(a, 2, 15)
    xl = k2_xloads(a, vm)
    for s in range(5):
        B0 = WOB[s & 1]
        rd = []
        if s < 4:
            for c in range(5):
                rd.append(("ds_read_b128 %s, v4 offset:%d" % (vr(WOB[(s + 1) & 1] + c * 4), s * 5120 + c * 1024), ("W", s + 1, c)))
        if s == 0:
            vm.wait(("WO", 0))
        if s == 1:
            f.flush()
            a("s_nop 1")
        for m in range(4):
            for c in range(5):
                d = vr(ACCT[m * 5 + c])
                if m == 0 and s > 0:
                    lg.wait(("W", s, c))
                a("v_mfma_f32_16x16x32_bf16 %s, %s, %s, %s" % (d, vr(B0 + c * 4), vr(PQ(m, s)), "0" if s == 0 else d))
                if m >= 1 and rd:
                    if len(rd) == 5:
                        vm.wait(("WO", s + 1))
                    txt, tag = rd.pop(0)
                    a(txt)
                    lg.add(tag)
                if s == 2 and m == 3 and xl:
                    xl.pop(0)()
                f.pop(K2_NF)
    assert not xl
    a("s_nop 7")
    a("s_nop 1")
    stamp(a, 4, 15)
    for i in range(20):
        a("ds_write_b128 v4, %s offset:%d" % (vr(ACCT[i]), i * 1024))
    if K2_PRIO > 0:
        a("s_setprio 0")


def gen_k2(a):
    a.raw(".globl k2_kernel")
    a.raw(".p2align 8")
    a.raw(".type k2_kernel,@function")
    a.label("k2_kernel")
    if os.environ.get("K2_TWICE"):
        a("s_mov_b32 s99, %s" % os.environ.get("K2_TWICE"))
        a.label("K2_AGAIN")
    a("""
    s_cmp_ge_u32 s2, 256
    s_cbranch_scc1 K2_END
    s_load_dwordx2 s[16:17], s[0:1], 80
    s_load_dwordx2 s[4:5], s[0:1], 0
    s_load_dwordx2 s[8:9], s[0:1], 56
    s_load_dwordx2 s[10:11], s[0:1], 64
    v_and_b32 v1, 63, v0
    v_lshrrev_b32 v13, 6, v0
    s_nop 0
    v_readfirstlane_b32 s40, v13
    v_lshlrev_b32 v2, 4, v1
    v_lshlrev_b32 v3, 3, v1
    v_and_b32 v4, 48, v1
    s_and_b32 s41, s2, 7
    s_lshl_b32 s41, s41, 2
    s_bfe_u32 s42, s2, 0x20003
    s_add_u32 s41, s41, s42
    s_mul_i32 s44, s41, %d
    s_lshl_b32 s41, s41, 6
    s_lshr_b32 s43, s2, 5
    s_mul_i32 s42, s43, 160
    s_mul_i32 s45, s43, %d
    s_mul_i32 s46, s40, %d
    s_and_b32 s60, s40, 3
    s_cmp_ge_u32 s40, 4
    s_cbranch_scc1 K2_HSET
    s_lshl_b32 s61, s60, 12
    s_add_u32 s43, s44, s61
    s_add_u32 s43, s43, %d
    s_lshl_b32 s61, s60, 10
    s_add_u32 s44, s44, s61
    s_add_u32 s44, s44, %d
    s_mul_i32 s61, s60, 5120
    s_add_u32 s28, s45, s61
    s_add_u32 s28, s28, %d
    s_mul_i32 s61, s60, 20480
    s_add_u32 s45, s45, s61
    s_add_u32 s45, s45, %d
    s_lshl_b32 s47, s60, 14
    s_lshl_b32 s62, s60, 8
    s_add_u32 s62, s62, %d
    s_lshl_b32 s63, s60, 6
    s_add_u32 s63, s63, %d
    s_branch K2_SET
    """ % (4 * 68 * 1024, 68 * 5120, K2_REG, 48 * 1024, 64 * 1024, 64 * 5120, 48 * 5120, KV_Z, KV_Z + 1024))
    a.label("K2_HSET")
    a("""
    s_mul_i32 s61, s60, 12288
    s_add_u32 s44, s44, s61
    s_mul_i32 s61, s60, %d
    s_add_u32 s45, s45, s61
    s_mov_b32 s43, 0
    s_mov_b32 s47, 0
    s_mov_b32 s28, 0
    s_mov_b32 s62, 0
    s_mov_b32 s63, 0
    """ % (12 * 5120))
    a.label("K2_SET")
    a("s_waitcnt lgkmcnt(0)")
    srd(a, 20, 16, SZ_AP, WS_AP)
    srd(a, 24, 16, SZ_PB, WS_PB)
    srd(a, 36, 16, SZ_KV, WS_KV)
    srd(a, 48, 4, SZ_X)
    srd(a, 52, 8, SZ_B2)
    srd(a, 56, 10, SZ_OUT)
    a.prof_base = 0x100000
    stamp_init(a)
    stamp(a, 0, 15)
    a("s_cmp_ge_u32 s40, 4")
    a("s_cbranch_scc1 K2_H")
    k2_att(a)
    a("s_branch K2_RED")
    a.label("K2_H")
    k2_h(a)
    a.label("K2_RED")
    a("""
    v_add_u32 v11, %d, v7
    v_add_u32 v12, %d, v7
    v_add_u32 v13, %d, v8
    v_add_u32 v14, %d, v8
    s_waitcnt vmcnt(0) lgkmcnt(0)
    s_barrier
    """ % (3 * K2_REG, 6 * K2_REG, 3 * K2_REG, 6 * K2_REG))
    lg = Q(a, "lgkmcnt", 15)
    R = lambda j, w: 32 + (j * 8 + w) * 8
    AD = [[7, 11, 12], [8, 13, 14]]
    for j in range(2):
        if j == 1:
            a("s_mov_b64 exec, 0xffff")
        for w in range(8):
            for h in range(2):
                a("ds_read_b128 %s, v%d offset:%d" % (vr(R(j, w) + h * 4), AD[j][w // 3], (w % 3) * K2_REG + h * 256))
                lg.add((j, w))
    for j in (1, 0):
        T = 160 + j * 16
        for d in range(4):
            a("v_lshlrev_b32 v%d, 16, v%d" % (T + 2 * d, XR + j * 4 + d))
            a("v_and_b32 v%d, 0xffff0000, v%d" % (T + 1 + 2 * d, XR + j * 4 + d))
            a("v_lshlrev_b32 v%d, 16, v%d" % (T + 8 + 2 * d, BR + j * 4 + d))
            a("v_and_b32 v%d, 0xffff0000, v%d" % (T + 9 + 2 * d, BR + j * 4 + d))
        for e in range(8):
            a("v_add_f32 v%d, v%d, v%d" % (T + e, T + e, T + 8 + e))
        if j == 1:
            a("s_mov_b64 exec, -1")
    for j in range(2):
        T = 160 + j * 16
        if j == 1:
            a("s_mov_b64 exec, 0xffff")
        for w in range(0, 8, 2):
            lg.wait((j, w + 1))
            for e in range(8):
                a("v_add_f32 v%d, v%d, v%d" % (R(j, w) + e, R(j, w) + e, R(j, w + 1) + e))
            for e in range(8):
                a("v_add_f32 v%d, v%d, v%d" % (T + e, T + e, R(j, w) + e))
        for d in range(4):
            a("v_cvt_pk_bf16_f32 v%d, v%d, v%d" % (T + 8 + d, T + 2 * d, T + 1 + 2 * d))
        a("buffer_store_dwordx4 %s, v%d, s[56:59], s42 offen" % (vr(T + 8), 5 + j))
    a("s_mov_b64 exec, -1")
    stamp(a, 5, 15)
    if os.environ.get("K2_TWICE"):
        a("s_waitcnt vmcnt(0) lgkmcnt(0)")
        a("s_barrier")
        a("s_sub_u32 s99, s99, 1")
        a("s_cmp_lg_u32 s99, 0")
        a("s_cbranch_scc1 K2_AGAIN")
    a.label("K2_END")
    a("s_endpgm")


def kd(name, vgpr, accum, sgpr=102):
    return """
.amdhsa_kernel %s
  .amdhsa_next_free_vgpr %d
  .amdhsa_next_free_sgpr %d
  .amdhsa_accum_offset %d
  .amdhsa_group_segment_fixed_size 0
  .amdhsa_kernarg_size 88
  .amdhsa_user_sgpr_count 2
  .amdhsa_user_sgpr_kernarg_segment_ptr 1
  .amdhsa_system_sgpr_workgroup_id_x 1
.end_amdhsa_kernel
""" % (name, vgpr, sgpr, accum)


def main():
    global PROF, PROF2
    if len(sys.argv) > 2 and sys.argv[2].startswith("prof"):
        PROF = True
        PROF2 = sys.argv[2] == "prof2"
    a = Asm()
    a.raw("; @launch kernel=k1_kernel grid=(256,1,1) block=(512,1,1) lds=%d" % K1_LDS)
    a.raw("; @launch kernel=k2_kernel grid=(256,1,1) block=(512,1,1) lds=%d" % K2_LDS)
    a.raw('.amdgcn_target "amdgcn-amd-amdhsa--gfx950"')
    a.raw(".text")
    gen_k1(a)
    gen_k2(a)
    a.raw('.section .rodata,"a"')
    a.raw(".p2align 6")
    a.raw(kd("k1_kernel", 256, 256))
    a.raw(".p2align 6")
    a.raw(kd("k2_kernel", 256, 256))
    out = sys.argv[1] if len(sys.argv) > 1 else "cdna_kernels/%s.s" % NAME
    open(out, "w").write(a.text())


if __name__ == "__main__":
    main()
```
